```python
import torch

def _softmax(x, axis=-1):
    return torch.softmax(x, dim=axis)

def _gelu(x):
    return torch.nn.functional.gelu(x, approximate='tanh')

def _silu(x):
    return torch.nn.functional.silu(x)

def _sigmoid(x):
    return torch.sigmoid(x)

def _layernorm(x, axis=-1, eps=1e-05):
    m = x.mean(dim=axis, keepdim=True)
    v = x.var(dim=axis, keepdim=True, unbiased=False)
    return (x - m) / torch.sqrt(v + eps)

def _scatter_add(tgt, idx, src, axis=0):
    return tgt.clone().index_add_(axis, idx, src)

def _segment_sum(src, seg, n):
    out = torch.zeros((n,) + src.shape[1:], dtype=src.dtype)
    return out.index_add_(0, seg, src)

def _pad(x, pw):
    flat = tuple((v for pair in reversed(pw) for v in pair))
    return torch.nn.functional.pad(x, flat)
kernel_name = 'adaLN_cond__spectral_gfnet__glu_gated_reglu__prompt'

def setup_inputs():

    _w = lambda a: (lambda t: t.to(torch.bfloat16) if t.is_floating_point() else t)(torch.as_tensor(a))

    def _A_setup():
        B, S, D = (1, 2048, 448)
        Df = D // 2 + 1
        return {'x': _w((lambda *s: torch.randn(*s, dtype=torch.bfloat16) * 0.05)(B, S, D)), 'w_r': _w((lambda *s: torch.randn(*s, dtype=torch.bfloat16) * 3.2)(S, Df) * 0.02), 'w_i': _w((lambda *s: torch.randn(*s, dtype=torch.bfloat16) * 3.2)(S, Df) * 0.02)}
    _A_in = _A_setup()

    def _B_setup():
        B, S, D, F = (1, 2048, 448, 1792)
        return {'x': _w((lambda *s: torch.randn(*s, dtype=torch.bfloat16) * 0.05)(B, S, D)), 'W_gate': _w((lambda *s: torch.randn(*s, dtype=torch.bfloat16) * 0.4)(D, F) * (2.0 / D) ** 0.5), 'W_up': _w((lambda *s: torch.randn(*s, dtype=torch.bfloat16) * 0.4)(D, F) * (2.0 / D) ** 0.5), 'W_down': _w((lambda *s: torch.randn(*s, dtype=torch.bfloat16) * 0.4)(F, D) * (1.0 / F) ** 0.5)}
    _B_in = _B_setup()
    return {'A_x': _A_in['x'], 'A_w_r': _A_in['w_r'], 'A_w_i': _A_in['w_i'], 'B_x': _B_in['x'], 'B_W_gate': _B_in['W_gate'], 'B_W_up': _B_in['W_up'], 'B_W_down': _B_in['W_down'], 'c': _w((lambda *s: torch.randn(*s, dtype=torch.bfloat16) * 0.1)(1, 448) * 8.0), 'w_mod': _w((lambda *s: torch.randn(*s, dtype=torch.bfloat16) * 0.1)(448, 6 * 448) * 448 ** (-0.5) * 8.0)}

def reference(A_x, A_w_r, A_w_i, B_x, B_W_gate, B_W_up, B_W_down, c, w_mod):

    def _A_ref(x, w_r, w_i):
        B, S, D = x.shape
        X = (lambda x, axes=(-2, -1): torch.fft.rfft2(x.float(), dim=axes))(x, axes=(-2, -1))
        W = w_r + 1j * w_i
        X = X * W
        y = (lambda x, s, axes=(-2, -1): torch.fft.irfft2(x, s=s, dim=axes).to(torch.bfloat16))(X, (S, D), axes=(-2, -1))
        return y

    def _B_ref(x, W_gate, W_up, W_down):
        gate = torch.einsum('bsd,df->bsf', x, W_gate)
        up = torch.einsum('bsd,df->bsf', x, W_up)
        gate = gate * (lambda x, dt: x.to(dt))(gate > 0, gate.dtype)
        h = gate * up
        return torch.einsum('bsf,fd->bsd', h, W_down)
    x = A_x
    mod = (_silu(c) @ w_mod).reshape(c.shape[0], 6, 1, -1)
    sa, ca, ga, sb, cb, gb = (mod[:, 0].clone(), mod[:, 1].clone(), mod[:, 2].clone(), mod[:, 3].clone(), mod[:, 4].clone(), mod[:, 5].clone())
    h = _layernorm(x, axis=-1) * (1 + ca) + sa
    x = x + ga * _A_ref(h, A_w_r, A_w_i)
    h = _layernorm(x, axis=-1) * (1 + cb) + sb
    x = x + gb * _B_ref(h, B_W_gate, B_W_up, B_W_down)
    return x
```

```python
import re

REG_RE = re.compile(r'\b([vas])(\d+)\b|\b([vas])\[(\d+):(\d+)\]|\b(vcc|exec|m0|scc)\b')

def regs_of(tok):
    out = []
    for m in REG_RE.finditer(tok):
        if m.group(1):
            out.append((m.group(1), int(m.group(2))))
        elif m.group(3):
            out += [(m.group(3), i) for i in range(int(m.group(4)), int(m.group(5)) + 1)]
        else:
            out.append((m.group(6), 0))
    return out

TRANS = ('v_exp_f32', 'v_log_f32', 'v_rcp_f32', 'v_rsq_f32', 'v_sqrt_f32', 'v_sin_f32', 'v_cos_f32', 'v_rcp_iflag_f32')

def split_ops(s):
    out, depth, cur = [], 0, ''
    for ch in s:
        if ch == '[': depth += 1
        if ch == ']': depth -= 1
        if ch == ',' and depth == 0:
            out.append(cur.strip()); cur = ''
        else:
            cur += ch
    if cur.strip(): out.append(cur.strip())
    return out

class Ins:
    def __init__(self, text):
        self.text = text
        t = text.split(';')[0].strip()
        self.is_label = t.endswith(':')
        self.is_dir = t.startswith('.') and not self.is_label
        self.op = t.split()[0] if t else ''
        self.reads, self.writes = [], []
        self.cls = 'other'
        self.srcc = []; self.srcab = []
        self.passes = 0
        if not t or self.is_label or self.is_dir:
            self.cls = 'none'; return
        rest = t[len(self.op):].strip()
        ops = split_ops(rest)
        op = self.op
        R = lambda i: regs_of(ops[i]) if i < len(ops) else []
        allr = [r for o in ops for r in regs_of(o)]
        if op.startswith('v_mfma'):
            self.cls = 'mfma'
            self.passes = 8 if '32x32' in op else 4
            self.writes = R(0); self.srcab = R(1) + R(2); self.srcc = R(3)
            self.reads = self.srcab + self.srcc
        elif op.startswith('v_cmp'):
            self.cls = 'valu'; self.writes = R(0); self.reads = [r for o in ops[1:] for r in regs_of(o)]
            if op.startswith('v_cmpx'): self.writes = self.writes + [('exec', 0)]
        elif op.startswith('v_readfirstlane') or op.startswith('v_readlane'):
            self.cls = 'valu'; self.writes = R(0); self.reads = [r for o in ops[1:] for r in regs_of(o)]
        elif op.startswith('v_permlane'):
            self.cls = 'valu'; self.writes = allr; self.reads = allr
        elif op.startswith('v_'):
            self.cls = 'valu'; self.writes = R(0); self.reads = [r for o in ops[1:] for r in regs_of(o)]
            if op.startswith(('v_fmac', 'v_dot2c', 'v_pk_fmac', 'v_mac')) or '_dpp' in op or '_sdwa' in op:
                self.reads = self.reads + R(0)
            if op.startswith(('v_add_co', 'v_sub_co', 'v_addc_co', 'v_subb_co')):
                self.writes = R(0) + R(1); self.reads = [r for o in ops[2:] for r in regs_of(o)]
            if op.startswith('v_cndmask') and len(ops) == 3: self.reads.append(('vcc', 0))
        elif op.startswith(('buffer_load', 'global_load')):
            self.cls = 'vmem'
            if re.search(r'\blds\b', rest) or '_lds_' in op:
                self.reads = allr + [('m0', 0)]; self.cls = 'vmem'; self.dma = True
            else:
                self.writes = R(0); self.reads = [r for o in ops[1:] for r in regs_of(o)]
        elif op.startswith(('buffer_store', 'global_store', 'buffer_atomic', 'global_atomic')):
            self.cls = 'vmem'; self.reads = allr
            self.wide = ('x4' in op or 'x3' in op)
            self.data = R(0) if op.startswith('buffer') else R(1)
            if 'atomic' in op and re.search(r'\bsc0\b', rest): self.writes = R(0)
        elif op.startswith('ds_read') or op.startswith('ds_bpermute') or op.startswith('ds_swizzle') or op.startswith('ds_permute'):
            self.cls = 'ds'; self.writes = R(0); self.reads = [r for o in ops[1:] for r in regs_of(o)]
        elif op.startswith('ds_'):
            self.cls = 'ds'; self.reads = allr
        elif op.startswith('s_'):
            self.cls = 'salu'
            if op in ('s_nop', 's_waitcnt', 's_barrier', 's_endpgm', 's_sleep', 's_setprio') or op.startswith(('s_branch', 's_cbranch')):
                pass
            elif op.startswith('s_cmp'):
                self.reads = allr
            else:
                self.writes = R(0); self.reads = [r for o in ops[1:] for r in regs_of(o)]
                if 'saveexec' in op: self.writes = self.writes + [('exec', 0)]
        self.dpp = '_dpp' in op
        self.trans = op.replace('_e32', '').replace('_e64', '') in TRANS
        self.dot = op.startswith('v_dot')

    def states(self):
        if self.cls == 'none': return 0
        if self.op == 's_nop': return int(self.text.split(';')[0].split()[1], 0) + 1
        return 1

def need(prod, cons):
    n = 0
    pw, pr = set(prod.writes), set(prod.reads)
    cr, cw = set(cons.reads), set(cons.writes)
    vec = lambda S: {r for r in S if r[0] in 'va'}
    sca = lambda S: {r for r in S if r[0] in ('s', 'vcc')}
    if prod.cls == 'valu':
        w = vec(pw)
        if cons.cls == 'mfma' and w & cr: n = max(n, 3 if prod.dot else 2)
        if cons.cls == 'valu':
            if cons.dpp and w & cr: n = max(n, 2)
            if cons.op.startswith('v_permlane') and w & cr: n = max(n, 2)
            if cons.op.startswith(('v_readlane', 'v_readfirstlane')) and w & cr: n = max(n, 1)
            if prod.trans and not cons.trans and w & cr: n = max(n, 1)
            if prod.dot and (w & (cr | cw)):
                if cons.op == prod.op:
                    ops = split_ops(cons.text.split(';')[0].strip()[len(cons.op):])
                    ab = set(regs_of(ops[1]) + regs_of(ops[2]))
                    if w & ab: n = max(n, 3)
                else: n = max(n, 3)
            if '_sdwa' in prod.op and 'dst_sel:DWORD' not in prod.text and w & (cr | cw): n = max(n, 1)
            if sca(pw) & cr:
                n = max(n, 4 if cons.op.startswith(('v_readlane', 'v_writelane')) else 2)
            if ('exec', 0) in pw:
                if cons.dpp: n = max(n, 5)
                if cons.op.startswith(('v_readlane', 'v_readfirstlane', 'v_writelane', 'v_permlane')): n = max(n, 4)
        if prod.dot and cons.cls in ('vmem', 'ds') and w & cr: n = max(n, 3)
        if prod.trans and cons.cls in ('vmem', 'ds') and w & cr: n = max(n, 1)
        if cons.cls == 'vmem' and sca(pw) & cr: n = max(n, 5)
        if cons.cls == 'salu' and sca(pw) & cr: n = max(n, 1)
        if cons.cls == 'mfma' and ('exec', 0) in pw: n = max(n, 4)
    if prod.cls == 'mfma':
        p = prod.passes
        if cons.cls == 'mfma':
            if pw & set(cons.srcab): n = max(n, p + 4)
            if pw & set(cons.srcc):
                if not (prod.writes == cons.srcc and p == cons.passes): n = max(n, p + 2)
            elif pw & cw:
                n = max(n, p + 2)
        elif cons.cls in ('valu', 'vmem', 'ds'):
            if pw & (cr | cw): n = max(n, p + 4)
        if cons.cls == 'valu' and set(prod.srcc) & cw: n = max(n, p - 1)
    if prod.cls == 'vmem' and getattr(prod, 'wide', False):
        if set(prod.data) & cw: n = max(n, 2 if cons.cls in ('valu', 'mfma') else 1)
    if prod.cls == 'ds' and prod.op in ('ds_write_b128', 'ds_write_b96'):
        pass
    if prod.cls == 'salu' and ('m0', 0) in pw and ('m0', 0) in cr and cons.cls in ('vmem', 'ds'): n = max(n, 1)
    return n

class Asm:
    def __init__(self):
        self.ins = []
    def __call__(self, text):
        for line in text.strip('\n').split('\n'):
            line = line.strip()
            if line: self.ins.append(Ins(line))
    def label(self, name): self.ins.append(Ins(name + ':'))
    def finalize(self, window=24):
        out = []
        for ins in self.ins:
            if ins.cls != 'none':
                dist = 0; req = 0
                for prev in reversed(out):
                    if dist >= window: break
                    if prev.cls != 'none':
                        k = need(prev, ins)
                        if k - dist > req: req = k - dist
                    dist += prev.states()
                while req > 0:
                    k = min(req, 16)
                    out.append(Ins(f's_nop {k-1}')); req -= k
            out.append(ins)
        self.ins = out
        return '\n'.join((i.text if (i.is_label or i.is_dir) else '    ' + i.text) for i in out) + '\n'
    def max_regs(self):
        mx = {'v': -1, 'a': -1, 's': -1}
        for i in self.ins:
            for r in list(i.reads) + list(i.writes):
                if r[0] in mx: mx[r[0]] = max(mx[r[0]], r[1])
        return mx

def vr(b, n=1): return f'v{b}' if n == 1 else f'v[{b}:{b+n-1}]'
def ar(b, n=1): return f'a{b}' if n == 1 else f'a[{b}:{b+n-1}]'
def sr(b, n=1): return f's{b}' if n == 1 else f's[{b}:{b+n-1}]'
```

```python
from asmlib import *
from layout import *

K0_NA = 224
K0_NB = 42
K0_LDS = 64 * 912 + 512
XS = 912
RO = 64 * XS
MO = RO + 256

def srd(a, d, base, nbytes):
    a(f's_mov_b32 s{d}, s{base}')
    a(f's_mov_b32 s{d+1}, s{base+1}')
    a(f's_mov_b32 s{d+2}, {nbytes:#x}')
    a(f's_mov_b32 s{d+3}, 0x00020000')

def rb16(a, dst, src):
    a(f'v_cvt_pk_bf16_f32 v{dst}, v{src}, v{src}')
    a(f'v_lshlrev_b32 v{dst}, 16, v{dst}')

def stamp(a, kidx, slot, ws_srd, enable, wgreg='s2', tmp_s=96, tmp_v=(250, 251, 252)):
    if not enable: return
    v0_, v1_, v2_ = tmp_v
    a(f's_memrealtime s[{tmp_s}:{tmp_s+1}]')
    a('s_waitcnt lgkmcnt(0)')
    a(f'v_mov_b32 v{v0_}, s{tmp_s}')
    a(f'v_mov_b32 v{v1_}, s{tmp_s+1}')
    a(f's_lshl_b32 s{tmp_s+2}, {wgreg}, 7')
    a(f's_add_u32 s{tmp_s+2}, s{tmp_s+2}, {WS_STAMP + kidx * 0x10000 + slot * 8:#x}')
    a(f'v_mov_b32 v{v2_}, s{tmp_s+2}')
    a(f'buffer_store_dwordx2 v[{v0_}:{v1_}], v{v2_}, s[{ws_srd}:{ws_srd+3}], 0 offen')

def gen_k0(stamps=False):
    a = Asm()
    TV = (120, 121, 122)
    a.label('k0_kernel')
    a(f's_cmp_ge_u32 s2, {K0_NA + K0_NB}')
    a('s_cbranch_scc1 K0_END')
    a('s_load_dwordx2 s[4:5], s[0:1], 0')
    a('s_load_dwordx2 s[6:7], s[0:1], 88')
    a('s_load_dwordx4 s[16:19], s[0:1], 56')
    a('v_lshrrev_b32 v1, 6, v0')
    a('v_and_b32 v0, 63, v0')
    a('v_readfirstlane_b32 s3, v1')
    a('v_lshlrev_b32 v1, 4, v0')
    a('v_and_b32 v2, 15, v0')
    a('v_lshrrev_b32 v3, 4, v0')
    a(f's_cmp_ge_u32 s2, {K0_NA}')
    a('s_cbranch_scc1 K0_B')
    a('s_lshr_b32 s20, s2, 3')
    a('s_mul_i32 s21, s20, 37')
    a('s_lshr_b32 s21, s21, 8')
    a('s_mul_i32 s22, s21, 7')
    a('s_sub_u32 s22, s20, s22')
    a('s_lshl_b32 s21, s21, 3')
    a('s_and_b32 s20, s2, 7')
    a('s_add_u32 s21, s21, s20')
    a('s_mul_i32 s23, s21, 896')
    a(f's_mul_i32 s24, s3, {16*28672}')
    a('s_add_u32 s23, s23, s24')
    a(f's_mul_i32 s24, s3, {16*XS}')
    a('s_mov_b32 m0, s24')
    a('s_waitcnt lgkmcnt(0)')
    srd(a, 8, 4, NB_X)
    srd(a, 12, 6, WS_SIZE)
    stamp(a, 0, 0, 12, stamps, tmp_v=TV)
    a('s_mov_b32 exec_hi, 0x00ffffff')
    for r in range(16):
        a('buffer_load_dwordx4 v1, s[8:11], s23 offen lds')
        if r < 15:
            a(f's_add_u32 m0, m0, {XS}')
            a('s_add_u32 s23, s23, 28672')
    a('s_mov_b32 exec_hi, -1')
    CT = 80
    a('s_lshl_b32 s24, s3, 4')
    a('v_add_u32 v4, s24, v2')
    a('v_lshrrev_b32 v5, 1, v4')
    a('v_and_b32 v6, 1, v4')
    a('v_cmp_eq_u32 vcc, 1, v4')
    a('v_cndmask_b32 v5, v5, 32, vcc') if False else None
    a('v_mov_b32 v7, 32')
    a('v_cndmask_b32 v5, v5, v7, vcc')
    a('v_mov_b32 v7, 0')
    a('v_cndmask_b32 v6, v6, v7, vcc')
    a('v_cvt_f32_u32 v5, v5')
    a('v_cvt_f32_u32 v6, v6')
    a('v_mul_f32 v5, 0x3c800000, v5')
    a('v_mul_f32 v6, 0.25, v6') if False else a('v_mul_f32 v6, 0x3e800000, v6')
    a('v_lshlrev_b32 v7, 3, v3')
    a('v_cvt_f32_u32 v7, v7')
    a('v_fma_f32 v6, v5, v7, v6')
    a('v_mul_f32 v7, 0x42000000, v5')
    a('v_add_f32 v7, v7, v6')
    for j in range(8):
        a(f'v_cos_f32 v{CT+j}, v6')
        a(f'v_cos_f32 v{CT+8+j}, v7')
        if j < 7:
            a('v_add_f32 v6, v6, v5')
            a('v_add_f32 v7, v7, v5')
    a('v_lshrrev_b32 v4, 2, v0')
    a('v_add_u32 v4, s24, v4')
    a(f'v_mul_u32_u24 v5, {XS}, v4')
    a('v_and_b32 v6, 3, v0')
    a('v_lshl_add_u32 v5, v6, 4, v5')
    a('v_lshrrev_b32 v7, 2, v2')
    a('v_lshl_add_u32 v7, v3, 3, v7')
    a(f'v_mul_u32_u24 v8, {XS}, v7')
    a('v_mul_u32_u24 v7, 224, v6')
    a('s_lshl_b32 s25, s22, 3')
    a('v_add3_u32 v8, v8, v7, s25')
    a(f'v_mul_u32_u24 v9, {XS}, v2')
    a('v_mul_u32_u24 v7, 56, v3')
    a('s_mul_i32 s26, s3, 224')
    a('s_add_u32 s26, s26, s25')
    a('v_add3_u32 v9, v9, v7, s26')
    a('s_and_b32 s26, s21, 15')
    a('s_lshl_b32 s26, s26, 2')
    a('s_add_u32 s26, s26, s3')
    a('s_mul_i32 s26, s26, 28672')
    a('s_lshr_b32 s27, s21, 4')
    a('s_lshl_b32 s27, s27, 10')
    a('s_add_u32 s26, s26, s27')
    a(f's_add_u32 s26, s26, {WS_XF:#x}')
    a('s_lshl_b32 s27, s22, 12')
    a('s_sub_u32 s28, s27, 4096')
    a('s_cmp_eq_u32 s22, 0')
    a(f's_cselect_b32 s28, {6*4096}, s28')
    a('v_and_b32 v7, 1, v3')
    a('v_cmp_eq_u32 vcc, 1, v7')
    a('v_mov_b32 v10, s27')
    a('v_mov_b32 v7, s28')
    a('v_cndmask_b32 v10, v10, v7, vcc')
    a('v_add3_u32 v10, v10, v1, s26')
    a(f'v_mul_u32_u24 v11, {2*57344}, v3')
    a('v_lshlrev_b32 v7, 6, v6')
    a('v_add_u32 v11, v11, v7')
    a('v_lshrrev_b32 v7, 2, v2')
    a('v_lshl_add_u32 v11, v7, 4, v11')
    a(f's_mul_i32 s26, s3, {8*57344}')
    a('s_mul_i32 s27, s21, 1792')
    a('s_add_u32 s26, s26, s27')
    a('s_lshl_b32 s27, s22, 8')
    a('s_add_u32 s26, s26, s27')
    a(f's_add_u32 s26, s26, {WS_U:#x}')
    a('v_add_u32 v11, s26, v11')
    a('s_mov_b32 s27, 57344')
    a(f'v_lshlrev_b32 v12, 2, v4')
    a(f'v_lshlrev_b32 v13, 1, v4')
    a('v_lshlrev_b32 v14, 5, v3')
    a('v_lshlrev_b32 v15, 4, v3')
    a('s_mov_b32 s28, 0x3f803f80')
    for i in range(4): a(f'v_mov_b32 v{16+i}, 0')
    a('s_waitcnt vmcnt(0)')
    stamp(a, 0, 1, 12, stamps, tmp_v=TV)
    XB = 20
    for i in range(14):
        a(f'ds_read_b128 v[{XB+4*i}:{XB+4*i+3}], v5 offset:{64*i}')
    for i in range(14):
        a(f's_waitcnt lgkmcnt({13-i})')
        for j in range(4):
            r = XB + 4 * i + j
            a(f'v_dot2c_f32_bf16 v{16+(j&1)}, s28, v{r}')
            a(f'v_dot2c_f32_bf16 v{18+(j&1)}, v{r}, v{r}')
    a('v_add_f32 v16, v16, v17')
    a('v_add_f32 v18, v18, v19')
    for qp in ('[1,0,3,2]', '[2,3,0,1]'):
        a(f'v_add_f32_dpp v16, v16, v16 quad_perm:{qp} row_mask:0xf bank_mask:0xf')
        a(f'v_add_f32_dpp v18, v18, v18 quad_perm:{qp} row_mask:0xf bank_mask:0xf')
    inv = 0x3b124925
    a(f'v_mul_f32 v16, {inv:#x}, v16')
    a(f'v_mul_f32 v18, {inv:#x}, v18')
    a('v_fma_f32 v18, -v16, v16, v18')
    a('v_max_f32 v18, 0, v18')
    a('v_cvt_pk_bf16_f32 v17, -v16, -v16') if False else None
    a('v_sub_f32 v16, 0, v16')
    a('v_cvt_pk_bf16_f32 v17, v16, v16')
    rb16(a, 18, 18)
    a('v_add_f32 v18, 0x3727c5ac, v18')
    rb16(a, 18, 18)
    a('v_sqrt_f32 v18, v18')
    rb16(a, 18, 18)
    a('v_rcp_f32 v18, v18')
    a(f'ds_write_b16 v13, v17 offset:{MO}')
    a(f'ds_write_b32 v12, v18 offset:{RO}')
    a('s_waitcnt lgkmcnt(0)')
    a('s_barrier')
    for ks in range(2):
        for h in range(2):
            a(f'ds_read_b128 v[{20+8*ks+4*h}:{23+8*ks+4*h}], v14 offset:{RO+128*ks+16*h}')
    for ks in range(2):
        a(f'ds_read_b128 v[{36+4*ks}:{39+4*ks}], v15 offset:{MO+64*ks}')
    for t in range(4):
        for ks in range(2):
            for h in range(2):
                b = 44 + 8 * t + 4 * ks + 2 * h
                a(f'ds_read_b64_tr_b16 v[{b}:{b+1}], v8 offset:{ks*32*XS + h*4*XS + t*56}')
                if t == 1 and ks == 1 and h == 1:
                    pass
    a('s_waitcnt lgkmcnt(15)')
    for nh in range(2):
        for hi in range(2):
            a(f'ds_read_b64 v[{96+4*nh+2*hi}:{97+4*nh+2*hi}], v9 offset:{nh*16*XS + hi*32*XS}')
    a('s_waitcnt lgkmcnt(15)')
    for p in range(8):
        a(f'v_pk_mul_f32 v[{CT+2*p}:{CT+2*p+1}], v[{CT+2*p}:{CT+2*p+1}], v[{20+2*p}:{21+2*p}]')
    for p in range(8):
        a(f'v_cvt_pk_bf16_f32 v{20+p}, v{CT+2*p}, v{CT+2*p+1}')
    a('v_mfma_f32_16x16x32_bf16 v[28:31], v[20:23], v[36:39], 0')
    a('v_mfma_f32_16x16x32_bf16 v[28:31], v[24:27], v[40:43], v[28:31]')
    a('s_waitcnt lgkmcnt(0)')
    a('buffer_store_dwordx4 v[96:99], v10, s[12:15], 0 offen')
    a('buffer_store_dwordx4 v[100:103], v10, s[12:15], 0 offen offset:2048')
    DT = 80
    for t in range(4):
        a(f'v_mfma_f32_16x16x32_bf16 v[{DT+4*t}:{DT+4*t+3}], v[20:23], v[{44+8*t}:{47+8*t}], v[28:31]')
    for t in range(4):
        a(f'v_mfma_f32_16x16x32_bf16 v[{DT+4*t}:{DT+4*t+3}], v[24:27], v[{48+8*t}:{51+8*t}], v[{DT+4*t}:{DT+4*t+3}]')
    for sl in range(2):
        for t in range(4):
            a(f'v_cvt_pk_bf16_f32 v{104+4*sl+t}, v{DT+4*t+2*sl}, v{DT+4*t+2*sl+1}')
    a('buffer_store_dwordx4 v[104:107], v11, s[12:15], 0 offen')
    a('buffer_store_dwordx4 v[108:111], v11, s[12:15], s27 offen')
    if stamps:
        a('s_waitcnt vmcnt(0)')
        stamp(a, 0, 2, 12, stamps, tmp_v=TV)
    a('s_endpgm')
    a.label('K0_B')
    a(f's_sub_u32 s20, s2, {K0_NA}')
    a('s_mul_i32 s21, s20, 37')
    a('s_lshr_b32 s21, s21, 8')
    a('v_lshrrev_b32 v4, 3, v0')
    a('v_lshrrev_b32 v5, 4, v0')
    a('v_lshlrev_b32 v5, 1, v5')
    a('v_and_b32 v6, 7, v0')
    a('v_xor_b32 v6, v6, v5')
    a('v_mul_u32_u24 v4, 5376, v4')
    a('v_lshl_add_u32 v4, v6, 4, v4')
    a('s_lshl_b32 s22, s20, 7')
    a(f's_mul_i32 s23, s3, {112*5376}')
    a('s_add_u32 s23, s23, s22')
    a(f's_mul_i32 s24, s3, {14*1024}')
    a('s_mov_b32 m0, s24')
    a('s_lshl_b32 s25, s3, 8')
    a('v_lshl_add_u32 v7, v0, 2, s25')
    a('s_waitcnt lgkmcnt(0)')
    srd(a, 8, 18, NB_WMOD)
    srd(a, 12, 6, WS_SIZE)
    srd(a, 28, 16, 896)
    stamp(a, 0, 0, 12, stamps, tmp_v=TV)
    a('buffer_load_dword v8, v7, s[28:31], 0 offen')
    for r in range(14):
        a('buffer_load_dwordx4 v4, s[8:11], s23 offen lds')
        if r < 13:
            a('s_add_u32 m0, m0, 1024')
            a(f's_add_u32 s23, s23, {8*5376}')
    SO = 57344
    a('s_waitcnt vmcnt(14)')
    a('v_lshlrev_b32 v9, 16, v8')
    a('v_and_b32 v10, 0xffff0000, v8')
    for r in (9, 10):
        a(f'v_mul_f32 v{r+2}, 0xbfb8aa3b, v{r}')
        a(f'v_exp_f32 v{r+2}, v{r+2}')
        a(f'v_add_f32 v{r+2}, 1.0, v{r+2}')
        a(f'v_rcp_f32 v{r+2}, v{r+2}')
        a(f'v_mul_f32 v{r}, v{r}, v{r+2}')
    a('v_cvt_pk_bf16_f32 v9, v9, v10')
    a(f'ds_write_b32 v7, v9 offset:{SO}')
    a('v_lshrrev_b32 v10, 2, v0')
    a('v_lshrrev_b32 v11, 3, v0')
    a('v_and_b32 v11, 3, v11')
    a('v_xor_b32 v11, s3, v11')
    a('v_lshlrev_b32 v10, 7, v10')
    a('v_lshl_add_u32 v10, v11, 5, v10')
    a('v_and_b32 v11, 3, v0')
    a('v_lshl_add_u32 v10, v11, 3, v10')
    a('v_lshlrev_b32 v11, 3, v3')
    a('s_mul_i32 s24, s21, 448')
    a('s_lshl_b32 s25, s20, 6')
    a('s_sub_u32 s25, s25, s24')
    a('s_lshl_b32 s26, s3, 4')
    a('s_add_u32 s25, s25, s26')
    a('v_add_u32 v12, s25, v2')
    a('v_mul_u32_u24 v13, 2341, v12')
    a('v_lshrrev_b32 v13, 16, v13')
    a('v_mul_u32_u24 v14, 28, v13')
    a('v_sub_u32 v14, v12, v14')
    a('v_lshl_add_u32 v13, v14, 4, v13')
    a('s_cmp_lt_u32 s21, 3')
    a('s_cselect_b64 vcc, -1, 0')
    a('v_cndmask_b32 v12, v12, v13, vcc')
    a('v_add_u32 v12, s24, v12')
    a('v_lshlrev_b32 v12, 2, v12')
    a(f'v_mov_b32 v13, {OOB:#x}')
    a('v_cmp_gt_u32 vcc, 16, v0')
    a('v_cndmask_b32 v12, v13, v12, vcc')
    a('s_mov_b32 s26, 0')
    a('s_mov_b32 s27, 1.0')
    a('s_cmp_eq_u32 s21, 1')
    a('s_cselect_b32 s26, 1.0, s26')
    a('s_cmp_eq_u32 s21, 4')
    a('s_cselect_b32 s26, 1.0, s26')
    a('s_cmp_eq_u32 s21, 0')
    a('s_cselect_b32 s27, 0x45000000, s27')
    a('s_cmp_eq_u32 s21, 2')
    import struct
    sc = struct.unpack('<I', struct.pack('<f', 2.0 / (S * D)))[0]
    a(f's_cselect_b32 s27, {sc:#x}, s27')
    a('s_waitcnt vmcnt(0) lgkmcnt(0)')
    a('s_barrier')
    stamp(a, 0, 1, 12, stamps, tmp_v=TV)
    def rd(ks, base):
        a(f'ds_read_b64 v[{base}:{base+1}], v11 offset:{SO + 64*ks}')
        a(f'ds_read_b64 v[{base+2}:{base+3}], v11 offset:{SO + 64*ks + 32}')
        a(f'ds_read_b64_tr_b16 v[{base+4}:{base+5}], v10 offset:{4096*ks}')
        a(f'ds_read_b64_tr_b16 v[{base+6}:{base+7}], v10 offset:{4096*ks + 2048}')
    base = lambda ks: 20 + 8 * (ks % 12)
    for ks in range(3): rd(ks, base(ks))
    for ks in range(14):
        if ks + 3 < 14:
            rd(ks + 3, base(ks + 3))
            a('s_waitcnt lgkmcnt(12)')
        else:
            a(f's_waitcnt lgkmcnt({4*(13-ks)})')
        b = base(ks)
        c = '0' if ks == 0 else 'v[16:19]'
        a(f'v_mfma_f32_16x16x32_bf16 v[16:19], v[{b}:{b+3}], v[{b+4}:{b+7}], {c}')
    rb16(a, 16, 16)
    a('v_add_f32 v16, s26, v16')
    rb16(a, 16, 16)
    a('v_mul_f32 v16, s27, v16')
    a('buffer_store_dword v16, v12, s[12:15], 0 offen')
    if stamps:
        a('s_waitcnt vmcnt(0)')
        stamp(a, 0, 2, 12, stamps, tmp_v=TV)
    a.label('K0_END')
    a('s_endpgm')
    return a
```

```python
from asmlib import *
from layout import *
from k0 import srd, rb16, stamp
from tables import TB_FB, TB_FA, TB_TWI, TB_TWF

K1_NF, K1_NW, K1_ND = 65, 112, 56
X1 = 16384
X2 = X1 + 256 * 144
K1_LDS = X2 + 32 * 1040

def cmul_fwd(a, dre, dim, xr, xi, c, s, csel, t):
    pass

def gen_k1(stamps=False):
    a = Asm()
    TV = (250, 251, 252)
    a.label('k1_kernel')
    a(f's_cmp_ge_u32 s2, {K1_NF + K1_NW + K1_ND}')
    a('s_cbranch_scc1 K1_END')
    a('s_load_dwordx4 s[4:7], s[0:1], 8')
    a('s_load_dwordx2 s[16:17], s[0:1], 88')
    a('s_load_dwordx4 s[36:39], s[0:1], 32')
    a('s_load_dwordx2 s[40:41], s[0:1], 48')
    a('v_lshrrev_b32 v1, 6, v0')
    a('v_and_b32 v0, 63, v0')
    a('v_readfirstlane_b32 s3, v1')
    a('v_lshlrev_b32 v1, 4, v0')
    a('v_and_b32 v2, 15, v0')
    a('v_lshrrev_b32 v3, 4, v0')
    a(f's_cmp_ge_u32 s2, {K1_NF}')
    a('s_cbranch_scc1 K1_PREP')
    a('s_getpc_b64 s[42:43]')
    a.label('K1_PC')
    a('s_add_u32 s42, s42, k1_tbl-K1_PC')
    a('s_addc_u32 s43, s43, 0')
    srd(a, 44, 42, 16384)
    a('s_lshl_b32 s18, s3, 11')
    a('s_mov_b32 m0, s18')
    a('s_add_u32 s19, s18, 0')
    a('buffer_load_dwordx4 v1, s[44:47], s19 offen lds')
    a('buffer_load_dwordx4 v1, s[44:47], s19 offen offset:1024 lds')
    a('s_and_b32 s18, s2, 63')
    a('s_sub_u32 s19, 64, s18')
    a('s_cmp_gt_u32 s18, 32')
    a('s_cselect_b32 s19, s19, s18')
    a('s_cselect_b32 s20, -1.0, 1.0')
    a('s_and_b32 s21, s18, 31')
    a('s_cmp_eq_u32 s21, 0')
    a('s_cselect_b32 s20, 0, s20')
    a('s_cselect_b32 s19, 0, s19')
    a('s_mul_i32 s19, s19, 57344')
    a('s_cmp_eq_u32 s18, 32')
    a('s_cselect_b32 s21, 2, 0')
    a('s_add_u32 s19, s19, s21')
    a(f's_add_u32 s19, s19, {WS_U:#x}')
    a('s_cmp_eq_u32 s3, 7')
    a(f's_cselect_b32 s22, {OOB:#x}, 0')
    a(f'v_mul_u32_u24 v4, {4*1792}, v3')
    a('v_lshl_add_u32 v4, v2, 2, v4')
    a('s_lshl_b32 s23, s3, 8')
    a('s_add_u32 s23, s23, s22')
    a('v_add_u32 v4, s23, v4')
    a('v_lshl_add_u32 v5, v3, 4, s23')
    a('v_lshl_add_u32 v6, v2, 2, s23')
    a('s_cmp_eq_u32 s2, 0')
    a('s_cselect_b32 s24, 0, 99')
    a('v_cmp_eq_u32 vcc, s24, v2')
    a(f'v_mov_b32 v7, {OOB:#x}')
    a('v_cndmask_b32 v7, v7, v5, vcc')
    for q in range(8):
        ks, j = divmod(q, 4)
        a(f's_add_u32 s{48+q}, s19, {(16*ks+j)*1792}')
    a('s_waitcnt lgkmcnt(0)')
    srd(a, 8, 4, NB_W)
    srd(a, 12, 6, NB_W)
    srd(a, 28, 16, WS_SIZE)
    stamp(a, 1, 0, 28, stamps, tmp_v=TV)
    UA, M2, CA, SA, GA, M2I, FA, TWF, FB, TWI, WW, DD = 32, 64, 80, 96, 112, 116, 124, 132, 140, 164, 180, 216
    for d2l in range(4):
        for ks in range(2):
            for j in range(4):
                a(f'buffer_load_dword v{UA+8*d2l+4*ks+j}, v4, s[28:31], s{48+4*ks+j} offen offset:{64*d2l}')
    for d2l in range(4):
        a(f'buffer_load_dwordx4 v[{CA+4*d2l}:{CA+4*d2l+3}], v5, s[28:31], 0 offen offset:{WS_MOD+1792+64*d2l}')
        a(f'buffer_load_dwordx4 v[{SA+4*d2l}:{SA+4*d2l+3}], v7, s[28:31], 0 offen offset:{WS_MOD+64*d2l}')
    for d2l in range(4):
        a(f'buffer_load_dword v{GA+d2l}, v6, s[28:31], 0 offen offset:{WS_MOD+3584+64*d2l}')
    nst = 1 if stamps else 0
    for r in range(36): a(f'v_mov_b32 v{WW+r}, 0')
    a('v_lshlrev_b32 v8, 7, v3')
    a('v_lshl_add_u32 v8, v2, 1, v8')
    a('v_sub_u32 v9, 288, v8')
    a('v_cmp_eq_u32 vcc, 3, v3')
    a(f'v_mov_b32 v10, {OOB:#x}')
    a('v_cndmask_b32 v9, v9, v10, vcc')
    a('v_add_u32 v11, 64, v8')
    a('v_sub_u32 v12, 832, v8')
    a('v_cndmask_b32 v11, v11, v12, vcc')
    a('v_add_u32 v12, 96, v8')
    a('v_sub_u32 v13, 800, v8')
    a('v_cndmask_b32 v12, v12, v13, vcc')
    a('v_mov_b32 v13, 1.0')
    a('v_mov_b32 v14, -1.0')
    a('v_cndmask_b32 v20, v13, v14, vcc')
    a('s_mov_b64 s[56:57], vcc')
    def wload(kk):
        a(f's_lshl_b32 s58, s3, 8')
        a(f's_add_u32 s58, s58, s2')
        if kk: a('s_add_u32 s58, s58, 128')
        a('s_sub_u32 s59, 2048, s58')
        a('s_and_b32 s59, s59, 2047')
        a('s_mul_i32 s58, s58, 450')
        a('s_mul_i32 s59, s59, 450')
        a('v_mov_b32 v13, s58')
        a('v_mov_b32 v14, s59')
        a('v_cndmask_b32 v15, v13, v14, s[56:57]')
        a('v_add_u32 v16, v15, v11')
        a('v_add_u32 v17, v15, v12')
        a('v_add_u32 v13, 448, v13')
        a('v_cmp_eq_u32 vcc, 0, v0')
        a('v_cndmask_b32 v18, v10, v14, vcc')
        a('v_cmp_eq_u32 vcc, 48, v0')
        a('v_cndmask_b32 v18, v18, v13, vcc')
        for arr, S_ in ((0, 8), (1, 12)):
            b = WW + 18 * kk + 8 * arr
            a(f'buffer_load_short_d16_hi v{b+0}, v8, s[{S_}:{S_+3}], s58 offen')
            a(f'buffer_load_short_d16_hi v{b+1}, v8, s[{S_}:{S_+3}], s58 offen offset:32')
            a(f'buffer_load_short_d16_hi v{b+2}, v16, s[{S_}:{S_+3}], 0 offen')
            a(f'buffer_load_short_d16_hi v{b+3}, v17, s[{S_}:{S_+3}], 0 offen')
            for i in range(4):
                a(f'buffer_load_short_d16_hi v{b+4+i}, v9, s[{S_}:{S_+3}], s59 offen offset:{32*(3-i)}')
            a(f'buffer_load_short_d16_hi v{WW+18*kk+16+arr}, v18, s[{S_}:{S_+3}], 0 offen')
    a('v_lshlrev_b32 v13, 7, v2')
    a('v_add_u32 v13, s2, v13')
    a('v_cvt_f32_u32 v13, v13')
    a('v_mul_f32 v13, 0x3a000000, v13')
    a('v_lshlrev_b32 v14, 2, v3')
    a('v_cvt_f32_u32 v14, v14')
    a('v_mul_f32 v15, v13, v14')
    a('v_mul_f32 v16, 0x41400000, v13')
    for ks in range(2):
        for j in range(4):
            a('v_sin_f32 v17, v15')
            a('v_cos_f32 v18, v15')
            a('v_add_f32 v15, v15, v13')
            a('v_mul_f32 v19, s20, v17')
            a('v_mul_f32 v21, s20, v18')
            a(f'v_cvt_pk_bf16_f32 v{M2+4*ks+j}, v18, v19')
            a(f'v_cvt_pk_bf16_f32 v{M2+8+4*ks+j}, -v17, v21')
        if ks == 0: a('v_add_f32 v15, v15, v16')
    wload(0)
    a('v_lshlrev_b32 v13, 9, v3')
    a('v_add_u32 v13, s2, v13')
    a('v_mul_u32_u24 v13, v13, v2')
    a('v_cvt_f32_u32 v13, v13')
    a('v_mul_f32 v13, 0x3a000000, v13')
    a('v_cvt_f32_u32 v14, v2')
    a('v_mul_f32 v14, 0x3d800000, v14')
    for j in range(4):
        a(f'v_sin_f32 v{22+j}, v13')
        a(f'v_cos_f32 v{26+j}, v13')
        if j < 3: a('v_add_f32 v13, v13, v14')
    a(f'v_cvt_pk_bf16_f32 v{M2I+0}, -v22, -v23')
    a(f'v_cvt_pk_bf16_f32 v{M2I+1}, -v24, -v25')
    a(f'v_cvt_pk_bf16_f32 v{M2I+2}, v26, v27')
    a(f'v_cvt_pk_bf16_f32 v{M2I+3}, v28, v29')
    a(f'v_cvt_pk_bf16_f32 v{M2I+4}, v22, v23')
    a(f'v_cvt_pk_bf16_f32 v{M2I+5}, v24, v25')
    a('v_lshl_add_u32 v22, v3, 6, v2')
    a('v_mul_u32_u24 v22, 144, v22')
    a('s_lshl_b32 s24, s3, 4')
    a(f's_add_u32 s24, s24, {X1}')
    a('v_add_u32 v22, s24, v22')
    a('v_mul_u32_u24 v23, 144, v2')
    a('v_lshl_add_u32 v23, v3, 4, v23')
    a(f's_mul_i32 s24, s3, {32*144}')
    a(f's_add_u32 s24, s24, {X1}')
    a('v_add_u32 v23, s24, v23')
    a('v_mul_u32_u24 v24, 1040, v2')
    a('v_lshl_add_u32 v24, v3, 4, v24')
    a('s_lshl_b32 s24, s3, 7')
    a(f's_add_u32 s24, s24, {X2}')
    a('v_add_u32 v24, s24, v24')
    a('v_lshlrev_b32 v25, 6, v2')
    a('v_lshl_add_u32 v25, v3, 4, v25')
    a('s_mul_i32 s24, s3, 4160')
    a(f's_add_u32 s24, s24, {X2}')
    a('v_add_u32 v25, s24, v25')
    a('s_lshl_b32 s24, s3, 9')
    a('v_lshl_add_u32 v26, v2, 5, s24')
    a('v_lshrrev_b32 v27, 2, v2')
    a('v_mul_u32_u24 v27, 448, v27')
    a('v_and_b32 v28, 3, v2')
    a('v_lshl_add_u32 v27, v28, 4, v27')
    a('s_lshl_b32 s24, s3, 6')
    a('s_sub_u32 s25, s24, 64')
    a('s_cmp_eq_u32 s3, 0')
    a('s_cselect_b32 s25, 384, s25')
    a('v_and_b32 v28, 1, v2')
    a('v_cmp_eq_u32 vcc, 1, v28')
    a('v_mov_b32 v28, s24')
    a('v_mov_b32 v29, s25')
    a('v_cndmask_b32 v28, v28, v29, vcc')
    a('v_add_u32 v27, v27, v28')
    a(f'v_mul_u32_u24 v28, {4*114688}, v3')
    a('s_lshr_b32 s24, s2, 1')
    a('s_and_b32 s24, s24, 31')
    a('s_and_b32 s25, s2, 1')
    a('s_lshl_b32 s25, s25, 5')
    a('s_add_u32 s24, s24, s25')
    a('s_mul_i32 s24, s24, 1792')
    a('s_add_u32 s24, s24, s22')
    a(f's_add_u32 s24, s24, {WS_TP:#x}')
    a('v_add3_u32 v27, v27, v28, s24')
    a('s_mov_b32 s60, 0')
    a('s_mov_b32 s61, 114688')
    a(f's_mov_b32 s62, {2*114688}')
    a(f's_mov_b32 s63, {3*114688}')
    a('s_waitcnt vmcnt(62)')
    a('s_barrier')
    for q in range(2): a(f'ds_read_b128 v[{FA+4*q}:{FA+4*q+3}], v1 offset:{TB_FA+1024*q}')
    for q in range(2): a(f'ds_read_b128 v[{TWF+4*q}:{TWF+4*q+3}], v26 offset:{TB_TWF+16*q}')
    for q in range(6): a(f'ds_read_b128 v[{FB+4*q}:{FB+4*q+3}], v1 offset:{TB_FB+1024*q}')
    for q in range(4): a(f'ds_read_b128 v[{TWI+4*q}:{TWI+4*q+3}], v1 offset:{TB_TWI+1024*q}')
    for d2l in range(4):
        a(f's_waitcnt vmcnt({30 + 8*(3-d2l)})')
        for c in range(2):
            d = DD + 8 * d2l + 4 * c
            a(f'v_mfma_f32_16x16x32_bf16 v[{d}:{d+3}], v[{UA+8*d2l}:{UA+8*d2l+3}], v[{M2+8*c}:{M2+8*c+3}], 0')
        for c in range(2):
            d = DD + 8 * d2l + 4 * c
            a(f'v_mfma_f32_16x16x32_bf16 v[{d}:{d+3}], v[{UA+8*d2l+4}:{UA+8*d2l+7}], v[{M2+8*c+4}:{M2+8*c+7}], v[{d}:{d+3}]')
    stamp(a, 1, 1, 28, stamps, tmp_v=TV)
    wload(1)
    a(f's_waitcnt vmcnt({40 + nst})')
    VA = UA
    for d2l in range(4):
        d = DD + 8 * d2l
        for p in range(2):
            a(f'v_pk_fma_f32 v[{d+2*p}:{d+2*p+1}], v[{d+2*p}:{d+2*p+1}], v[{CA+4*d2l+2*p}:{CA+4*d2l+2*p+1}], v[{SA+4*d2l+2*p}:{SA+4*d2l+2*p+1}]')
            a(f'v_pk_mul_f32 v[{d+4+2*p}:{d+5+2*p}], v[{d+4+2*p}:{d+5+2*p}], v[{CA+4*d2l+2*p}:{CA+4*d2l+2*p+1}]')
        for p in range(4):
            a(f'v_cvt_pk_bf16_f32 v{VA+4*d2l+p}, v{d+2*p}, v{d+2*p+1}')
    a('s_waitcnt lgkmcnt(10)')
    for d2l in range(4):
        d = DD + 8 * d2l
        a(f'v_mfma_f32_16x16x32_bf16 v[{d}:{d+3}], v[{VA+4*d2l}:{VA+4*d2l+3}], v[{FA+2}:{FA+5}], 0')
        a(f'v_mfma_f32_16x16x32_bf16 v[{d+4}:{d+7}], v[{VA+4*d2l}:{VA+4*d2l+3}], v[{FA}:{FA+3}], 0')
    E = 80
    for d2l in range(4):
        d = DD + 8 * d2l; e = E + 8 * d2l; tw = f'v[{TWF+2*d2l}:{TWF+2*d2l+1}]'
        for p in range(2):
            re = f'v[{d+2*p}:{d+2*p+1}]'; im = f'v[{d+4+2*p}:{d+5+2*p}]'
            ore = f'v[{e+2*p}:{e+2*p+1}]'; oim = f'v[{e+4+2*p}:{e+5+2*p}]'
            a(f'v_pk_mul_f32 {ore}, {im}, {tw} op_sel:[0,1] op_sel_hi:[1,1]')
            a(f'v_pk_mul_f32 {oim}, {re}, {tw} op_sel:[0,1] op_sel_hi:[1,1]')
            a(f'v_pk_fma_f32 {ore}, {re}, {tw}, {ore} op_sel_hi:[1,0,1]')
            a(f'v_pk_fma_f32 {oim}, {im}, {tw}, {oim} op_sel_hi:[1,0,1] neg_lo:[0,0,1] neg_hi:[0,0,1]')
    P = 48
    for i in range(4):
        a(f'v_cvt_pk_bf16_f32 v{P+4*i+0}, v{E+i}, v{E+8+i}')
        a(f'v_cvt_pk_bf16_f32 v{P+4*i+1}, v{E+16+i}, v{E+24+i}')
        a(f'v_cvt_pk_bf16_f32 v{P+4*i+2}, v{E+4+i}, v{E+12+i}')
        a(f'v_cvt_pk_bf16_f32 v{P+4*i+3}, v{E+20+i}, v{E+28+i}')
        a(f'ds_write_b128 v22, v[{P+4*i}:{P+4*i+3}] offset:{2304*i}')
    a('s_waitcnt lgkmcnt(0)')
    a('s_barrier')
    stamp(a, 1, 2, 28, stamps, tmp_v=TV)
    BX = 32
    for kk in range(2):
        for ks in range(2):
            b = BX + 8 * kk + 4 * ks
            a(f'ds_read_b128 v[{b}:{b+3}], v23 offset:{2304*kk+64*ks}')
    a(f's_waitcnt vmcnt({nst})')
    a('v_mov_b32 v13, 1.0')
    a('v_mov_b32 v14, 0.5')
    a('v_mov_b32 v15, 0')
    a('v_cmp_eq_u32 vcc, 0, v0')
    a('v_cndmask_b32 v16, v13, v14, vcc')
    a('v_cndmask_b32 v17, v15, v14, vcc')
    a('v_cmp_eq_u32 vcc, 48, v0')
    a('v_cndmask_b32 v18, v13, v14, vcc')
    a('v_cndmask_b32 v19, v15, v14, vcc')
    a('v_mul_f32 v21, v18, v20')
    for kk in range(2):
        wr = WW + 18 * kk; wi = wr + 8; pr = wr + 16; pi = wr + 17
        a(f'v_mul_f32 v{wr}, v{wr}, v16')
        a(f'v_mul_f32 v{wi}, v{wi}, v16')
        a(f'v_mul_f32 v{wr+2}, v{wr+2}, v18')
        a(f'v_mul_f32 v{wi+2}, v{wi+2}, v21')
        a(f'v_mul_f32 v{wi+3}, v{wi+3}, v20')
        a(f'v_fmac_f32 v{wr}, v{pr}, v17')
        a(f'v_fma_f32 v{wi}, -v{pi}, v17, v{wi}')
        a(f'v_fmac_f32 v{wr+2}, v{pr}, v19')
        a(f'v_fmac_f32 v{wi+2}, v{pi}, v19')
    for kk in range(2):
        a(f's_waitcnt lgkmcnt({2*(1-kk)})')
        for ks in range(2):
            for t in range(2):
                for c in range(2):
                    d = DD + 16 * kk + 8 * t + 4 * c
                    f = FB + 6 * (2 * t + ks) + (2 if c == 0 else 0)
                    b = BX + 8 * kk + 4 * ks
                    cc = '0' if ks == 0 else f'v[{d}:{d+3}]'
                    a(f'v_mfma_f32_16x16x32_bf16 v[{d}:{d+3}], v[{f}:{f+3}], v[{b}:{b+3}], {cc}')
    YA = 48
    for kk in range(2):
        for t in range(2):
            d = DD + 16 * kk + 8 * t; e = E + 16 * kk + 8 * t
            wr = WW + 18 * kk + 4 * t; wi = wr + 8
            for p in range(2):
                xr = f'v[{d+2*p}:{d+2*p+1}]'; xi = f'v[{d+4+2*p}:{d+5+2*p}]'
                Wr = f'v[{wr+2*p}:{wr+2*p+1}]'; Wi = f'v[{wi+2*p}:{wi+2*p+1}]'
                ore = f'v[{e+2*p}:{e+2*p+1}]'; oim = f'v[{e+4+2*p}:{e+5+2*p}]'
                a(f'v_pk_mul_f32 {ore}, {xi}, {Wi}')
                a(f'v_pk_mul_f32 {oim}, {xr}, {Wi}')
                if t == 0:
                    a(f'v_pk_fma_f32 {ore}, {xr}, {Wr}, {ore} neg_lo:[0,0,1] neg_hi:[0,0,1]')
                    a(f'v_pk_fma_f32 {oim}, {xi}, {Wr}, {oim} neg_lo:[1,0,1] neg_hi:[1,0,1]')
                else:
                    a(f'v_pk_fma_f32 {ore}, {xr}, {Wr}, {ore}')
                    a(f'v_pk_fma_f32 {oim}, {xi}, {Wr}, {oim} neg_lo:[1,0,0] neg_hi:[1,0,0]')
            for p in range(4):
                a(f'v_cvt_pk_bf16_f32 v{YA+8*kk+4*t+p}, v{e+2*p}, v{e+2*p+1}')
    for kk in range(2):
        for ks in range(2):
            for t in range(2):
                for c in range(2):
                    d = DD + 16 * kk + 8 * t + 4 * c
                    f = FB + 6 * (2 * t + ks) + (2 if c == 0 else 0)
                    y = YA + 8 * kk + 4 * ks
                    cc = '0' if ks == 0 else f'v[{d}:{d+3}]'
                    a(f'v_mfma_f32_16x16x32_bf16 v[{d}:{d+3}], v[{y}:{y+3}], v[{f}:{f+3}], {cc}')
    P2 = 32
    for kk in range(2):
        for t in range(2):
            d = DD + 16 * kk + 8 * t; e = E + 16 * kk + 8 * t
            for p in range(2):
                re = f'v[{d+2*p}:{d+2*p+1}]'; im = f'v[{d+4+2*p}:{d+5+2*p}]'
                c_ = f'v[{TWI+8*t+2*p}:{TWI+8*t+2*p+1}]'; s_ = f'v[{TWI+8*t+4+2*p}:{TWI+8*t+5+2*p}]'
                ore = f'v[{e+2*p}:{e+2*p+1}]'; oim = f'v[{e+4+2*p}:{e+5+2*p}]'
                a(f'v_pk_mul_f32 {ore}, {im}, {s_}')
                a(f'v_pk_mul_f32 {oim}, {re}, {s_}')
                a(f'v_pk_fma_f32 {ore}, {re}, {c_}, {ore}')
                a(f'v_pk_fma_f32 {oim}, {im}, {c_}, {oim} neg_lo:[0,0,1] neg_hi:[0,0,1]')
            q = P2 + 8 * kk + 4 * t
            for p in range(4):
                a(f'v_cvt_pk_bf16_f32 v{q+p}, v{e+2*p}, v{e+2*p+1}')
            a(f'ds_write_b128 v24, v[{q}:{q+3}] offset:{16640*t+64*kk}')
    a('s_waitcnt lgkmcnt(0)')
    a('s_barrier')
    stamp(a, 1, 3, 28, stamps, tmp_v=TV)
    ZA = 48
    for d2l in range(4):
        a(f'ds_read_b128 v[{ZA+4*d2l}:{ZA+4*d2l+3}], v25 offset:{1040*d2l}')
    for d2l in range(4):
        d = DD + 8 * d2l
        a(f's_waitcnt lgkmcnt({3-d2l})')
        a(f'v_mfma_f32_16x16x32_bf16 v[{d}:{d+3}], v[{ZA+4*d2l}:{ZA+4*d2l+3}], v[{FA+2}:{FA+5}], 0')
        a(f'v_mfma_f32_16x16x32_bf16 v[{d+4}:{d+7}], v[{ZA+4*d2l}:{ZA+4*d2l+3}], v[{FA}:{FA+3}], 0')
    ZB = 32
    for d2l in range(4):
        d = DD + 8 * d2l
        for p in range(4):
            a(f'v_cvt_pk_bf16_f32 v{ZB+4*d2l+p}, v{d+2*p}, v{d+2*p+1}')
    for d2l in range(4):
        e = E + 8 * d2l
        a(f'v_mfma_f32_16x16x32_bf16 v[{e}:{e+3}], v[{M2I+2}:{M2I+5}], v[{ZB+4*d2l}:{ZB+4*d2l+3}], 0')
        a(f'v_mfma_f32_16x16x32_bf16 v[{e+4}:{e+7}], v[{M2I}:{M2I+3}], v[{ZB+4*d2l}:{ZB+4*d2l+3}], 0')
    for d2l in range(4):
        e = E + 8 * d2l
        gp = GA + (d2l & ~1)
        sel = 'op_sel_hi:[1,0]' if d2l % 2 == 0 else 'op_sel:[0,1] op_sel_hi:[1,1]'
        for p in range(4):
            a(f'v_pk_mul_f32 v[{e+2*p}:{e+2*p+1}], v[{e+2*p}:{e+2*p+1}], v[{gp}:{gp+1}] {sel}')
    O = 48
    for i in range(4):
        for d2l in range(4):
            a(f'v_cvt_pk_bf16_f32 v{O+4*i+d2l}, v{E+8*d2l+i}, v{E+8*d2l+4+i}')
    a('s_and_b32 s24, s2, 63')
    a('s_cmp_eq_u32 s24, 0')
    a('s_cbranch_scc1 K1_SHORT')
    for i in range(4):
        a(f'buffer_store_dwordx4 v[{O+4*i}:{O+4*i+3}], v27, s[28:31], s{60+i} offen')
    if stamps:
        a('s_waitcnt vmcnt(0)')
        stamp(a, 1, 4, 28, stamps, tmp_v=TV)
    a('s_endpgm')
    a.label('K1_SHORT')
    a('s_lshr_b32 s24, s2, 5')
    a('v_add_u32 v27, s24, v27')
    for i in range(4):
        for d2l in range(4):
            a(f'buffer_store_short v{O+4*i+d2l}, v27, s[28:31], s{60+i} offen offset:{4*d2l}')
    if stamps:
        a('s_waitcnt vmcnt(0)')
        stamp(a, 1, 4, 28, stamps, tmp_v=TV)
    a('s_endpgm')
    a.label('K1_PREP')
    a('s_waitcnt lgkmcnt(0)')
    srd(a, 28, 16, WS_SIZE)
    stamp(a, 1, 0, 28, stamps, tmp_v=TV)
    a('s_lshl_b32 s18, s3, 12')
    a('s_mov_b32 m0, s18')
    a('v_and_b32 v4, 3, v0')
    a('v_lshrrev_b32 v5, 2, v2')
    a('v_and_b32 v6, 1, v3')
    a('v_lshrrev_b32 v7, 5, v0')
    a(f's_cmp_ge_u32 s2, {K1_NF + K1_NW}')
    a('s_cbranch_scc1 K1_WD')
    a(f's_sub_u32 s19, s2, {K1_NF}')
    a('s_cmp_ge_u32 s19, 56')
    a('s_cselect_b32 s20, 1, 0')
    a('s_cselect_b32 s8, s38, s36')
    a('s_cselect_b32 s9, s39, s37')
    a(f's_mov_b32 s10, {NB_WG:#x}')
    a('s_mov_b32 s11, 0x00020000')
    a('s_mul_i32 s21, s20, 56')
    a('s_sub_u32 s19, s19, s21')
    a('s_mul_i32 s22, s19, 58')
    a('s_add_u32 s22, s22, s20')
    a('s_lshl_b32 s22, s22, 10')
    a(f's_add_u32 s22, s22, {WS_WF:#x}')
    a('s_cmp_eq_u32 s3, 7')
    a('s_cbranch_scc1 K1_WF_FIN')
    a('v_lshrrev_b32 v8, 2, v0')
    a('v_mul_u32_u24 v8, 3584, v8')
    a('v_lshl_add_u32 v8, v4, 4, v8')
    a(f's_mul_i32 s23, s3, {64*3584}')
    a('s_lshl_b32 s24, s19, 6')
    a('s_add_u32 s23, s23, s24')
    for i in range(4):
        a('buffer_load_dwordx4 v8, s[8:11], s23 offen lds')
        if i < 3:
            a('s_add_u32 m0, m0, 1024')
            a(f's_add_u32 s23, s23, {16*3584}')
    a('s_lshl_b32 s24, s3, 8')
    a('v_lshl_add_u32 v9, v7, 5, s24')
    a(f's_mov_b32 s25, {WS_MOD + 3*1792}')
    CB, SBF = 32, 64
    for i in range(4):
        for q in range(2):
            a(f'buffer_load_dwordx4 v[{SBF+8*i+4*q}:{SBF+8*i+4*q+3}], v9, s[28:31], s25 offen offset:{64*i+16*q}')
            a(f'buffer_load_dwordx4 v[{CB+8*i+4*q}:{CB+8*i+4*q+3}], v9, s[28:31], s25 offen offset:{1792+64*i+16*q}')
    a('v_lshl_add_u32 v10, v7, 3, v5')
    a('v_lshlrev_b32 v10, 6, v10')
    a('v_lshl_add_u32 v10, v6, 5, v10')
    a('v_lshl_add_u32 v10, v4, 3, v10')
    a('v_add_u32 v10, s18, v10')
    for q in range(4): a(f'v_mov_b32 v{12+q}, 0x3f803f80')
    a('s_lshl_b32 s24, s3, 13')
    a('s_add_u32 s24, s24, s22')
    a('s_add_u32 s25, s24, 4096')
    a('s_waitcnt vmcnt(16)')
    RW = 96
    for i in range(4):
        for q in range(2):
            a(f'ds_read_b64_tr_b16 v[{RW+4*i+2*q}:{RW+4*i+2*q+1}], v10 offset:{1024*i+256*q}')
    a('s_waitcnt vmcnt(0)')
    SBP = 16
    for i in range(4):
        for p in range(4):
            a(f'v_cvt_pk_bf16_f32 v{SBP+4*i+p}, v{SBF+8*i+2*p}, v{SBF+8*i+2*p+1}')
    AB, AC, SC = 112, 128, 144
    for i in range(4):
        a(f's_waitcnt lgkmcnt({2*(3-i)})')
        cc = '0' if i == 0 else f'v[{AB}:{AB+15}]'
        a(f'v_mfma_f32_32x32x16_bf16 v[{AB}:{AB+15}], v[{SBP+4*i}:{SBP+4*i+3}], v[{RW+4*i}:{RW+4*i+3}], {cc}')
        for p in range(4):
            u = SBF + 8 * i + 2 * p
            a(f'v_lshlrev_b32 v{u}, 16, v{RW+4*i+p}')
            a(f'v_and_b32 v{u+1}, 0xffff0000, v{RW+4*i+p}')
            a(f'v_pk_mul_f32 v[{u}:{u+1}], v[{u}:{u+1}], v[{CB+8*i+2*p}:{CB+8*i+2*p+1}]')
            a(f'v_cvt_pk_bf16_f32 v{SC+4*i+p}, v{u}, v{u+1}')
        cc = '0' if i == 0 else f'v[{AC}:{AC+15}]'
        a(f'v_mfma_f32_32x32x16_bf16 v[{AC}:{AC+15}], v[12:15], v[{SC+4*i}:{SC+4*i+3}], {cc}')
        so = 's24' if i < 2 else 's25'
        a(f'buffer_store_dwordx4 v[{SC+4*i}:{SC+4*i+3}], v1, s[28:31], {so} offen offset:{2048*(i%2)}')
    RED = 32768
    a('s_lshl_b32 s24, s3, 9')
    a('v_lshl_add_u32 v11, v0, 2, s24')
    a(f'ds_write_b32 v11, v{AC} offset:{RED}')
    a(f'ds_write_b32 v11, v{AB} offset:{RED+256}')
    a('s_waitcnt lgkmcnt(0)')
    a('s_barrier')
    a('s_endpgm')
    a.label('K1_WF_FIN')
    a('v_lshlrev_b32 v11, 2, v0')
    a('s_barrier')
    for w in range(7):
        a(f'ds_read_b32 v{16+2*w}, v11 offset:{RED+512*w}')
        a(f'ds_read_b32 v{17+2*w}, v11 offset:{RED+512*w+256}')
    a('s_waitcnt lgkmcnt(0)')
    for w in range(1, 7):
        a(f'v_pk_add_f32 v[16:17], v[16:17], v[{16+2*w}:{17+2*w}]')
    a('v_cvt_pk_bf16_f32 v20, v16, v17')
    a('v_lshlrev_b32 v22, 16, v20')
    a('v_and_b32 v23, 0xffff0000, v20')
    a('v_pk_add_f32 v[16:17], v[16:17], v[22:23] neg_lo:[0,1] neg_hi:[0,1]')
    a('v_cvt_pk_bf16_f32 v21, v16, v17')
    a('v_lshlrev_b32 v24, 16, v21')
    a('v_and_b32 v25, 0xffff0000, v21')
    a('v_pk_add_f32 v[16:17], v[16:17], v[24:25] neg_lo:[0,1] neg_hi:[0,1]')
    a('v_cvt_pk_bf16_f32 v28, v22, v24')
    a('v_cvt_pk_bf16_f32 v29, v16, v23')
    a('v_cvt_pk_bf16_f32 v30, v25, v17')
    a('v_mov_b32 v31, 0')
    a('v_cmp_gt_u32 vcc, 32, v0')
    for r in (28, 29, 30): a(f'v_cndmask_b32 v{r}, v31, v{r}, vcc')
    a(f's_add_u32 s22, s22, {28*2048}')
    a('buffer_store_dwordx4 v[28:31], v1, s[28:31], s22 offen')
    if stamps:
        a('s_waitcnt vmcnt(0)')
        stamp(a, 1, 4, 28, stamps, tmp_v=TV)
    a('s_endpgm')
    a.label('K1_WD')
    a('s_cmp_eq_u32 s3, 7')
    a('s_cbranch_scc1 K1_END')
    srd(a, 8, 40, NB_WG)
    a(f's_sub_u32 s19, s2, {K1_NF + K1_NW}')
    a('s_mul_i32 s20, s19, 37')
    a('s_lshr_b32 s20, s20, 8')
    a('s_mul_i32 s21, s20, 7')
    a('s_sub_u32 s21, s19, s21')
    a('s_mul_i32 s22, s20, 7')
    a('s_add_u32 s22, s22, s3')
    a(f's_mul_i32 s23, s22, {32*896}')
    a('s_lshl_b32 s24, s21, 7')
    a('s_add_u32 s23, s23, s24')
    a('v_lshrrev_b32 v8, 3, v0')
    a('v_mul_u32_u24 v8, 896, v8')
    a('v_and_b32 v9, 7, v0')
    a('v_lshl_add_u32 v8, v9, 4, v8')
    for i in range(4):
        a('buffer_load_dwordx4 v8, s[8:11], s23 offen lds')
        if i < 3:
            a('s_add_u32 m0, m0, 1024')
            a(f's_add_u32 s23, s23, {8*896}')
    a('v_lshl_add_u32 v10, v7, 2, v5')
    a('v_lshlrev_b32 v10, 7, v10')
    a('v_lshl_add_u32 v10, v6, 5, v10')
    a('v_lshl_add_u32 v10, v4, 3, v10')
    a('v_add_u32 v10, s18, v10')
    a('s_mul_i32 s24, s21, 112')
    a('s_lshl_b32 s25, s22, 1')
    a('s_add_u32 s24, s24, s25')
    a('s_lshl_b32 s24, s24, 11')
    a(f's_add_u32 s24, s24, {WS_WDF:#x}')
    a('s_waitcnt vmcnt(0)')
    for ks2 in range(2):
        for ct in range(2):
            for q in range(2):
                b = 16 + 8 * ks2 + 4 * ct + 2 * q
                a(f'ds_read_b64_tr_b16 v[{b}:{b+1}], v10 offset:{2048*ks2+1024*q+64*ct}')
    for z in range(4):
        a(f's_waitcnt lgkmcnt({2*(3-z)})')
        a(f'buffer_store_dwordx4 v[{16+4*z}:{19+4*z}], v1, s[28:31], s24 offen offset:{1024*z}')
    if stamps:
        a('s_waitcnt vmcnt(0)')
        stamp(a, 1, 4, 28, stamps, tmp_v=TV)
    a.label('K1_END')
    a('s_endpgm')
    return a
```

```python
from asmlib import *
from layout import *
from k0 import srd, rb16, stamp

K2_N = 224
AT_BYTES = 57 * 2048
R2O = AT_BYTES
RT = R2O + 512
K2_LDS = RT + 16384
K3_LDS = 49152
SPILL_WG = 256 * 48

class VM:
    def __init__(self, a): self.a = a; self.tags = []
    def op(self, text, tag=None): self.a(text); self.tags.append(tag)
    def wait(self, *tags):
        last = max(i for i, t in enumerate(self.tags) if t in tags)
        n = len(self.tags) - 1 - last
        self.a(f's_waitcnt vmcnt({min(n, 63)})')

def ids(a):
    a('s_and_b32 s18, s2, 7')
    a('s_lshr_b32 s19, s2, 3')
    a('s_mul_i32 s20, s19, 37')
    a('s_lshr_b32 s20, s20, 8')
    a('s_mul_i32 s21, s20, 7')
    a('s_sub_u32 s21, s19, s21')
    a('s_lshr_b32 s22, s18, 1')
    a('s_lshl_b32 s22, s22, 2')
    a('s_add_u32 s20, s20, s22')
    a('s_and_b32 s22, s18, 1')
    a('s_mul_i32 s23, s22, 7')
    a('s_add_u32 s23, s23, s21')

def gen_k2(stamps=False):
    a = Asm(); vm = VM(a)
    TV = (60, 61, 62)
    def st(slot):
        if stamps:
            stamp(a, 2, slot, 8, True, tmp_v=TV); vm.tags.append('stamp')
    a.label('k2_kernel')
    a(f's_cmp_ge_u32 s2, {K2_N}')
    a('s_cbranch_scc1 K2_END')
    a('s_load_dwordx2 s[4:5], s[0:1], 88')
    a('v_lshrrev_b32 v1, 6, v0')
    a('v_and_b32 v0, 63, v0')
    a('v_readfirstlane_b32 s3, v1')
    a('v_lshlrev_b32 v1, 4, v0')
    a('v_and_b32 v2, 15, v0')
    a('v_lshrrev_b32 v3, 4, v0')
    a('s_getpc_b64 s[6:7]')
    a.label('K2_PC')
    a('s_add_u32 s6, s6, k2_tbl-K2_PC')
    a('s_addc_u32 s7, s7, 0')
    srd(a, 12, 6, 16384)
    a('s_lshl_b32 s16, s3, 12')
    a(f's_add_u32 s17, s16, {RT}')
    a('s_mov_b32 m0, s17')
    ids(a)
    for q in range(4):
        vm.op(f'buffer_load_dwordx4 v1, s[12:15], s16 offen offset:{1024*q} lds', 'R')
    a(f'v_mul_u32_u24 v4, {4*1792}, v3')
    a('v_lshl_add_u32 v4, v2, 2, v4')
    a('s_mul_i32 s24, s3, 448')
    a('s_mul_i32 s25, s20, 114688')
    a('s_add_u32 s24, s24, s25')
    a(f's_add_u32 s24, s24, {WS_TP:#x}')
    for ks in range(4):
        for j in range(4):
            a(f's_add_u32 s{32+4*ks+j}, s24, {(16*ks+j)*1792}')
    a('s_lshl_b32 s26, s20, 2')
    a('s_add_u32 s26, s26, s3')
    a('s_mul_i32 s26, s26, 28672')
    a(f's_add_u32 s26, s26, {WS_XF:#x}')
    a('s_lshl_b32 s27, s23, 2')
    a('s_add_u32 s27, s27, s3')
    a('s_mov_b32 s28, s27')
    a(f's_mul_i32 s27, s27, {58*1024}')
    a(f's_add_u32 s27, s27, {WS_WF:#x}')
    a('s_waitcnt lgkmcnt(0)')
    srd(a, 8, 4, WS_SIZE)
    st(0)
    def load_tile(t):
        out = []
        for n in range(4):
            out.append((f'buffer_load_dwordx4 a[{32*t+16+4*n}:{32*t+19+4*n}], v1, s[8:11], s26 offen offset:{1024*n}', f't{t}'))
        out.append(('s_add_u32 s26, s26, 4096', None))
        for ks in range(4):
            for j in range(4):
                out.append((f'buffer_load_dword a{32*t+4*ks+j}, v4, s[8:11], s{32+4*ks+j} offen offset:{64*t}', f't{t}'))
        return out
    def wreg(k): return 224 + 8 * k if k < 4 else 8 * (k - 4)
    def load_w(k):
        out = []
        for m in range(2):
            r = wreg(k) + 4 * m
            out.append((f'buffer_load_dwordx4 a[{r}:{r+3}], v1, s[8:11], s27 offen offset:{2048*(k%2)+1024*m}', f'w{k}'))
        if k % 2 == 1: out.append(('s_add_u32 s27, s27, 4096', None))
        return out
    def emit(lst):
        for text, tag in lst:
            if tag is None: a(text)
            else: vm.op(text, tag)
    emit(load_tile(0)); emit(load_tile(1))
    SEL = 8
    a('v_lshrrev_b32 v5, 2, v2')
    a('v_cmp_eq_u32 vcc, v5, v3')
    a('v_and_b32 v5, 1, v0')
    a('v_lshlrev_b32 v5, 4, v5')
    a('v_mov_b32 v6, 0x3f00')
    a('v_lshlrev_b32 v6, v5, v6')
    a('v_mov_b32 v7, 0')
    a('v_cndmask_b32 v6, v7, v6, vcc')
    a('v_and_b32 v5, 2, v0')
    a('v_cmp_eq_u32 vcc, 0, v5')
    a(f'v_cndmask_b32 v{SEL}, v7, v6, vcc')
    a(f'v_cndmask_b32 v{SEL+1}, v6, v7, vcc')
    a(f'v_mov_b32 v{SEL+2}, v{SEL}')
    a(f'v_mov_b32 v{SEL+3}, v{SEL+1}')
    for q in range(2):
        a(f'v_lshlrev_b32 v5, 2, v{SEL+q}')
        a('v_and_b32 v5, 0x80008000, v5')
        a(f'v_or_b32 v{SEL+4+q}, v5, v{SEL+q}')
    a('v_lshrrev_b32 v5, 1, v3')
    a('s_lshl_b32 s29, s3, 1')
    a('v_add_u32 v5, s29, v5')
    a(f'v_mul_u32_u24 v5, {7*2048}, v5')
    a('v_lshl_add_u32 v5, v2, 4, v5')
    a('v_and_b32 v6, 1, v3')
    a('v_lshl_add_u32 v14, v6, 13, v5')
    a('v_lshl_add_u32 v15, v6, 3, v5')
    a(f'v_add_u32 v15, {3*2048}, v15')
    a('v_and_b32 v5, 31, v0')
    a('v_lshlrev_b32 v20, 4, v5')
    a('v_lshrrev_b32 v6, 5, v0')
    a('v_lshl_add_u32 v16, v6, 11, v20')
    a('v_add_u32 v17, 0x10000, v16')
    a('s_lshl_b32 s29, s3, 9')
    a('v_add_u32 v18, s29, v16')
    a('v_add_u32 v19, 0x10000, v18')
    a(f'v_add_u32 v20, {56*2048}, v20')
    a('v_add_u32 v21, s29, v20')
    a('s_lshl_b32 s29, s3, 7')
    a('v_lshl_add_u32 v22, v5, 2, s29')
    a(f'v_add_u32 v22, {R2O}, v22')
    a(f'v_add_u32 v23, {RT}, v1')
    emit(load_tile(2))
    vm.wait('R')
    a('s_barrier')
    R1 = 64
    for q in range(16):
        a(f'ds_read_b128 v[{R1+4*q}:{R1+4*q+3}], v23 offset:{1024*q}')
    ACC = 128
    PK = 160
    units = []
    for p in range(3):
        for n in range(4):
            for tt in range(2): units.append((2 * p + tt, n))
    for n in range(4): units.append((6, n))
    side = {}
    def spread(lst, u0, u1):
        k = len(lst); m = u1 - u0
        for i, x in enumerate(lst): side.setdefault(u0 + i * m // k, []).append(x)
    spread(load_tile(3) + load_tile(4), 0, 8)
    spread(load_tile(5) + load_tile(6), 8, 13)
    spread(sum([load_w(k) for k in range(0, 12)], []), 13, 18)
    spread(sum([load_w(k) for k in range(12, 20)], []), 18, 24)
    spread(sum([load_w(k) for k in range(20, 28)], []), 25, 28)
    def post(ui):
        t, n = units[ui]
        e = ACC + 8 * (ui % 4); o = e + 4
        grp = (ui // 2) % 2 if t < 6 else ui % 2
        pk = PK + 8 * grp + (2 * (t % 2) if t < 6 else 0)
        T = 176 + 8 * (ui % 2)
        ops = []
        for q in range(2):
            ops.append(f'v_pk_add_f32 v[{T+2*q}:{T+2*q+1}], v[{e+2*q}:{e+2*q+1}], v[{o+2*q}:{o+2*q+1}]')
            ops.append(f'v_pk_add_f32 v[{T+4+2*q}:{T+5+2*q}], v[{e+2*q}:{e+2*q+1}], v[{o+2*q}:{o+2*q+1}] neg_lo:[0,1] neg_hi:[0,1]')
        for q in range(2):
            ops.append(f'v_cvt_pk_bf16_f32 v{pk+q}, v{T+2*q}, v{T+2*q+1}')
            ops.append(f'v_cvt_pk_bf16_f32 v{pk+4+q}, v{T+4+2*q}, v{T+5+2*q}')
        b = PK + 8 * grp
        if t < 6 and t % 2 == 1:
            p = t // 2
            ops.append(f'ds_write_b128 v14, v[{b}:{b+3}] offset:{2048*p+256*n}')
            ops.append(f'ds_write_b128 v14, v[{b+4}:{b+7}] offset:{2048*p+256*n+1024}')
        elif t == 6:
            ops.append(f'ds_write_b64 v15, v[{b}:{b+1}] offset:{256*n}')
            ops.append(f'ds_write_b64 v15, v[{b+4}:{b+5}] offset:{256*n+1024}')
        return ops
    LAG = 2
    for ui, (t, n) in enumerate(units):
        if ui in (0, 8, 16): vm.wait(f't{t}', f't{t+1}')
        if ui == 24: vm.wait('t6')
        if ui == 0:
            a('s_waitcnt lgkmcnt(0)')
            st(1)
        e = ACC + 8 * (ui % 4); o = e + 4
        X = f'a[{32*t+16+4*n}:{32*t+19+4*n}]'
        TA = lambda ks: f'a[{32*t+4*ks}:{32*t+4*ks+3}]'
        RR = lambda ks: f'v[{R1+16*n+4*ks}:{R1+16*n+4*ks+3}]'
        E = f'v[{e}:{e+3}]'; O = f'v[{o}:{o+3}]'
        mf = [f'v_mfma_f32_16x16x32_bf16 {E}, v[{SEL}:{SEL+3}], {X}, 0',
              f'v_mfma_f32_16x16x32_bf16 {O}, v[{SEL+2}:{SEL+5}], {X}, 0',
              f'v_mfma_f32_16x16x32_bf16 {E}, {TA(0)}, {RR(0)}, {E}',
              f'v_mfma_f32_16x16x32_bf16 {O}, {TA(2)}, {RR(2)}, {O}',
              f'v_mfma_f32_16x16x32_bf16 {E}, {TA(1)}, {RR(1)}, {E}',
              f'v_mfma_f32_16x16x32_bf16 {O}, {TA(3)}, {RR(3)}, {O}']
        fill = [(x, None) for x in (post(ui - LAG) if ui >= LAG else [])] + side.get(ui, [])
        k = len(fill)
        for i, m in enumerate(mf):
            a(m)
            emit(fill[i * k // 6:(i + 1) * k // 6])
    for ui in range(len(units) - LAG, len(units)):
        for x in post(ui): a(x)
    emit(load_w(28))
    a('s_waitcnt lgkmcnt(0)')
    a('s_barrier')
    st(2)
    G = 128
    BF = 64
    SF = 112
    SA = 24
    for q in range(4): a(f'v_mov_b32 v{SA+q}, 0')
    a('s_mov_b32 s30, 0x3f803f80')
    def rdB(k):
        out = []
        for rt in range(4):
            b = BF + 16 * (k % 3) + 4 * rt
            if k < 28:
                base, off = ('v16', 4096 * k) if k < 15 else ('v17', 4096 * k - 65536)
                if off < 0: base, off = 'v16', 4096 * k
            else: base, off = 'v20', 0
            out.append(f'ds_read_b128 v[{b}:{b+3}], {base} offset:{off+512*rt}')
        return out
    def rdS(k):
        out = []
        for z in range(2):
            kk = 2 * k + z
            b = SF + 8 * (k % 2) + 4 * z
            base, off = ('v18', 4096 * kk) if kk < 16 else ('v19', 4096 * kk - 65536)
            out.append(f'ds_read_b128 v[{b}:{b+3}], {base} offset:{off}')
        return out
    def dots(k):
        out = []
        for z in range(8):
            r = SF + 8 * (k % 2) + z
            out.append(f'v_dot2c_f32_bf16 v{SA+(z&1)}, s30, v{r}')
            out.append(f'v_dot2c_f32_bf16 v{SA+2+(z&1)}, v{r}, v{r}')
        return out
    inv = 0x3b124925
    def fin_stats():
        o = []
        o.append(f'v_add_f32 v{SA}, v{SA}, v{SA+1}')
        o.append(f'v_add_f32 v{SA+2}, v{SA+2}, v{SA+3}')
        o.append(f'v_mov_b32 v{SA+1}, v{SA}')
        o.append(f'v_mov_b32 v{SA+3}, v{SA+2}')
        o.append(f'v_permlane32_swap_b32 v{SA}, v{SA+1}')
        o.append(f'v_permlane32_swap_b32 v{SA+2}, v{SA+3}')
        o.append(f'v_add_f32 v{SA}, v{SA}, v{SA+1}')
        o.append(f'v_add_f32 v{SA+2}, v{SA+2}, v{SA+3}')
        o.append(f'v_mul_f32 v{SA}, {inv:#x}, v{SA}')
        o.append(f'v_mul_f32 v{SA+2}, {inv:#x}, v{SA+2}')
        o.append(f'v_fma_f32 v{SA+2}, -v{SA}, v{SA}, v{SA+2}')
        o.append(f'v_max_f32 v{SA+2}, 0, v{SA+2}')
        o.append(f'v_cvt_pk_bf16_f32 v28, -v{SA}, -v{SA}')
        o.append(f'v_cvt_pk_bf16_f32 v{SA+2}, v{SA+2}, v{SA+2}')
        o.append(f'v_lshlrev_b32 v{SA+2}, 16, v{SA+2}')
        o.append(f'v_add_f32 v{SA+2}, 0x3727c5ac, v{SA+2}')
        o.append(f'v_cvt_pk_bf16_f32 v{SA+2}, v{SA+2}, v{SA+2}')
        o.append(f'v_lshlrev_b32 v{SA+2}, 16, v{SA+2}')
        o.append(f'v_sqrt_f32 v{SA+2}, v{SA+2}')
        o.append(f'v_mov_b32 v31, 0')
        o.append(f'v_cvt_pk_bf16_f32 v30, v{SA+2}, v{SA+2}')
        o.append(f'v_cvt_pk_bf16_f32 v29, -v{SA}, v{SA+2}')
        o.append(f'v_lshlrev_b32 v{SA+2}, 16, v30')
        o.append(f'v_rcp_f32 v{SA+2}, v{SA+2}')
        o.append(f'ds_write_b128 v21, v[28:31]')
        o.append(f'v_mul_f32 v{SA+2}, v{SA+2}, v{SA+2}')
        o.append(f'ds_write_b32 v22, v{SA+2}')
        return o
    lq = []
    def lds(text, tag): a(text); lq.append(tag)
    def lwait(tag):
        last = max(i for i, t in enumerate(lq) if t == tag)
        a(f's_waitcnt lgkmcnt({min(len(lq) - 1 - last, 15)})')
    for x in rdB(0): lds(x, 'b0')
    for x in rdS(0): lds(x, 's0')
    for x in rdB(1): lds(x, 'b1')
    for k in range(29):
        vm.wait(f'w{k}')
        lwait(f'b{k}')
        fill = []
        if k + 2 <= 28: fill += [(x, f'b{k+2}') for x in rdB(k + 2)]
        if k + 1 < 14: fill += [(x, f's{k+1}') for x in rdS(k + 1)]
        if k < 14: fill += [('WAIT', f's{k}')] + [(x, None) for x in dots(k)]
        if k == 14: fill += [(x, 'st' if x.startswith('ds_') else None) for x in fin_stats()]
        if k == 16: fill += [('WAIT', 'st'), ('s_barrier', None)]
        nf = len(fill); i = 0
        for rt in range(4):
            for m in range(2):
                d = G + 32 * rt + 16 * m; w = wreg(k) + 4 * m; b = BF + 16 * (k % 3) + 4 * rt
                c = '0' if k == 0 else f'v[{d}:{d+15}]'
                a(f'v_mfma_f32_32x32x16_bf16 v[{d}:{d+15}], a[{w}:{w+3}], v[{b}:{b+3}], {c}')
                for text, tag in fill[i * nf // 8:(i + 1) * nf // 8]:
                    if text == 'WAIT': lwait(tag)
                    elif tag is None: a(text)
                    else: lds(text, tag)
                i += 1
    st(3)
    a('s_lshl_b32 s29, s21, 14')
    a('s_and_b32 s31, s3, 1')
    a('s_lshl_b32 s31, s31, 13')
    a('s_add_u32 s29, s29, s31')
    a('s_lshl_b32 s31, s22, 1')
    a('s_lshr_b32 s48, s3, 1')
    a('s_add_u32 s31, s31, s48')
    a('s_lshl_b32 s48, s31, 9')
    a('s_add_u32 s29, s29, s48')
    a('v_and_b32 v5, 31, v0')
    a('v_lshrrev_b32 v6, 5, v0')
    a('v_lshlrev_b32 v7, 4, v5')
    a('v_lshl_add_u32 v7, v6, 3, v7')
    a('v_add_u32 v7, s29, v7')
    for q in range(4): a(f'ds_read_b64 v[{32+2*q}:{33+2*q}], v7 offset:{2048*q}')
    a('s_lshl_b32 s48, s31, 7')
    a('v_lshl_add_u32 v7, v5, 2, s48')
    a(f'v_add_u32 v7, {R2O}, v7')
    a('ds_read_b32 v40, v7')
    a('s_lshl_b32 s29, s20, 2')
    a('s_mul_i32 s29, s29, 112')
    a('s_lshl_b32 s31, s28, 1')
    a('s_add_u32 s29, s29, s31')
    a('s_lshl_b32 s29, s29, 10')
    a(f's_add_u32 s29, s29, {WS_HF:#x}')
    for rt in range(4):
        g = G + 32 * rt; u = g + 16; o = 64 + 8 * rt
        for i in range(16): a(f'v_max_f32 v{g+i}, 0, v{g+i}')
        for i in range(8): a(f'v_pk_mul_f32 v[{g+2*i}:{g+2*i+1}], v[{g+2*i}:{g+2*i+1}], v[{u+2*i}:{u+2*i+1}]')
        for i in range(8): a(f'v_cvt_pk_bf16_f32 v{o+i}, v{g+2*i}, v{g+2*i+1}')
        a(f'buffer_store_dwordx4 v[{o}:{o+3}], v1, s[8:11], s29 offen')
        a(f'buffer_store_dwordx4 v[{o+4}:{o+7}], v1, s[8:11], s29 offen offset:1024')
        if rt < 3: a(f's_add_u32 s29, s29, {112*1024}')
    a(f's_mul_i32 s29, s2, {SPILL_WG}')
    a(f's_mul_i32 s31, s3, {64*48}')
    a('s_add_u32 s29, s29, s31')
    a(f's_add_u32 s29, s29, {WS_SPILL:#x}')
    a('s_waitcnt lgkmcnt(0)')
    a('buffer_store_dwordx4 v[32:35], v1, s[8:11], s29 offen')
    a('buffer_store_dwordx4 v[36:39], v1, s[8:11], s29 offen offset:1024')
    a('buffer_store_dword v40, v1, s[8:11], s29 offen offset:2048')
    if stamps:
        a('s_waitcnt vmcnt(0)')
        st(4)
    a.label('K2_END')
    a('s_endpgm')
    return a

def gen_k3(stamps=False):
    a = Asm(); vm = VM(a)
    TV = (60, 61, 62)
    def st(slot):
        if stamps:
            stamp(a, 3, slot, 8, True, tmp_v=TV); vm.tags.append('stamp')
    a.label('k3_kernel')
    a(f's_cmp_ge_u32 s2, {K2_N}')
    a('s_cbranch_scc1 K3_END')
    a('s_load_dwordx2 s[4:5], s[0:1], 88')
    a('s_load_dwordx2 s[6:7], s[0:1], 72')
    a('v_lshrrev_b32 v1, 6, v0')
    a('v_and_b32 v0, 63, v0')
    a('v_readfirstlane_b32 s3, v1')
    a('v_lshlrev_b32 v1, 4, v0')
    ids(a)
    a('s_mul_i32 s24, s21, 112')
    a('s_mul_i32 s25, s3, 28')
    a('s_add_u32 s24, s24, s25')
    a('s_lshl_b32 s24, s24, 11')
    a(f's_add_u32 s24, s24, {WS_WDF:#x}')
    a('s_and_b32 s26, s3, 1')
    a('s_lshl_b32 s26, s26, 10')
    a('v_add_u32 v2, s26, v1')
    a('v_xor_b32 v3, 0x400, v2')
    a('s_lshl_b32 s26, s20, 2')
    a('s_lshl_b32 s27, s22, 1')
    a('s_add_u32 s26, s26, s27')
    a('s_lshr_b32 s27, s3, 1')
    a('s_add_u32 s28, s26, s27')
    a('s_xor_b32 s29, s28, 1')
    a('s_mul_i32 s28, s28, 112')
    a('s_mul_i32 s29, s29, 112')
    a('s_add_u32 s28, s28, s25')
    a('s_add_u32 s29, s29, s25')
    a('s_lshl_b32 s28, s28, 10')
    a('s_lshl_b32 s29, s29, 10')
    a(f's_add_u32 s28, s28, {WS_HF:#x}')
    a(f's_add_u32 s29, s29, {WS_HF:#x}')
    a('s_waitcnt lgkmcnt(0)')
    srd(a, 8, 4, WS_SIZE)
    srd(a, 12, 6, NB_X)
    st(0)
    RING = 15
    def load(k):
        b = 16 * (k % RING)
        vm.op(f'buffer_load_dwordx4 a[{b}:{b+3}], v1, s[8:11], s28 offen offset:{1024*(k%4)}', f'k{k}')
        vm.op(f'buffer_load_dwordx4 a[{b+4}:{b+7}], v1, s[8:11], s29 offen offset:{1024*(k%4)}', f'k{k}')
        vm.op(f'buffer_load_dwordx4 a[{b+8}:{b+11}], v2, s[8:11], s24 offen offset:{2048*(k%2)}', f'k{k}')
        vm.op(f'buffer_load_dwordx4 a[{b+12}:{b+15}], v3, s[8:11], s24 offen offset:{2048*(k%2)}', f'k{k}')
        if k % 2 == 1: a('s_add_u32 s24, s24, 4096')
        if k % 4 == 3:
            a('s_add_u32 s28, s28, 4096'); a('s_add_u32 s29, s29, 4096')
    for k in range(RING): load(k)
    G = 64
    for k in range(28):
        vm.wait(f'k{k}')
        if k == 0: st(1)
        b = 16 * (k % RING)
        for r in range(2):
            for c in range(2):
                d = G + 16 * (2 * r + c)
                cc = '0' if k == 0 else f'v[{d}:{d+15}]'
                a(f'v_mfma_f32_32x32x16_bf16 v[{d}:{d+15}], a[{b+8+4*c}:{b+11+4*c}], a[{b+4*r}:{b+4*r+3}], {cc}')
        if k + RING < 28: load(k + RING)
        if k == 13:
            a(f's_mul_i32 s30, s2, {SPILL_WG}')
            a(f's_mul_i32 s31, s3, {64*48}')
            a('s_add_u32 s30, s30, s31')
            a(f's_add_u32 s30, s30, {WS_SPILL:#x}')
            vm.op('buffer_load_dwordx4 v[32:35], v1, s[8:11], s30 offen', 'ep')
            vm.op('buffer_load_dwordx4 v[36:39], v1, s[8:11], s30 offen offset:1024', 'ep')
            vm.op('buffer_load_dword v40, v1, s[8:11], s30 offen offset:2048', 'ep')
            a('v_lshrrev_b32 v4, 5, v0')
            a('v_lshlrev_b32 v4, 4, v4')
            a('s_lshl_b32 s30, s21, 8')
            a('s_and_b32 s31, s3, 1')
            a('s_lshl_b32 s31, s31, 7')
            a('s_add_u32 s30, s30, s31')
            a(f's_add_u32 s30, s30, {WS_MOD + 5*1792}')
            for q in range(4):
                vm.op(f'buffer_load_dwordx4 v[{44+4*q}:{47+4*q}], v4, s[8:11], s30 offen offset:{32*q}', 'ep')
    st(2)
    for lam in range(1, 4):
        a(f's_xor_b32 s30, s3, {lam}')
        a('s_mul_i32 s30, s30, 12288')
        a(f'v_add_u32 v{4+lam}, s30, v1')
    a('s_mul_i32 s30, s3, 12288')
    a('v_add_u32 v8, s30, v1')
    for lam in range(1, 4):
        for q in range(4):
            d = G + 16 * lam + 4 * q
            a(f'ds_write_b128 v{4+lam}, v[{d}:{d+3}] offset:{4096*(lam-1)+1024*q}')
    a('v_and_b32 v9, 15, v0')
    a('v_lshlrev_b32 v9, 1, v9')
    a('v_bfe_u32 v10, v0, 4, 1')
    a('v_add_u32 v9, v9, v10')
    a(f'v_mul_u32_u24 v9, {16*896}, v9')
    a('v_lshrrev_b32 v10, 5, v0')
    a('v_lshl_add_u32 v9, v10, 4, v9')
    a('s_lshl_b32 s30, s22, 1')
    a('s_lshr_b32 s31, s3, 1')
    a('s_add_u32 s30, s30, s31')
    a(f's_mul_i32 s30, s30, {32*16*896}')
    a('s_mul_i32 s31, s20, 896')
    a('s_add_u32 s30, s30, s31')
    a('s_lshl_b32 s31, s21, 7')
    a('s_add_u32 s30, s30, s31')
    a('s_and_b32 s31, s3, 1')
    a('s_lshl_b32 s31, s31, 6')
    a('s_add_u32 s30, s30, s31')
    a('s_waitcnt lgkmcnt(0)')
    a('s_barrier')
    for z in range(12):
        a(f'ds_read_b128 v[{G+16+4*z}:{G+19+4*z}], v8 offset:{1024*z}')
    vm.wait('ep')
    XU = 128
    for i in range(8):
        a(f'v_lshlrev_b32 v{XU+2*i}, 16, v{32+i}')
        a(f'v_and_b32 v{XU+2*i+1}, 0xffff0000, v{32+i}')
    for lam in range(1, 4):
        a(f's_waitcnt lgkmcnt({4*(3-lam)})')
        for i in range(8):
            a(f'v_pk_add_f32 v[{G+2*i}:{G+2*i+1}], v[{G+2*i}:{G+2*i+1}], v[{G+16*lam+2*i}:{G+16*lam+2*i+1}]')
    for i in range(8):
        a(f'v_pk_mul_f32 v[{G+2*i}:{G+2*i+1}], v[{G+2*i}:{G+2*i+1}], v[{44+2*i}:{45+2*i}]')
    for i in range(8):
        a(f'v_pk_fma_f32 v[{G+2*i}:{G+2*i+1}], v[{G+2*i}:{G+2*i+1}], v[40:41], v[{XU+2*i}:{XU+2*i+1}] op_sel_hi:[1,0,1]')
    for i in range(8):
        a(f'v_cvt_pk_bf16_f32 v{32+i}, v{G+2*i}, v{G+2*i+1}')
    for p in range(2):
        a(f'v_permlane32_swap_b32 v{32+4*p}, v{34+4*p}')
        a(f'v_permlane32_swap_b32 v{33+4*p}, v{35+4*p}')
        a(f'buffer_store_dwordx4 v[{32+4*p}:{35+4*p}], v9, s[12:15], s30 offen offset:{32*p}')
    if stamps:
        a('s_waitcnt vmcnt(0)')
        st(3)
    a.label('K3_END')
    a('s_endpgm')
    return a
```

```python
S, D, F = 2048, 448, 1792
WS_MOD   = 0x000000
WS_FLAGS = 0x004000
WS_U     = 0x010000
WS_XF    = 0x200000
WS_TP    = 0x400000
WS_WF    = 0x600000
WS_WDF   = 0xA00000
WS_HF    = 0xC00000
WS_SPILL = 0x1300000
WS_STAMP = 0x1800000
WS_SIZE  = 0x2000000
OOB      = 0x7FFF0000
NB_X = S * D * 2
NB_W = S * 225 * 2
NB_WG = D * F * 2
NB_WMOD = D * 6 * D * 2
def tile_of(wp, d1): return (wp - (d1 & 1)) % 7
def pos_of(d):
    d1, d2 = divmod(d, 28); wp, e = divmod(d2, 4)
    return 112 * (d1 // 4) + 16 * tile_of(wp, d1) + 4 * (d1 % 4) + e
def s1_of_rho(rho):
    return 64 * (rho // 64) + 32 * ((rho % 64) // 32) + 2 * (rho % 16) + ((rho // 16) % 2)
def slotp_of(kp):
    if kp == 64: return 0
    return kp // 2 if kp % 2 == 0 else 32 + (kp - 1) // 2
```

```python
import numpy as np
from layout import *
def f2bf(f):
    f = np.ascontiguousarray(f, dtype=np.float32); u = f.view(np.uint32)
    return ((u + 0x7FFF + ((u >> 16) & 1)) >> 16).astype(np.uint16)
def cs(num, den):
    num = np.asarray(num) % den
    c = np.cos(2 * np.pi * num / den); s = np.sin(2 * np.pi * num / den)
    c[np.abs(c) < 1e-12] = 0; s[np.abs(s) < 1e-12] = 0
    return c, s
lane = np.arange(64); idx = lane % 16; g = lane // 16

def ncs(a, b, den, valid):
    c, s = cs(a[:, None] * b, den)
    c = c * valid; s = s * valid
    h = np.concatenate([f2bf(-s + 0.0), f2bf(c), f2bf(s)], 1)
    return h.view(np.uint32)

def k1_table():
    regs = []
    for t in range(2):
        for ks in range(2):
            a = 16 * t + idx; b = 16 * ks + 4 * g[:, None] + np.arange(4)[None]
            regs.append(ncs(a, b, 28, (a[:, None] < 28) & (b < 28)))
    FB = np.concatenate(regs, 1)
    FBm = FB.reshape(64, 6, 4).transpose(1, 0, 2).reshape(-1)
    b = 4 * g[:, None] + np.arange(4)[None]
    FA = np.concatenate([ncs(idx, b, 16, True), np.zeros((64, 2), np.uint32)], 1)
    FAm = FA.reshape(64, 2, 4).transpose(1, 0, 2).reshape(-1)
    tw = []
    for t in range(2):
        d2 = 16 * t + idx
        c, s = cs(d2[:, None] * b, 448)
        v = (d2 < 28)[:, None]
        tw += [(c * v).astype(np.float32), (s * v).astype(np.float32)]
    TWI = np.stack(tw, 0).view(np.uint32).reshape(-1)
    TWF = np.zeros((8, 16, 4, 2), np.float32)
    for w in range(7):
        c, s = cs(np.arange(16)[:, None] * (4 * w + np.arange(4))[None], 448)
        TWF[w, :, :, 0] = c; TWF[w, :, :, 1] = s
    tb = np.concatenate([FBm, FAm, TWI, TWF.view(np.uint32).reshape(-1)])
    assert tb.size * 4 == 16384, tb.size * 4
    return tb[:1536]
TB_FB, TB_FA, TB_TWI, TB_TWF = 0, 6144, 8192, 12288

def k2_table():
    out = np.zeros((4, 4, 64, 4, 2), np.float32)
    kp_of = {}
    for kp in range(64): kp_of[slotp_of(kp)] = kp
    for n in range(4):
        s1 = np.array([s1_of_rho(16 * n + l) for l in idx])
        for ks in range(4):
            for j in range(4):
                sl = 16 * ks + 8 * (j // 2) + 2 * g + j % 2
                kp = np.array([kp_of[x] for x in sl])
                c, s = cs(kp * s1, 128)
                lo, hi = c.copy(), s.copy()
                z = sl == 0
                lo[z] = 0.5; hi[z] = 0.5 * (1 - 2 * (s1[z] % 2))
                out[n, ks, :, j, 0] = lo; out[n, ks, :, j, 1] = hi
    return f2bf(out).view(np.uint32).reshape(-1)

def emit(name, arr):
    arr = np.ascontiguousarray(arr, np.uint32)
    q = arr.view(np.uint64)
    s = f'.p2align 8\n.type {name},@object\n{name}:\n'
    for i in range(0, q.size, 8):
        s += '.quad ' + ','.join(f'{int(v):#x}' for v in q[i:i+8]) + '\n'
    s += f'.size {name}, {arr.size*4}\n'
    return s
```

```python
import sys
sys.path.insert(0, 'gen')
from asmlib import *
from layout import *
import k0, k1, k2, tables

HEADER = open('adaLN_cond__spectral_gfnet__glu_gated_reglu__prompt.s.ref').read().split('; Override launch')[0]

def kd(name, mx, accum=None):
    nv = mx['v'] + 1; na = mx['a'] + 1
    acc = max(4, (nv + 3) // 4 * 4)
    nfv = acc + na if na else nv
    return f'''.amdhsa_kernel {name}
  .amdhsa_next_free_vgpr {nfv}
  .amdhsa_next_free_sgpr {max(mx['s'] + 1, 16)}
  .amdhsa_accum_offset {acc}
  .amdhsa_group_segment_fixed_size 0
  .amdhsa_kernarg_size 96
  .amdhsa_user_sgpr_count 2
  .amdhsa_user_sgpr_kernarg_segment_ptr 1
  .amdhsa_system_sgpr_workgroup_id_x 1
  .amdhsa_float_denorm_mode_32 3
.end_amdhsa_kernel
'''

def build(kernels, tables=''):
    s = HEADER
    for name, a, grid, block, lds in kernels:
        s += f'; @launch kernel={name} grid=({grid},1,1) block=({block},1,1) lds={lds}\n'
    s += '.amdgcn_target "amdgcn-amd-amdhsa--gfx950"\n.text\n'
    kds = ''
    for name, a, grid, block, lds in kernels:
        body = a.finalize()
        s += f'.globl {name}\n.p2align 8\n.type {name},@function\n' + body
        kds += '.p2align 6\n' + kd(name, a.max_regs())
    s += tables
    s += '.section .rodata,"a"\n' + kds
    return s

if __name__ == '__main__':
    stamps = '--stamps' in sys.argv
    out = [x for x in sys.argv[1:] if not x.startswith('--')][0]
    ks = [('k0_kernel', k0.gen_k0(stamps), k0.K0_NA + k0.K0_NB, 256, k0.K0_LDS)]
    ks.append(('k1_kernel', k1.gen_k1(stamps), k1.K1_NF + k1.K1_NW + k1.K1_ND, 512, k1.K1_LDS))
    ks.append(('k2_kernel', k2.gen_k2(stamps), k2.K2_N, 256, k2.K2_LDS))
    ks.append(('k3_kernel', k2.gen_k3(stamps), k2.K2_N, 256, k2.K3_LDS))
    tb = tables.emit('k1_tbl', tables.k1_table()) + tables.emit('k2_tbl', tables.k2_table())
    open(out, 'w').write(build(ks, tb))
```

```python
from asmlib import *
from layout import *
import struct

XS = 912
RO = 64 * XS
MO = RO + 256
K0_LDS = 57344 + 2048 + 512

def srd(a, d, base, nbytes):
    a(f's_mov_b32 s{d}, s{base}')
    a(f's_mov_b32 s{d+1}, s{base+1}')
    a(f's_mov_b32 s{d+2}, {nbytes:#x}' if isinstance(nbytes, int) else f's_mov_b32 s{d+2}, {nbytes}')
    a(f's_mov_b32 s{d+3}, 0x00020000')

def rb16(a, dst, src):
    a(f'v_cvt_pk_bf16_f32 v{dst}, v{src}, v{src}')
    a(f'v_lshlrev_b32 v{dst}, 16, v{dst}')

def stamp(a, kidx, slot, ws_srd, enable, wgreg='s2', tmp_s=96, tmp_v=(250, 251, 252)):
    if not enable: return
    v0_, v1_, v2_ = tmp_v
    a(f's_memrealtime s[{tmp_s}:{tmp_s+1}]')
    a(f's_memtime s[{tmp_s+2}:{tmp_s+3}]')
    a('s_waitcnt lgkmcnt(0)')
    a(f'v_mov_b32 v{v0_}, s{tmp_s}')
    a(f'v_mov_b32 v{v1_}, s{tmp_s+2}')
    a(f's_lshl_b32 s{tmp_s+2}, {wgreg}, 7')
    a(f's_add_u32 s{tmp_s+2}, s{tmp_s+2}, {WS_STAMP + kidx * 0x10000 + slot * 8:#x}')
    a(f'v_mov_b32 v{v2_}, s{tmp_s+2}')
    a(f'buffer_store_dwordx2 v[{v0_}:{v1_}], v{v2_}, s[{ws_srd}:{ws_srd+3}], 0 offen')

def w_rows(a, kp, wave, vdst, vt0, vt1, st):
    a(f'v_and_b32 v{vt0}, 31, v0')
    a(f'v_lshlrev_b32 v{vt0}, 4, v{vt0}')
    a('v_cmp_gt_u32 vcc, 32, v0')
    for kk in range(2):
        s0, s1 = st + 2 * kk, st + 2 * kk + 1
        a(f's_lshl_b32 s{s0}, {wave}, 8')
        a(f's_add_u32 s{s0}, s{s0}, {kp}')
        if kk: a(f's_add_u32 s{s0}, s{s0}, 128')
        a(f's_sub_u32 s{s1}, 2048, s{s0}')
        a(f's_and_b32 s{s1}, s{s1}, 2047')
        a(f's_mul_i32 s{s0}, s{s0}, 450')
        a(f's_mul_i32 s{s1}, s{s1}, 450')
        a(f'v_mov_b32 v{vdst+kk}, s{s1}')
        a(f'v_mov_b32 v{vt1}, s{s0}')
        a(f'v_cndmask_b32 v{vdst+kk}, v{vdst+kk}, v{vt1}, vcc')
        a(f'v_and_b32 v{vdst+kk}, -16, v{vdst+kk}')
        a(f'v_add_u32 v{vdst+kk}, v{vdst+kk}, v{vt0}')

def gen_k0(stamps=False):
    a = Asm()
    TV = (120, 121, 122)
    a.label('k0_kernel')
    a(f's_cmp_ge_u32 s2, {K0_GRID}')
    a('s_cbranch_scc1 K0_END')
    a('s_load_dwordx2 s[4:5], s[0:1], 0')
    a('s_load_dwordx2 s[6:7], s[0:1], 88')
    a('s_load_dwordx4 s[16:19], s[0:1], 56')
    a('s_load_dwordx4 s[32:35], s[0:1], 8')
    a('s_getpc_b64 s[36:37]')
    a.label('K0_PC')
    a('s_sub_u32 s36, s36, K0_PC-k0_kernel')
    a('s_subb_u32 s37, s37, 0')
    a('s_mov_b32 s38, k1_kernel-k0_kernel')
    a('s_mov_b32 s39, 0x00020000')
    a('v_lshlrev_b32 v1, 4, v0')
    a('buffer_load_dwordx4 v[112:115], v1, s[36:39], 0 offen')
    a('v_lshrrev_b32 v1, 6, v0')
    a('v_and_b32 v0, 63, v0')
    a('v_readfirstlane_b32 s3, v1')
    a('v_lshlrev_b32 v1, 4, v0')
    a('v_and_b32 v2, 15, v0')
    a('v_lshrrev_b32 v3, 4, v0')
    a(f's_cmp_ge_u32 s2, {K0_NA}')
    a('s_cbranch_scc1 K0_B')
    a('s_lshr_b32 s21, s2, 5')
    a('s_lshl_b32 s21, s21, 3')
    a('s_and_b32 s20, s2, 7')
    a('s_add_u32 s21, s21, s20')
    a('s_mul_i32 s23, s21, 896')
    a(f's_mul_i32 s24, s3, {8*28672}')
    a('s_add_u32 s23, s23, s24')
    a(f's_mul_i32 s24, s3, {8*XS}')
    a('s_mov_b32 m0, s24')
    a('s_waitcnt lgkmcnt(0)')
    srd(a, 8, 4, NB_X)
    a('s_mov_b32 exec_hi, 0x00ffffff')
    for r in range(8):
        a('buffer_load_dwordx4 v1, s[8:11], s23 offen lds')
        if r < 7:
            a(f's_add_u32 m0, m0, {XS}')
            a('s_add_u32 s23, s23, 28672')
    a('s_mov_b32 exec_hi, -1')
    srd(a, 12, 6, WS_SIZE)
    stamp(a, 0, 0, 12, stamps, tmp_v=TV)
    a('s_lshr_b32 s22, s2, 2')
    a('s_and_b32 s22, s22, 6')
    a('s_lshr_b32 s20, s3, 2')
    a('s_add_u32 s22, s22, s20')
    a('s_and_b32 s29, s3, 3')
    CT = 80
    a('s_lshl_b32 s24, s29, 4')
    a('v_add_u32 v4, s24, v2')
    a('v_lshrrev_b32 v5, 1, v4')
    a('v_and_b32 v6, 1, v4')
    a('v_cmp_eq_u32 vcc, 1, v4')
    a('v_mov_b32 v7, 32')
    a('v_cndmask_b32 v5, v5, v7, vcc')
    a('v_mov_b32 v7, 0')
    a('v_cndmask_b32 v6, v6, v7, vcc')
    a('v_cvt_f32_u32 v5, v5')
    a('v_cvt_f32_u32 v6, v6')
    a('v_mul_f32 v5, 0x3c800000, v5')
    a('v_mul_f32 v6, 0x3e800000, v6')
    a('v_lshlrev_b32 v7, 3, v3')
    a('v_cvt_f32_u32 v7, v7')
    a('v_fma_f32 v6, v5, v7, v6')
    a('v_mul_f32 v7, 0x42000000, v5')
    a('v_add_f32 v7, v7, v6')
    for j in range(8):
        a(f'v_cos_f32 v{CT+j}, v6')
        a(f'v_cos_f32 v{CT+8+j}, v7')
        if j < 7:
            a('v_add_f32 v6, v6, v5')
            a('v_add_f32 v7, v7, v5')
    a('s_lshl_b32 s24, s3, 3')
    a('v_lshrrev_b32 v4, 3, v0')
    a('v_add_u32 v4, s24, v4')
    a(f'v_mul_u32_u24 v5, {XS}, v4')
    a('v_and_b32 v6, 7, v0')
    a('v_lshl_add_u32 v5, v6, 4, v5')
    a('v_and_b32 v6, 3, v0')
    a('v_lshrrev_b32 v7, 2, v2')
    a('v_lshl_add_u32 v7, v3, 3, v7')
    a(f'v_mul_u32_u24 v8, {XS}, v7')
    a('v_mul_u32_u24 v7, 224, v6')
    a('s_lshl_b32 s25, s22, 3')
    a('v_add3_u32 v8, v8, v7, s25')
    a(f'v_mul_u32_u24 v9, {XS}, v2')
    a('v_mul_u32_u24 v7, 56, v3')
    a('s_mul_i32 s26, s29, 224')
    a('s_add_u32 s26, s26, s25')
    a('v_add3_u32 v9, v9, v7, s26')
    a('s_and_b32 s30, s21, 15')
    a('s_lshl_b32 s30, s30, 2')
    a('s_add_u32 s30, s30, s29')
    a('s_mul_i32 s30, s30, 28672')
    a('s_lshr_b32 s27, s21, 4')
    a('s_lshl_b32 s27, s27, 10')
    a('s_add_u32 s30, s30, s27')
    a('s_lshl_b32 s27, s22, 12')
    a('s_add_u32 s30, s30, s27')
    a(f's_add_u32 s30, s30, {WS_XF:#x}')
    a(f'v_mul_u32_u24 v11, {2*57344}, v3')
    a('s_and_b32 s27, s21, 3')
    a('v_xor_b32 v7, s27, v2')
    a('v_lshl_add_u32 v11, v7, 4, v11')
    a(f's_mul_i32 s26, s29, {8*57344}')
    a('s_lshl_b32 s27, s21, 8')
    a('s_add_u32 s26, s26, s27')
    a('s_lshl_b32 s27, s22, 13')
    a('s_add_u32 s26, s26, s27')
    a(f's_add_u32 s26, s26, {WS_U:#x}')
    a('s_add_u32 s27, s26, 57344')
    a('v_lshlrev_b32 v12, 2, v4')
    a('v_lshlrev_b32 v13, 1, v4')
    a('v_lshlrev_b32 v14, 5, v3')
    a('v_lshlrev_b32 v15, 4, v3')
    a('s_mov_b32 s28, 0x3f803f80')
    for i in range(4): a(f'v_mov_b32 v{16+i}, 0')
    a(f's_waitcnt vmcnt({1 if stamps else 0})')
    stamp(a, 0, 1, 12, stamps, tmp_v=TV)
    XB = 20
    for i in range(7):
        a(f'ds_read_b128 v[{XB+4*i}:{XB+4*i+3}], v5 offset:{128*i}')
    for i in range(7):
        a(f's_waitcnt lgkmcnt({6-i})')
        for j in range(4):
            r = XB + 4 * i + j
            a(f'v_dot2c_f32_bf16 v{16+(j&1)}, s28, v{r}')
            a(f'v_dot2c_f32_bf16 v{18+(j&1)}, v{r}, v{r}')
    a('v_add_f32 v16, v16, v17')
    a('v_add_f32 v18, v18, v19')
    for qp in ('quad_perm:[1,0,3,2]', 'quad_perm:[2,3,0,1]', 'row_half_mirror'):
        a(f'v_add_f32_dpp v16, v16, v16 {qp} row_mask:0xf bank_mask:0xf')
        a(f'v_add_f32_dpp v18, v18, v18 {qp} row_mask:0xf bank_mask:0xf')
    inv = 0x3b124925
    a(f'v_mul_f32 v16, {inv:#x}, v16')
    a(f'v_mul_f32 v18, {inv:#x}, v18')
    a('v_fma_f32 v18, -v16, v16, v18')
    a('v_max_f32 v18, 0, v18')
    a('v_cvt_pk_bf16_f32 v17, -v16, -v16')
    rb16(a, 18, 18)
    a(f'ds_write_b16 v13, v17 offset:{MO}')
    a('v_add_f32 v18, 0x3727c5ac, v18')
    rb16(a, 18, 18)
    a('v_sqrt_f32 v18, v18')
    rb16(a, 18, 18)
    a('v_rcp_f32 v18, v18')
    a(f'ds_write_b32 v12, v18 offset:{RO}')
    a('s_waitcnt lgkmcnt(0)')
    a('s_barrier')
    a('s_cmp_eq_u32 s22, 7')
    a('s_cbranch_scc1 K0_END')
    for ks in range(2):
        for h in range(2):
            a(f'ds_read_b128 v[{20+8*ks+4*h}:{23+8*ks+4*h}], v14 offset:{RO+128*ks+16*h}')
    for ks in range(2):
        a(f'ds_read_b128 v[{36+4*ks}:{39+4*ks}], v15 offset:{MO+64*ks}')
    for ks in range(2):
        for t in range(4):
            for h in range(2):
                b = 44 + 8 * t + 4 * ks + 2 * h
                a(f'ds_read_b64_tr_b16 v[{b}:{b+1}], v8 offset:{ks*32*XS + h*4*XS + t*56}')
        if ks == 0:
            a('s_waitcnt lgkmcnt(10)')
            for p in range(8):
                a(f'v_pk_mul_f32 v[{CT+2*p}:{CT+2*p+1}], v[{CT+2*p}:{CT+2*p+1}], v[{20+2*p}:{21+2*p}]')
    for nh in range(2):
        for hi in range(2):
            a(f'ds_read_b64 v[{96+4*nh+2*hi}:{97+4*nh+2*hi}], v9 offset:{nh*16*XS + hi*32*XS}')
    for p in range(8):
        a(f'v_cvt_pk_bf16_f32 v{20+p}, v{CT+2*p}, v{CT+2*p+1}')
    a('s_waitcnt lgkmcnt(12)')
    a('v_mfma_f32_16x16x32_bf16 v[28:31], v[20:23], v[36:39], 0')
    a('v_mfma_f32_16x16x32_bf16 v[28:31], v[24:27], v[40:43], v[28:31]')
    DT = 80
    for t in range(4):
        a(f'v_mfma_f32_16x16x32_bf16 v[{DT+4*t}:{DT+4*t+3}], v[20:23], v[{44+8*t}:{47+8*t}], v[28:31]')
    a('s_waitcnt lgkmcnt(4)')
    for t in range(4):
        a(f'v_mfma_f32_16x16x32_bf16 v[{DT+4*t}:{DT+4*t+3}], v[24:27], v[{48+8*t}:{51+8*t}], v[{DT+4*t}:{DT+4*t+3}]')
    a('s_waitcnt lgkmcnt(0)')
    a('buffer_store_dwordx4 v[96:99], v1, s[12:15], s30 offen')
    a('buffer_store_dwordx4 v[100:103], v1, s[12:15], s30 offen offset:2048')
    for i in range(4):
        a(f'v_cvt_pk_bf16_f32 v{104+2*i}, v{DT+i}, v{DT+4+i}')
        a(f'v_cvt_pk_bf16_f32 v{105+2*i}, v{DT+8+i}, v{DT+12+i}')
    a('buffer_store_dwordx4 v[104:107], v11, s[12:15], s26 offen')
    a('buffer_store_dwordx4 v[108:111], v11, s[12:15], s27 offen')
    if stamps:
        a('s_waitcnt vmcnt(0)')
        stamp(a, 0, 2, 12, stamps, tmp_v=TV)
    a('s_endpgm')
    a.label('K0_B')
    a(f's_cmp_ge_u32 s2, {K0_B0 + K0_NB}')
    a('s_cbranch_scc1 K0_C')
    a(f's_sub_u32 s20, s2, {K0_B0}')
    a('v_lshrrev_b32 v4, 3, v0')
    a('v_lshlrev_b32 v5, 1, v3')
    a('v_and_b32 v6, 7, v0')
    a('v_xor_b32 v6, v6, v5')
    a('v_mul_u32_u24 v4, 5376, v4')
    a('v_lshl_add_u32 v4, v6, 4, v4')
    a('s_lshl_b32 s22, s20, 7')
    a(f's_mul_i32 s23, s3, {56*5376}')
    a('s_add_u32 s23, s23, s22')
    a(f's_mul_i32 s24, s3, {7*1024}')
    a('s_mov_b32 m0, s24')
    a('s_lshl_b32 s25, s3, 8')
    a('v_lshl_add_u32 v7, v0, 2, s25')
    a('s_waitcnt lgkmcnt(0)')
    srd(a, 8, 18, NB_WMOD)
    srd(a, 28, 16, 896)
    a('buffer_load_dword v8, v7, s[28:31], 0 offen')
    for r in range(7):
        a('buffer_load_dwordx4 v4, s[8:11], s23 offen lds')
        if r < 6:
            a('s_add_u32 m0, m0, 1024')
            a(f's_add_u32 s23, s23, {8*5376}')
    srd(a, 12, 6, WS_SIZE)
    stamp(a, 0, 0, 12, stamps, tmp_v=TV)
    a('s_mul_i32 s21, s20, 37')
    a('s_lshr_b32 s21, s21, 8')
    SO = 57344
    a('v_lshrrev_b32 v10, 2, v0')
    a('v_lshrrev_b32 v11, 3, v0')
    a('v_xor_b32 v11, s3, v11')
    a('v_and_b32 v11, 3, v11')
    a('v_lshlrev_b32 v10, 7, v10')
    a('v_lshl_add_u32 v10, v11, 5, v10')
    a('v_and_b32 v11, 3, v0')
    a('v_lshl_add_u32 v10, v11, 3, v10')
    a('v_lshlrev_b32 v11, 3, v3')
    a('s_mul_i32 s24, s21, 448')
    a('s_lshl_b32 s25, s20, 6')
    a('s_sub_u32 s25, s25, s24')
    a('s_lshl_b32 s26, s3, 4')
    a('s_add_u32 s25, s25, s26')
    a('v_add_u32 v12, s25, v2')
    a('v_mul_u32_u24 v13, 2341, v12')
    a('v_lshrrev_b32 v13, 16, v13')
    a('v_mul_u32_u24 v14, 28, v13')
    a('v_sub_u32 v14, v12, v14')
    a('v_lshl_add_u32 v13, v14, 4, v13')
    a('s_cmp_lt_u32 s21, 3')
    a('s_cselect_b64 vcc, -1, 0')
    a('v_cndmask_b32 v12, v12, v13, vcc')
    a('v_add_u32 v12, s24, v12')
    a('v_lshlrev_b32 v12, 2, v12')
    a(f'v_mov_b32 v13, {OOB:#x}')
    a('v_cmp_gt_u32 vcc, 16, v0')
    a('v_cndmask_b32 v12, v13, v12, vcc')
    a('s_mov_b32 s26, 0')
    a('s_mov_b32 s27, 1.0')
    a('s_cmp_eq_u32 s21, 1')
    a('s_cselect_b32 s26, 1.0, s26')
    a('s_cmp_eq_u32 s21, 4')
    a('s_cselect_b32 s26, 1.0, s26')
    a('s_cmp_eq_u32 s21, 0')
    a('s_cselect_b32 s27, 0x45000000, s27')
    a('s_cmp_eq_u32 s21, 2')
    sc = struct.unpack('<I', struct.pack('<f', 2.0 / (S * D)))[0]
    a(f's_cselect_b32 s27, {sc:#x}, s27')
    a(f's_waitcnt vmcnt({8 if stamps else 7})')
    a('v_lshlrev_b32 v9, 16, v8')
    a('v_and_b32 v8, 0xffff0000, v8')
    for r in (8, 9):
        a(f'v_mul_f32 v{r+6}, 0xbfb8aa3b, v{r}')
        a(f'v_exp_f32 v{r+6}, v{r+6}')
        a(f'v_add_f32 v{r+6}, 1.0, v{r+6}')
        a(f'v_rcp_f32 v{r+6}, v{r+6}')
        a(f'v_mul_f32 v{r}, v{r}, v{r+6}')
    a('v_cvt_pk_bf16_f32 v9, v9, v8')
    a(f'ds_write_b32 v7, v9 offset:{SO}')
    a('s_waitcnt vmcnt(0) lgkmcnt(0)')
    a('s_barrier')
    a('s_cmp_ge_u32 s3, 4')
    a('s_cbranch_scc1 K0_END')
    stamp(a, 0, 1, 12, stamps, tmp_v=TV)
    def rd(ks, base):
        a(f'ds_read_b64 v[{base}:{base+1}], v11 offset:{SO + 64*ks}')
        a(f'ds_read_b64 v[{base+2}:{base+3}], v11 offset:{SO + 64*ks + 32}')
        a(f'ds_read_b64_tr_b16 v[{base+4}:{base+5}], v10 offset:{4096*ks}')
        a(f'ds_read_b64_tr_b16 v[{base+6}:{base+7}], v10 offset:{4096*ks + 2048}')
    base = lambda ks: 20 + 8 * (ks % 8)
    for ks in range(3): rd(ks, base(ks))
    for ks in range(14):
        if ks + 3 < 14:
            rd(ks + 3, base(ks + 3))
            a('s_waitcnt lgkmcnt(12)')
        else:
            a(f's_waitcnt lgkmcnt({4*(13-ks)})')
        b = base(ks)
        c = '0' if ks == 0 else 'v[16:19]'
        a(f'v_mfma_f32_16x16x32_bf16 v[16:19], v[{b}:{b+3}], v[{b+4}:{b+7}], {c}')
    rb16(a, 16, 16)
    a('v_add_f32 v16, s26, v16')
    rb16(a, 16, 16)
    a('v_mul_f32 v16, s27, v16')
    a('buffer_store_dword v16, v12, s[12:15], 0 offen')
    if stamps:
        a('s_waitcnt vmcnt(0)')
        stamp(a, 0, 2, 12, stamps, tmp_v=TV)
    a('s_endpgm')
    a.label('K0_C')
    a(f's_cmp_lt_u32 s2, {K0_C0}')
    a('s_cbranch_scc1 K0_Z')
    a(f's_sub_u32 s20, s2, {K0_C0}')
    a('s_lshr_b32 s21, s20, 3')
    a('s_lshl_b32 s21, s21, 13')
    a('s_lshl_b32 s22, s3, 10')
    a('s_add_u32 s21, s21, s22')
    a('s_add_u32 s21, s21, k1_kernel-k0_kernel')
    a('s_mov_b32 s38, CODE_END-k0_kernel')
    a('buffer_load_dwordx4 v[116:119], v1, s[36:39], s21 offen')
    w_rows(a, 's20', 's3', 4, 6, 7, 24)
    a('s_lshl_b32 s28, s3, 12')
    a('s_mov_b32 m0, s28')
    a('s_waitcnt lgkmcnt(0)')
    srd(a, 40, 32, NB_W)
    srd(a, 44, 34, NB_W)
    for kk in range(2):
        for arr in range(2):
            a(f'buffer_load_dwordx4 v{4+kk}, s[{40+4*arr}:{43+4*arr}], 0 offen lds')
            if not (kk and arr): a('s_add_u32 m0, m0, 1024')
    srd(a, 12, 6, WS_SIZE)
    stamp(a, 0, 0, 12, stamps, tmp_v=TV)
    WA, WW, PK = 24, 40, 80
    a('v_lshlrev_b32 v8, 7, v3')
    a('v_lshl_add_u32 v8, v2, 1, v8')
    a('v_sub_u32 v9, 288, v8')
    a('v_max_i32 v9, 0, v9')
    a('v_cmp_eq_u32 vcc, 3, v3')
    a('v_add_u32 v11, 64, v8')
    a('v_sub_u32 v12, 832, v8')
    a('v_cndmask_b32 v11, v11, v12, vcc')
    a('v_add_u32 v12, 96, v8')
    a('v_sub_u32 v13, 800, v8')
    a('v_cndmask_b32 v12, v12, v13, vcc')
    a('v_mov_b32 v13, 0')
    a('v_bfrev_b32 v14, 1')
    a('v_cndmask_b32 v20, v13, v14, vcc')
    a('v_cmp_eq_u32 s[48:49], 0, v0')
    a('v_cmp_eq_u32 s[50:51], 48, v0')
    a('v_cndmask_b32 v21, v13, v14, s[48:49]')
    for kk in range(2):
        w = WA + 5 * kk
        a(f's_and_b32 s29, s{24+2*kk}, 15')
        a('s_add_u32 s29, s29, s28')
        a(f's_and_b32 s30, s{25+2*kk}, 15')
        a('s_add_u32 s30, s30, s28')
        a('s_add_u32 s30, s30, 512')
        a('v_mov_b32 v15, s29')
        a('v_mov_b32 v16, s30')
        a('v_cndmask_b32 v17, v15, v16, vcc')
        a(f'v_add_u32 v{w+1}, v17, v11')
        a(f'v_add_u32 v{w+2}, v17, v12')
        a('v_add_u32 v15, 448, v15')
        a(f'v_cndmask_b32 v{w+4}, v15, v16, s[48:49]')
        a(f'v_add_u32 v{w}, s29, v8')
        a(f'v_add_u32 v{w+3}, s30, v9')
    a('s_lshl_b32 s29, s20, 15')
    a('s_add_u32 s29, s29, s28')
    a(f's_add_u32 s29, s29, {WS_WEFF:#x}')
    a(f's_waitcnt vmcnt({1 if stamps else 0})')
    for kk in range(2):
        w = WA + 5 * kk
        for arr in range(2):
            b = WW + 18 * kk + 9 * arr; of = 2048 * kk + 1024 * arr
            a(f'ds_read_u16 v{b+0}, v{w} offset:{of}')
            a(f'ds_read_u16 v{b+1}, v{w} offset:{of+32}')
            a(f'ds_read_u16 v{b+2}, v{w+1} offset:{of}')
            a(f'ds_read_u16 v{b+3}, v{w+2} offset:{of}')
            for i in range(4):
                a(f'ds_read_u16 v{b+4+i}, v{w+3} offset:{of+32*(3-i)}')
            a(f'ds_read_u16 v{b+8}, v{w+4} offset:{of}')
    for kk in range(2):
        a(f's_waitcnt lgkmcnt({15 if kk == 0 else 0})')
        b = WW + 18 * kk; o = PK + 8 * kk
        for i in range(8): a(f'v_lshl_or_b32 v{o+i}, v{b+9+i}, 16, v{b+i}')
        a(f'v_lshl_or_b32 v15, v{b+17}, 16, v{b+8}')
        for i in range(4, 8): a(f'v_xor_b32 v{o+i}, v14, v{o+i}')
        a(f'buffer_store_dwordx4 v[{o+4}:{o+7}], v1, s[12:15], s29 offen offset:{2048*kk+1024}')
        for i in (2, 3): a(f'v_xor_b32 v{o+i}, v20, v{o+i}')
        a('v_xor_b32 v15, v21, v15')
        a('v_lshlrev_b32 v16, 16, v15')
        a('v_and_b32 v17, 0xffff0000, v15')
        for i, m in ((0, 's[48:49]'), (2, 's[50:51]')):
            a(f'v_lshlrev_b32 v18, 16, v{o+i}')
            a(f'v_and_b32 v19, 0xffff0000, v{o+i}')
            a('v_pk_add_f32 v[18:19], v[18:19], v[16:17]')
            a('v_pk_mul_f32 v[18:19], v[18:19], 0.5 op_sel_hi:[1,0]')
            a('v_cvt_pk_bf16_f32 v18, v18, v19')
            a(f'v_cndmask_b32 v{o+i}, v{o+i}, v18, {m}')
        a(f'buffer_store_dwordx4 v[{o}:{o+3}], v1, s[12:15], s29 offen offset:{2048*kk}')
    if stamps:
        a('s_waitcnt vmcnt(0)')
        stamp(a, 0, 2, 12, stamps, tmp_v=TV)
    a('s_endpgm')
    a.label('K0_Z')
    a(f's_cmp_lg_u32 s2, {K0_B0 + K0_NB}')
    a('s_cbranch_scc1 K0_END')
    a('s_cmp_gt_u32 s3, 1')
    a('s_cbranch_scc1 K0_END')
    a('s_waitcnt lgkmcnt(0)')
    srd(a, 12, 6, WS_SIZE)
    for q in range(4): a(f'v_mov_b32 v{4+q}, 0')
    a('s_lshl_b32 s20, s3, 10')
    a(f's_add_u32 s20, s20, {WS_FLAGS:#x}')
    a('buffer_store_dwordx4 v[4:7], v1, s[12:15], s20 offen')
    a.label('K0_END')
    a('s_endpgm')
    return a
```

```python
from asmlib import *
from layout import *
from k0 import srd, rb16, stamp, w_rows
from tables import TB_FB, TB_FA, TB_TWI, TB_TWF

MODL = 16384
X1 = MODL + 8192
M2L = X1 + 256 * 144
UL = M2L + 4096
X2 = UL
K1_LDS = UL + 57344
ZERO = TB_TWF + 7 * 512

def inter(a, mf, va):
    n, k = len(mf), len(va)
    for i, m in enumerate(mf):
        a(m)
        for x in va[i * k // n:(i + 1) * k // n]: a(x)

def gen_k1(stamps=False):
    a = Asm()
    TV = (250, 251, 252)
    nst = 1 if stamps else 0
    a.label('k1_kernel')
    a(f's_cmp_ge_u32 s2, {K1_GRID}')
    a('s_cbranch_scc1 K1_END')
    a('s_load_dwordx2 s[16:17], s[0:1], 88')
    a('s_load_dwordx4 s[36:39], s[0:1], 32')
    a('s_load_dwordx2 s[40:41], s[0:1], 48')
    a('v_lshrrev_b32 v1, 6, v0')
    a('v_and_b32 v0, 63, v0')
    a('v_readfirstlane_b32 s3, v1')
    a('v_lshlrev_b32 v1, 4, v0')
    a('v_and_b32 v2, 15, v0')
    a('v_lshrrev_b32 v3, 4, v0')
    a(f's_cmp_ge_u32 s2, {K1_NF}')
    a('s_cbranch_scc1 K1_PREP')
    a('s_getpc_b64 s[42:43]')
    a.label('K1_PC')
    a('s_add_u32 s42, s42, k1_tbl-K1_PC')
    a('s_addc_u32 s43, s43, 0')
    srd(a, 44, 42, 16384)
    a('s_lshl_b32 s18, s3, 11')
    a('s_mov_b32 m0, s18')
    a('s_and_b32 s25, s2, 63')
    a('buffer_load_dwordx4 v1, s[44:47], s18 offen lds')
    a('buffer_load_dwordx4 v1, s[44:47], s18 offen offset:1024 lds')
    a('s_sub_u32 s19, 64, s25')
    a('s_cmp_gt_u32 s25, 32')
    a('s_cselect_b32 s19, s19, s25')
    a('s_cselect_b32 s20, -1.0, 1.0')
    a('s_and_b32 s21, s25, 31')
    a('s_cmp_eq_u32 s21, 0')
    a('s_cselect_b32 s20, 0, s20')
    a('s_cselect_b32 s19, 0, s19')
    a('s_mul_i32 s19, s19, 57344')
    a('s_lshl_b32 s21, s3, 13')
    a('s_add_u32 s19, s19, s21')
    a(f's_add_u32 s19, s19, {WS_U:#x}')
    a('s_add_u32 s22, s19, 4096')
    a(f's_add_u32 s23, s21, {UL}')
    a('s_mov_b32 m0, s23')
    a('s_lshl_b32 s24, s3, 10')
    a(f's_add_u32 s26, s24, {MODL}')
    a('s_waitcnt lgkmcnt(0)')
    srd(a, 28, 16, WS_SIZE)
    stamp(a, 1, 0, 28, stamps, tmp_v=TV)
    a('s_cmp_eq_u32 s3, 7')
    a('s_cbranch_scc1 K1_NOU')
    for q in range(4): a(f'buffer_load_dwordx4 v1, s[28:31], s19 offen offset:{1024*q} lds')
    a('s_add_u32 m0, m0, 4096')
    for q in range(4): a(f'buffer_load_dwordx4 v1, s[28:31], s22 offen offset:{1024*q} lds')
    a.label('K1_NOU')
    a('s_mov_b32 m0, s26')
    UA, M2, CA, SA, GA, M2I, FA, TWF, FB, TWI, WW, DD, WP = 32, 64, 80, 96, 112, 116, 124, 132, 140, 164, 180, 216, 8
    a('v_lshlrev_b32 v13, 7, v2')
    a('buffer_load_dwordx4 v1, s[28:31], s24 offen lds')
    a('v_add_u32 v13, s2, v13')
    a('s_lshr_b32 s27, s3, 1')
    a('s_lshl_b32 s27, s27, 3')
    a('s_and_b32 s21, s3, 1')
    a('s_add_u32 s27, s27, s21')
    a('v_lshl_add_u32 v14, v3, 1, s27')
    a('v_mul_u32_u24 v13, v13, v14')
    a('v_cvt_f32_u32 v13, v13')
    a('v_mul_f32 v13, 0x3a000000, v13')
    a('v_sin_f32 v17, v13')
    a('v_cos_f32 v18, v13')
    a('s_lshr_b32 s27, s3, 2')
    a('s_lshl_b32 s27, s27, 10')
    a('s_and_b32 s21, s3, 3')
    a('s_lshl_b32 s21, s21, 2')
    a('s_add_u32 s27, s27, s21')
    a('v_add_u32 v14, s27, v1')
    a('v_mul_f32 v19, s20, v17')
    a('v_mul_f32 v21, s20, v18')
    a('v_cvt_pk_bf16_f32 v15, v18, v19')
    a('v_cvt_pk_bf16_f32 v16, -v17, v21')
    a(f'ds_write_b32 v14, v15 offset:{M2L}')
    a(f'ds_write_b32 v14, v16 offset:{M2L+2048}')
    a('v_lshrrev_b32 v8, 3, v0')
    a('v_lshlrev_b32 v9, 8, v8')
    a('v_and_b32 v10, 3, v0')
    a('v_lshl_add_u32 v9, v10, 6, v9')
    a('v_bfe_u32 v10, v0, 2, 1')
    a('s_cmp_eq_u32 s25, 32')
    a('s_cselect_b32 s27, 1, 0')
    a('v_xor_b32 v10, s27, v10')
    a('v_lshl_add_u32 v9, v10, 3, v9')
    a('v_add_u32 v9, s23, v9')
    a('v_and_b32 v8, 3, v8')
    a('v_lshl_add_u32 v4, v8, 4, v9')
    for e in range(1, 4): a(f'v_xor_b32 v{4+e}, {16*e}, v4')
    a('s_lshl_b32 s27, s2, 15')
    a('s_lshl_b32 s21, s3, 12')
    a('s_add_u32 s27, s27, s21')
    a(f's_add_u32 s27, s27, {WS_WEFF:#x}')
    for q in range(4): a(f'buffer_load_dwordx4 v[{WP+4*q}:{WP+4*q+3}], v1, s[28:31], s27 offen offset:{1024*q}')
    a('s_lshl_b32 s27, s3, 9')
    a('v_lshl_add_u32 v26, v2, 5, s27')
    a('s_lshl_b32 s27, s3, 8')
    a(f's_add_u32 s27, s27, {MODL}')
    a('v_lshl_add_u32 v28, v3, 4, s27')
    a('v_lshl_add_u32 v30, v2, 2, s27')
    a('s_cmp_eq_u32 s2, 0')
    a('s_cselect_b32 s27, 0, 99')
    a('v_cmp_eq_u32 vcc, s27, v2')
    a(f'v_mov_b32 v29, {ZERO}')
    a('v_lshl_add_u32 v24, v3, 6, v2')
    a('v_cndmask_b32 v29, v29, v28, vcc')
    a('v_mul_u32_u24 v24, 144, v24')
    a('s_lshl_b32 s27, s3, 4')
    a(f's_add_u32 s27, s27, {X1}')
    a('v_add_u32 v24, s27, v24')
    a('v_mul_u32_u24 v25, 144, v2')
    a('v_lshl_add_u32 v25, v3, 4, v25')
    a(f's_mul_i32 s27, s3, {32*144}')
    a(f's_add_u32 s27, s27, {X1}')
    a('v_add_u32 v25, s27, v25')
    a('s_waitcnt vmcnt(5)')
    a('s_cmp_eq_u32 s3, 7')
    a('s_cbranch_scc1 K1_NOU2')
    for d2l in range(4):
        for ks in range(2):
            for h in range(2):
                b = UA + 8 * d2l + 4 * ks + 2 * h
                a(f'ds_read_b64_tr_b16 v[{b}:{b+1}], v{4+d2l} offset:{4096*ks+2048*h}')
    a.label('K1_NOU2')
    a('s_waitcnt vmcnt(4) lgkmcnt(15)')
    a('s_cmp_eq_u32 s3, 7')
    a('s_cbranch_scc1 K1_W7')
    a('s_barrier')
    stamp(a, 1, 1, 28, stamps, tmp_v=TV)
    def phase1(d2l):
        o = []
        for ks in range(2):
            for c in range(2):
                d = DD + 8 * d2l + 4 * c
                cc = '0' if ks == 0 else f'v[{d}:{d+3}]'
                o.append(f'v_mfma_f32_16x16x32_bf16 v[{d}:{d+3}], v[{UA+8*d2l+4*ks}:{UA+8*d2l+4*ks+3}], v[{M2+8*c+4*ks}:{M2+8*c+4*ks+3}], {cc}')
        return o
    VA = UA
    def modul(d2l):
        o = []; d = DD + 8 * d2l
        for p in range(2):
            o.append(f'v_pk_fma_f32 v[{d+2*p}:{d+2*p+1}], v[{d+2*p}:{d+2*p+1}], v[{CA+4*d2l+2*p}:{CA+4*d2l+2*p+1}], v[{SA+4*d2l+2*p}:{SA+4*d2l+2*p+1}]')
            o.append(f'v_pk_mul_f32 v[{d+4+2*p}:{d+5+2*p}], v[{d+4+2*p}:{d+5+2*p}], v[{CA+4*d2l+2*p}:{CA+4*d2l+2*p+1}]')
        return o
    def cvt4(dst, src):
        return [f'v_cvt_pk_bf16_f32 v{dst+p}, v{src+2*p}, v{src+2*p+1}' for p in range(4)]
    def dft16(src, d):
        return [f'v_mfma_f32_16x16x32_bf16 v[{d}:{d+3}], v[{src}:{src+3}], v[{FA+2}:{FA+5}], 0',
                f'v_mfma_f32_16x16x32_bf16 v[{d+4}:{d+7}], v[{src}:{src+3}], v[{FA}:{FA+3}], 0']
    def cmulc(d, e, c_, s_, selc, sels):
        o = []
        for p in range(2):
            re = f'v[{d+2*p}:{d+2*p+1}]'; im = f'v[{d+4+2*p}:{d+5+2*p}]'
            ore = f'v[{e+2*p}:{e+2*p+1}]'; oim = f'v[{e+4+2*p}:{e+5+2*p}]'
            o.append(f'v_pk_mul_f32 {ore}, {im}, {s_(p)} {sels}')
            o.append(f'v_pk_mul_f32 {oim}, {re}, {s_(p)} {sels}')
            o.append(f'v_pk_fma_f32 {ore}, {re}, {c_(p)}, {ore} {selc}')
            o.append(f'v_pk_fma_f32 {oim}, {im}, {c_(p)}, {oim} {selc} neg_lo:[0,0,1] neg_hi:[0,0,1]')
        return o
    E = 64
    P = 96
    fbread = [f'ds_read_b128 v[{FB+4*q}:{FB+4*q+3}], v1 offset:{TB_FB+1024*q}' for q in range(6)]
    for q in range(4): a(f'ds_read_b128 v[{M2+4*q}:{M2+4*q+3}], v1 offset:{M2L+1024*q}')
    rd = []
    for d2l in range(4):
        rd.append(f'ds_read_b128 v[{CA+4*d2l}:{CA+4*d2l+3}], v28 offset:{1792+64*d2l}')
        rd.append(f'ds_read_b128 v[{SA+4*d2l}:{SA+4*d2l+3}], v29 offset:{64*d2l}')
    for q in range(2): rd.append(f'ds_read_b128 v[{FA+4*q}:{FA+4*q+3}], v1 offset:{TB_FA+1024*q}')
    for q in range(2): rd.append(f'ds_read_b128 v[{TWF+4*q}:{TWF+4*q+3}], v26 offset:{TB_TWF+16*q}')
    for d2l in range(4): rd.append(f'ds_read_b32 v{GA+d2l}, v30 offset:{3584+64*d2l}')
    rd += fbread
    rd += ['v_lshrrev_b32 v27, 2, v2', 'v_mul_u32_u24 v27, 28672, v27', 'v_and_b32 v31, 3, v2', 'v_lshl_add_u32 v27, v31, 4, v27',
           f'v_mul_u32_u24 v31, {4*114688}, v3', 'v_add_u32 v27, v27, v31',
           'v_lshlrev_b32 v28, 6, v2', 'v_lshl_add_u32 v28, v3, 4, v28', 's_mul_i32 s27, s3, 4160', f's_add_u32 s27, s27, {X2}', 'v_add_u32 v28, s27, v28']
    a('s_waitcnt lgkmcnt(0)')
    inter(a, phase1(0) + phase1(1) + phase1(2) + phase1(3), rd)
    a('s_waitcnt lgkmcnt(14)')
    for d2l in range(4):
        for x in modul(d2l): a(x)
    a('s_waitcnt lgkmcnt(10)')
    for x in cvt4(VA, DD): a(x)
    for d2l in range(4):
        inter(a, dft16(VA + 8 * d2l, DD + 8 * d2l), cvt4(VA + 8 * d2l + 8, DD + 8 * d2l + 8) if d2l < 3 else
              ['s_lshr_b32 s24, s2, 1', 's_and_b32 s24, s24, 31', 's_and_b32 s27, s2, 1', 's_lshl_b32 s27, s27, 5', 's_add_u32 s24, s24, s27',
               's_lshl_b32 s24, s24, 6', 's_lshl_b32 s27, s3, 12', 's_add_u32 s24, s24, s27'])
    for d2l in range(4):
        tw = f'v[{TWF+2*d2l}:{TWF+2*d2l+1}]'
        for x in cmulc(DD + 8 * d2l, E + 8 * d2l, lambda p: tw, lambda p: tw, 'op_sel_hi:[1,0,1]', 'op_sel:[0,1] op_sel_hi:[1,1]'): a(x)
    for i in range(4):
        a(f'v_cvt_pk_bf16_f32 v{P+4*i+0}, v{E+i}, v{E+8+i}')
        a(f'v_cvt_pk_bf16_f32 v{P+4*i+1}, v{E+16+i}, v{E+24+i}')
        a(f'v_cvt_pk_bf16_f32 v{P+4*i+2}, v{E+4+i}, v{E+12+i}')
        a(f'v_cvt_pk_bf16_f32 v{P+4*i+3}, v{E+20+i}, v{E+28+i}')
        a(f'ds_write_b128 v24, v[{P+4*i}:{P+4*i+3}] offset:{2304*i}')
    a('s_branch K1_J1')
    a.label('K1_W7')
    a('s_waitcnt lgkmcnt(0)')
    a('s_barrier')
    for q in range(4): a(f'v_mov_b32 v{P+q}, 0')
    a(f'v_mov_b32 v27, {OOB:#x}')
    for i in range(4): a(f'ds_write_b128 v24, v[{P}:{P+3}] offset:{2304*i}')
    for x in fbread: a(x)
    a.label('K1_J1')
    a('s_waitcnt lgkmcnt(0)')
    a('s_barrier')
    stamp(a, 1, 2, 28, stamps, tmp_v=TV)
    BX = 32
    for kk in range(2):
        for ks in range(2):
            b = BX + 8 * kk + 4 * ks
            a(f'ds_read_b128 v[{b}:{b+3}], v25 offset:{2304*kk+64*ks}')
    for q in range(4): a(f'ds_read_b128 v[{TWI+4*q}:{TWI+4*q+3}], v1 offset:{TB_TWI+1024*q}')
    def dft28(kk, data, data_is_a):
        o = []
        for ks in range(2):
            for t in range(2):
                for c in range(2):
                    d = DD + 16 * kk + 8 * t + 4 * c
                    f = FB + 6 * (2 * t + ks) + (2 if c == 0 else 0)
                    b = data + 8 * kk + 4 * ks
                    cc = '0' if ks == 0 else f'v[{d}:{d+3}]'
                    A, B = (b, f) if data_is_a else (f, b)
                    o.append(f'v_mfma_f32_16x16x32_bf16 v[{d}:{d+3}], v[{A}:{A+3}], v[{B}:{B+3}], {cc}')
        return o
    def wunp(kk):
        o = []
        for t in range(2):
            for i in range(4):
                src = WP + 8 * kk + 4 * t + i; w = WW + 16 * kk + 8 * t
                o.append(f'v_lshlrev_b32 v{w+i}, 16, v{src}')
                o.append(f'v_and_b32 v{w+4+i}, s21, v{src}')
        return o
    YA = 48
    def wmul(kk):
        o = []
        for t in range(2):
            d = DD + 16 * kk + 8 * t; e = E + 16 * kk + 8 * t; wr = WW + 16 * kk + 8 * t; wi = wr + 4
            for p in range(2):
                xr = f'v[{d+2*p}:{d+2*p+1}]'; xi = f'v[{d+4+2*p}:{d+5+2*p}]'
                Wr = f'v[{wr+2*p}:{wr+2*p+1}]'; Wi = f'v[{wi+2*p}:{wi+2*p+1}]'
                ore = f'v[{e+2*p}:{e+2*p+1}]'; oim = f'v[{e+4+2*p}:{e+5+2*p}]'
                o.append(f'v_pk_mul_f32 {ore}, {xi}, {Wi}')
                o.append(f'v_pk_mul_f32 {oim}, {xr}, {Wi}')
                o.append(f'v_pk_fma_f32 {ore}, {xr}, {Wr}, {ore} neg_lo:[0,0,1] neg_hi:[0,0,1]')
                o.append(f'v_pk_fma_f32 {oim}, {xi}, {Wr}, {oim} neg_lo:[1,0,1] neg_hi:[1,0,1]')
        return o
    m2i = ['v_lshlrev_b32 v12, 9, v3', 'v_add_u32 v12, s2, v12', 'v_mul_u32_u24 v12, v12, v2', 'v_cvt_f32_u32 v12, v12',
           'v_mul_f32 v12, 0x3a000000, v12', 'v_cvt_f32_u32 v31, v2', 'v_mul_f32 v31, 0x3d800000, v31']
    for j in range(4):
        m2i += [f'v_sin_f32 v{4+j}, v12', f'v_cos_f32 v{8+j}, v12']
        if j < 3: m2i.append('v_add_f32 v12, v12, v31')
    m2i2 = [f'v_cvt_pk_bf16_f32 v{M2I+0}, -v4, -v5', f'v_cvt_pk_bf16_f32 v{M2I+1}, -v6, -v7', f'v_cvt_pk_bf16_f32 v{M2I+2}, v8, v9',
            f'v_cvt_pk_bf16_f32 v{M2I+3}, v10, v11', f'v_cvt_pk_bf16_f32 v{M2I+4}, v4, v5', f'v_cvt_pk_bf16_f32 v{M2I+5}, v6, v7']
    a('s_mov_b32 s21, 0xffff0000')
    a('v_mul_u32_u24 v26, 1040, v2')
    a('v_lshl_add_u32 v26, v3, 4, v26')
    a('s_lshl_b32 s27, s3, 7')
    a(f's_add_u32 s27, s27, {X2}')
    a('v_add_u32 v26, s27, v26')
    a(f's_waitcnt vmcnt({nst}) lgkmcnt(6)')
    inter(a, dft28(0, BX, False), wunp(0))
    a('s_waitcnt lgkmcnt(4)')
    inter(a, dft28(1, BX, False), wunp(1))
    for x in wmul(0) + wmul(1): a(x)
    for x in cvt4(YA, E) + cvt4(YA + 4, E + 8): a(x)
    inter(a, dft28(0, YA, True), cvt4(YA + 8, E + 16) + cvt4(YA + 12, E + 24) + m2i[:7])
    inter(a, dft28(1, YA, True), m2i[7:])
    a('s_waitcnt lgkmcnt(0)')
    P2 = 32
    for kk in range(2):
        for t in range(2):
            c_ = lambda p: f'v[{TWI+8*t+2*p}:{TWI+8*t+2*p+1}]'
            s_ = lambda p: f'v[{TWI+8*t+4+2*p}:{TWI+8*t+5+2*p}]'
            e = E + 16 * kk + 8 * t; q = P2 + 8 * kk + 4 * t
            for x in cmulc(DD + 16 * kk + 8 * t, e, c_, s_, '', '') + cvt4(q, e): a(x)
            a(f'ds_write_b128 v26, v[{q}:{q+3}] offset:{16640*t+64*kk}')
    for x in m2i2: a(x)
    for i in range(4): a(f's_add_u32 s{60+i}, s24, {WS_TP + i*114688:#x}')
    a('s_waitcnt lgkmcnt(0)')
    a('s_barrier')
    a('s_cmp_eq_u32 s3, 7')
    a('s_cbranch_scc1 K1_END')
    stamp(a, 1, 3, 28, stamps, tmp_v=TV)
    ZA = 48
    for d2l in range(4):
        a(f'ds_read_b128 v[{ZA+4*d2l}:{ZA+4*d2l+3}], v28 offset:{1040*d2l}')
    ZB = 32
    def ph3(d2l):
        e = E + 8 * d2l
        return [f'v_mfma_f32_16x16x32_bf16 v[{e}:{e+3}], v[{M2I+2}:{M2I+5}], v[{ZB+4*d2l}:{ZB+4*d2l+3}], 0',
                f'v_mfma_f32_16x16x32_bf16 v[{e+4}:{e+7}], v[{M2I}:{M2I+3}], v[{ZB+4*d2l}:{ZB+4*d2l+3}], 0']
    def scl(d2l):
        e = E + 8 * d2l; gp = GA + (d2l & ~1)
        sel = 'op_sel_hi:[1,0]' if d2l % 2 == 0 else 'op_sel:[0,1] op_sel_hi:[1,1]'
        return [f'v_pk_mul_f32 v[{e+2*p}:{e+2*p+1}], v[{e+2*p}:{e+2*p+1}], v[{gp}:{gp+1}] {sel}' for p in range(4)]
    O = 48
    for d2l in range(4):
        a(f's_waitcnt lgkmcnt({3-d2l})')
        for x in dft16(ZA + 4 * d2l, DD + 8 * d2l): a(x)
    for x in cvt4(ZB, DD): a(x)
    for d2l in range(4):
        inter(a, ph3(d2l), cvt4(ZB + 4 * d2l + 4, DD + 8 * d2l + 8) if d2l < 3 else [])
    for d2l in range(4):
        for x in scl(d2l): a(x)
    a('s_cmp_eq_u32 s25, 0')
    a('s_cbranch_scc1 K1_SHORT')
    for i in range(4):
        a(f'v_cvt_pk_bf16_f32 v{O+4*i+0}, v{E+i}, v{E+8+i}')
        a(f'v_cvt_pk_bf16_f32 v{O+4*i+1}, v{E+16+i}, v{E+24+i}')
        a(f'v_cvt_pk_bf16_f32 v{O+4*i+2}, v{E+4+i}, v{E+12+i}')
        a(f'v_cvt_pk_bf16_f32 v{O+4*i+3}, v{E+20+i}, v{E+28+i}')
        a(f'buffer_store_dwordx4 v[{O+4*i}:{O+4*i+3}], v27, s[28:31], s{60+i} offen')
    if stamps:
        a('s_waitcnt vmcnt(0)')
        stamp(a, 1, 4, 28, stamps, tmp_v=TV)
    a('s_endpgm')
    a.label('K1_SHORT')
    a('s_lshr_b32 s24, s2, 3')
    a('v_add_u32 v27, s24, v27')
    for i in range(4):
        a(f'v_cvt_pk_bf16_f32 v{O+4*i+0}, v{E+i}, v{E+8+i}')
        a(f'v_cvt_pk_bf16_f32 v{O+4*i+1}, v{E+16+i}, v{E+24+i}')
        a(f'buffer_store_dwordx2 v[{O+4*i}:{O+4*i+1}], v27, s[28:31], s{60+i} offen')
    if stamps:
        a('s_waitcnt vmcnt(0)')
        stamp(a, 1, 4, 28, stamps, tmp_v=TV)
    a('s_endpgm')
    a.label('K1_PREP')
    a(f's_cmp_lt_u32 s2, {K1_W0}')
    a('s_cbranch_scc1 K1_END')
    a('s_lshl_b32 s18, s3, 12')
    a('s_mov_b32 m0, s18')
    a('v_and_b32 v4, 3, v0')
    a('v_lshrrev_b32 v5, 2, v2')
    a('v_and_b32 v6, 1, v3')
    a('v_lshrrev_b32 v7, 5, v0')
    a('s_waitcnt lgkmcnt(0)')
    srd(a, 28, 16, WS_SIZE)
    a(f's_cmp_ge_u32 s2, {K1_D0}')
    a('s_cbranch_scc1 K1_WD')
    a(f's_sub_u32 s19, s2, {K1_W0}')
    a('s_cmp_ge_u32 s19, 56')
    a('s_cselect_b32 s20, 1, 0')
    a('s_cselect_b32 s8, s38, s36')
    a('s_cselect_b32 s9, s39, s37')
    a(f's_mov_b32 s10, {NB_WG:#x}')
    a('s_mov_b32 s11, 0x00020000')
    a('s_mul_i32 s21, s20, 56')
    a('s_sub_u32 s19, s19, s21')
    a('s_mul_i32 s22, s19, 58')
    a('s_add_u32 s22, s22, s20')
    a('s_lshl_b32 s22, s22, 10')
    a(f's_add_u32 s22, s22, {WS_WF:#x}')
    a('s_cmp_eq_u32 s3, 7')
    a('s_cbranch_scc1 K1_WF_FIN')
    a('v_lshrrev_b32 v8, 2, v0')
    a('v_mul_u32_u24 v8, 3584, v8')
    a('v_lshl_add_u32 v8, v4, 4, v8')
    a(f's_mul_i32 s23, s3, {64*3584}')
    a('s_lshl_b32 s24, s19, 6')
    a('s_add_u32 s23, s23, s24')
    for i in range(4):
        a('buffer_load_dwordx4 v8, s[8:11], s23 offen lds')
        if i < 3:
            a('s_add_u32 m0, m0, 1024')
            a(f's_add_u32 s23, s23, {16*3584}')
    stamp(a, 1, 0, 28, stamps, tmp_v=TV)
    a('s_and_b32 s23, s3, 1')
    a('s_mul_i32 s23, s23, 56')
    a('s_lshr_b32 s24, s3, 1')
    a('s_lshl_b32 s24, s24, 3')
    a('s_add_u32 s23, s23, s24')
    a('s_cmp_eq_u32 s3, 6')
    a('s_cselect_b32 s24, 56, 28')
    a('s_cselect_b32 s25, 28, 4')
    a('v_mul_u32_u24 v9, s24, v7')
    a('v_add_u32 v9, s23, v9')
    a('v_add_u32 v10, v9, v5')
    a('v_lshlrev_b32 v10, 6, v10')
    a('v_lshl_add_u32 v10, v6, 5, v10')
    a('v_lshl_add_u32 v10, v4, 3, v10')
    a('s_lshl_b32 s26, s25, 6')
    a('v_add_u32 v11, s26, v10')
    a('v_lshlrev_b32 v9, 2, v9')
    a('s_lshl_b32 s26, s25, 2')
    a('v_add_u32 v8, s26, v9')
    for q in range(4): a(f'v_mov_b32 v{12+q}, 0x3f803f80')
    a('s_lshl_b32 s24, s3, 11')
    a('s_add_u32 s24, s24, s22')
    a('s_waitcnt vmcnt(0)')
    a('s_barrier')
    ML = 28672
    CB, SBF, RW, SBP, AB, AC, SC = 32, 64, 96, 16, 112, 128, 144
    for w in range(4):
        a(f'ds_read_b64_tr_b16 v[{RW+4*w}:{RW+4*w+1}], v10 offset:{7168*w}')
        a(f'ds_read_b64_tr_b16 v[{RW+4*w+2}:{RW+4*w+3}], v11 offset:{7168*w}')
        a(f'ds_read_b128 v[{CB+8*w}:{CB+8*w+3}], v9 offset:{ML+1792+448*w}')
        a(f'ds_read_b128 v[{CB+8*w+4}:{CB+8*w+7}], v8 offset:{ML+1792+448*w}')
        a(f'ds_read_b128 v[{SBF+8*w}:{SBF+8*w+3}], v9 offset:{ML+448*w}')
        a(f'ds_read_b128 v[{SBF+8*w+4}:{SBF+8*w+7}], v8 offset:{ML+448*w}')
    UP = 160
    for w in range(4):
        a(f's_waitcnt lgkmcnt({min(6*(3-w)+2, 15)})')
        for p in range(4):
            u = UP + 2 * p
            a(f'v_lshlrev_b32 v{u}, 16, v{RW+4*w+p}')
            a(f'v_and_b32 v{u+1}, 0xffff0000, v{RW+4*w+p}')
            a(f'v_pk_mul_f32 v[{u}:{u+1}], v[{u}:{u+1}], v[{CB+8*w+2*p}:{CB+8*w+2*p+1}]')
            a(f'v_cvt_pk_bf16_f32 v{SC+4*w+p}, v{u}, v{u+1}')
        a(f'buffer_store_dwordx4 v[{SC+4*w}:{SC+4*w+3}], v1, s[28:31], s24 offen')
        if w < 3: a(f's_add_u32 s24, s24, {7*2048}')
        cc = '0' if w == 0 else f'v[{AC}:{AC+15}]'
        a(f'v_mfma_f32_32x32x16_bf16 v[{AC}:{AC+15}], v[12:15], v[{SC+4*w}:{SC+4*w+3}], {cc}')
        a(f's_waitcnt lgkmcnt({min(6*(3-w), 15)})')
        for p in range(4):
            a(f'v_cvt_pk_bf16_f32 v{SBP+4*w+p}, v{SBF+8*w+2*p}, v{SBF+8*w+2*p+1}')
        cc = '0' if w == 0 else f'v[{AB}:{AB+15}]'
        a(f'v_mfma_f32_32x32x16_bf16 v[{AB}:{AB+15}], v[{SBP+4*w}:{SBP+4*w+3}], v[{RW+4*w}:{RW+4*w+3}], {cc}')
    RED = 32768
    a('s_lshl_b32 s24, s3, 9')
    a('v_lshl_add_u32 v11, v0, 2, s24')
    a(f'ds_write_b32 v11, v{AC} offset:{RED}')
    a(f'ds_write_b32 v11, v{AB} offset:{RED+256}')
    a('s_waitcnt lgkmcnt(0)')
    a('s_barrier')
    a('s_endpgm')
    a.label('K1_WF_FIN')
    a(f's_mov_b32 s23, {WS_MOD + 3*1792}')
    for q in range(4): a(f'buffer_load_dwordx4 v1, s[28:31], s23 offen offset:{1024*q} lds')
    a('v_lshlrev_b32 v11, 2, v0')
    a('s_waitcnt vmcnt(0)')
    a('s_barrier')
    a('s_barrier')
    for w in range(7):
        a(f'ds_read_b32 v{16+2*w}, v11 offset:{RED+512*w}')
        a(f'ds_read_b32 v{17+2*w}, v11 offset:{RED+512*w+256}')
    a('s_waitcnt lgkmcnt(0)')
    for w in range(1, 7):
        a(f'v_pk_add_f32 v[16:17], v[16:17], v[{16+2*w}:{17+2*w}]')
    a('v_cvt_pk_bf16_f32 v20, v16, v17')
    a('v_lshlrev_b32 v22, 16, v20')
    a('v_and_b32 v23, 0xffff0000, v20')
    a('v_pk_add_f32 v[16:17], v[16:17], v[22:23] neg_lo:[0,1] neg_hi:[0,1]')
    a('v_cvt_pk_bf16_f32 v21, v16, v17')
    a('v_lshlrev_b32 v24, 16, v21')
    a('v_and_b32 v25, 0xffff0000, v21')
    a('v_pk_add_f32 v[16:17], v[16:17], v[24:25] neg_lo:[0,1] neg_hi:[0,1]')
    a('v_cvt_pk_bf16_f32 v28, v22, v24')
    a('v_cvt_pk_bf16_f32 v29, v16, v23')
    a('v_cvt_pk_bf16_f32 v30, v25, v17')
    a('v_mov_b32 v31, 0')
    a('v_cmp_gt_u32 vcc, 32, v0')
    for r in (28, 29, 30): a(f'v_cndmask_b32 v{r}, v31, v{r}, vcc')
    a(f's_add_u32 s22, s22, {28*2048}')
    a('buffer_store_dwordx4 v[28:31], v1, s[28:31], s22 offen')
    if stamps:
        a('s_waitcnt vmcnt(0)')
        stamp(a, 1, 4, 28, stamps, tmp_v=TV)
    a('s_endpgm')
    a.label('K1_WD')
    srd(a, 8, 40, NB_WG)
    a(f's_sub_u32 s19, s2, {K1_D0}')
    a('s_bfe_u32 s26, s19, 0x20001')
    a(f's_mul_i32 s26, s26, {4*114688}')
    a('s_lshr_b32 s27, s19, 3')
    a('s_lshl_b32 s27, s27, 16')
    a('s_add_u32 s26, s26, s27')
    a('s_lshl_b32 s27, s3, 13')
    a('s_add_u32 s26, s26, s27')
    a(f's_add_u32 s26, s26, {WS_XF:#x}')
    a('s_add_u32 s27, s26, 4096')
    a('s_cmp_eq_u32 s3, 7')
    a('s_cbranch_scc1 K1_XP')
    a('s_mul_i32 s20, s19, 37')
    a('s_lshr_b32 s20, s20, 8')
    a('s_mul_i32 s21, s20, 7')
    a('s_add_u32 s22, s21, s3')
    a('s_sub_u32 s21, s19, s21')
    a(f's_mul_i32 s23, s22, {32*896}')
    a('s_lshl_b32 s24, s21, 7')
    a('s_add_u32 s23, s23, s24')
    a('v_lshrrev_b32 v8, 3, v0')
    a('v_mul_u32_u24 v8, 896, v8')
    a('v_and_b32 v9, 7, v0')
    a('v_lshl_add_u32 v8, v9, 4, v8')
    for i in range(4):
        a('buffer_load_dwordx4 v8, s[8:11], s23 offen lds')
        if i < 3:
            a('s_add_u32 m0, m0, 1024')
            a(f's_add_u32 s23, s23, {8*896}')
    stamp(a, 1, 0, 28, stamps, tmp_v=TV)
    a('v_lshl_add_u32 v10, v7, 2, v5')
    a('v_lshlrev_b32 v10, 7, v10')
    a('v_lshl_add_u32 v10, v6, 5, v10')
    a('v_lshl_add_u32 v10, v4, 3, v10')
    a('v_add_u32 v10, s18, v10')
    a('s_mul_i32 s24, s21, 112')
    a('s_lshl_b32 s25, s22, 1')
    a('s_add_u32 s24, s24, s25')
    a('s_lshl_b32 s24, s24, 11')
    a(f's_add_u32 s24, s24, {WS_WDF:#x}')
    a('s_waitcnt vmcnt(0)')
    for ks2 in range(2):
        for ct in range(2):
            for q in range(2):
                b = 16 + 8 * ks2 + 4 * ct + 2 * q
                a(f'ds_read_b64_tr_b16 v[{b}:{b+1}], v10 offset:{2048*ks2+1024*q+64*ct}')
    for z in range(4):
        a(f's_waitcnt lgkmcnt({2*(3-z)})')
        a(f'buffer_store_dwordx4 v[{16+4*z}:{19+4*z}], v1, s[28:31], s24 offen offset:{1024*z}')
    a.label('K1_XP')
    for q in range(8):
        a(f'buffer_load_dwordx4 v[{32+4*q}:{35+4*q}], v1, s[28:31], s{26+q//4} offen offset:{1024*(q%4)}')
    if stamps:
        a('s_waitcnt vmcnt(0)')
        stamp(a, 1, 4, 28, stamps, tmp_v=TV)
    a.label('K1_END')
    a('s_endpgm')
    return a
```

```python
from asmlib import *
from layout import *
from k0 import srd, rb16, stamp

K2_N = 224
AT_BYTES = 57 * 2048
R2O = AT_BYTES
RT = R2O + 512
K2_LDS = RT + 16384

class Trk:
    def __init__(self, a, name, mx): self.a = a; self.tags = []; self.name = name; self.mx = mx
    def op(self, text, tag=None): self.a(text); self.tags.append(tag)
    def n(self, *tags):
        last = max(i for i, t in enumerate(self.tags) if t in tags)
        return min(len(self.tags) - 1 - last, self.mx)
    def wait(self, *tags):
        if not any(t in tags for t in self.tags): return
        self.a(f's_waitcnt {self.name}({self.n(*tags)})')

def ids(a):
    a('s_and_b32 s18, s2, 7')
    a('s_lshr_b32 s19, s2, 3')
    a('s_mul_i32 s20, s19, 37')
    a('s_lshr_b32 s20, s20, 8')
    a('s_mul_i32 s21, s20, 7')
    a('s_sub_u32 s21, s19, s21')
    a('s_lshr_b32 s22, s18, 1')
    a('s_lshl_b32 s22, s22, 2')
    a('s_add_u32 s20, s20, s22')
    a('s_and_b32 s22, s18, 1')
    a('s_mul_i32 s23, s22, 7')
    a('s_add_u32 s23, s23, s21')

def gen_k2(stamps=False, exp=''):
    a = Asm(); vm = Trk(a, 'vmcnt', 63); lg = Trk(a, 'lgkmcnt', 15)
    TV = (60, 61, 62)
    def st(slot):
        if stamps:
            stamp(a, 2, slot, 8, True, tmp_v=TV); vm.tags.append('stamp')
    def emit(lst):
        for kind, text, tag in lst:
            if kind == 'x': a(text)
            elif kind == 'v': vm.op(text, tag)
            elif kind == 'l': lg.op(text, tag)
            elif kind == 'wv': vm.wait(tag)
            elif kind == 'wl': lg.wait(tag)
    X_ = lambda lst: [('x', t, None) for t in lst]
    a.label('k2_kernel')
    a(f's_cmp_ge_u32 s2, {K2_N}')
    a('s_cbranch_scc1 K2_END')
    a('s_load_dwordx2 s[4:5], s[0:1], 88')
    a('s_load_dwordx2 s[50:51], s[0:1], 72')
    a('v_lshrrev_b32 v1, 6, v0')
    a('v_and_b32 v0, 63, v0')
    a('v_readfirstlane_b32 s3, v1')
    a('v_lshlrev_b32 v1, 4, v0')
    a('s_getpc_b64 s[6:7]')
    a.label('K2_PC')
    a('s_add_u32 s6, s6, k2_tbl-K2_PC')
    a('s_addc_u32 s7, s7, 0')
    srd(a, 12, 6, 16384)
    a('s_lshl_b32 s16, s3, 12')
    a(f's_add_u32 s17, s16, {RT}')
    a('s_mov_b32 m0, s17')
    ids(a)
    for q in range(4):
        vm.op(f'buffer_load_dwordx4 v1, s[12:15], s16 offen offset:{1024*q} lds', 'R')
    a('s_lshl_b32 s26, s20, 2')
    a('s_add_u32 s26, s26, s3')
    a('s_mul_i32 s26, s26, 28672')
    a(f's_add_u32 s24, s26, {WS_TP:#x}')
    a(f's_add_u32 s26, s26, {WS_XF:#x}')
    a('s_mul_i32 s25, s3, 28672')
    a('s_mul_i32 s42, s21, 11')
    a('s_lshr_b32 s42, s42, 5')
    a('s_mul_i32 s42, s42, 3')
    a('s_sub_u32 s42, s21, s42')
    a('s_mov_b32 s42, 0')
    for q in (43, 44):
        a(f's_add_u32 s{q}, s{q-1}, 8192')
        a(f's_cmp_eq_u32 s{q}, 24576')
        a(f's_cselect_b32 s{q}, 0, s{q}')
    a('s_mov_b32 s45, 24576')
    a('s_waitcnt lgkmcnt(0)')
    srd(a, 8, 4, WS_SIZE)
    XA = 144
    st(0)
    def load_tile(t):
        po = f's{42 + t // 2}'
        out = X_([f's_add_u32 m0, s25, {po}', f's_add_u32 s46, s24, {po}', f's_add_u32 s47, s26, {po}'] if t % 2 == 0 else
                 ['s_add_u32 m0, m0, 4096', 's_add_u32 s46, s46, 4096', 's_add_u32 s47, s47, 4096'])
        for q in range(4):
            out.append(('v', f'buffer_load_dwordx4 v1, s[8:11], s46 offen offset:{1024*q} lds', f't{t}'))
        for n in range(4):
            out.append(('v', f'buffer_load_dwordx4 a[{XA+16*t+4*n}:{XA+16*t+4*n+3}], v1, s[8:11], s47 offen offset:{1024*n}', f't{t}'))
        return out
    emit(load_tile(0) + load_tile(1))
    a('v_and_b32 v2, 15, v0')
    a('v_lshrrev_b32 v3, 4, v0')
    a('s_lshl_b32 s28, s23, 2')
    a('s_add_u32 s28, s28, s3')
    a(f's_mul_i32 s27, s28, {58*1024}')
    a(f's_add_u32 s27, s27, {WS_WF:#x}')
    NPRE = 9
    KORD = list(range(0, 10)) + list(range(18, 28)) + list(range(10, 18)) + [28]
    a('s_mov_b32 s52, 0')
    for q in range(4):
        a(f's_xor_b32 s{53+q}, s52, {q}')
        a(f's_mul_i32 s{57+q}, s{53+q}, 28672')
        a(f's_mul_i32 s{53+q}, s{53+q}, 14336')
        a(f's_add_u32 s{53+q}, s{53+q}, s27')
    def load_w(k):
        out = X_([f's_add_u32 s37, s{53+k//7}, {2048*(k%7)}' if k < 28 else f's_add_u32 s37, s27, {2048*28}'])
        for m in range(2):
            r = 8 * k + 4 * m
            out.append(('v', f'buffer_load_dwordx4 a[{r}:{r+3}], v1, s[8:11], s37 offen offset:{1024*m}', f'w{k}'))
        return out
    LW = lambda i0, i1: sum([load_w(k) for k in KORD[i0:i1]], [])
    SEL = 8
    a('v_lshrrev_b32 v5, 2, v2')
    a('v_cmp_eq_u32 vcc, v5, v3')
    a('v_and_b32 v5, 1, v0')
    a('v_lshlrev_b32 v5, 4, v5')
    a('v_mov_b32 v6, 0x3f00')
    a('v_lshlrev_b32 v6, v5, v6')
    a('v_mov_b32 v7, 0')
    a('v_cndmask_b32 v6, v7, v6, vcc')
    a('v_and_b32 v5, 2, v0')
    a('v_cmp_eq_u32 vcc, 0, v5')
    a(f'v_cndmask_b32 v{SEL}, v7, v6, vcc')
    a(f'v_cndmask_b32 v{SEL+1}, v6, v7, vcc')
    a(f'v_mov_b32 v{SEL+2}, v{SEL}')
    a(f'v_mov_b32 v{SEL+3}, v{SEL+1}')
    for q in range(2):
        a(f'v_lshlrev_b32 v5, 2, v{SEL+q}')
        a('v_and_b32 v5, 0x80008000, v5')
        a(f'v_or_b32 v{SEL+4+q}, v5, v{SEL+q}')
    a('v_lshrrev_b32 v4, 3, v0')
    a('v_lshlrev_b32 v4, 6, v4')
    a('v_and_b32 v5, 3, v0')
    a('v_lshl_add_u32 v4, v5, 4, v4')
    a('v_bfe_u32 v5, v0, 2, 1')
    a('v_lshl_add_u32 v4, v5, 3, v4')
    a('v_add_u32 v4, s25, v4')
    a('v_lshlrev_b32 v5, 4, v2')
    a('v_add_u32 v5, s25, v5')
    a('v_lshl_add_u32 v14, v3, 11, v5')
    a('v_lshrrev_b32 v6, 1, v3')
    a('v_lshl_add_u32 v15, v6, 11, v5')
    a('v_and_b32 v6, 1, v3')
    a('v_lshl_add_u32 v15, v6, 3, v15')
    a('v_and_b32 v5, 31, v0')
    a('v_lshlrev_b32 v20, 4, v5')
    a('v_lshrrev_b32 v6, 5, v0')
    a('v_lshl_add_u32 v27, v6, 11, v20')
    VB = (16, 17, 26, 27)
    for q in range(4): a(f'v_add_u32 v{VB[q]}, s{57+q}, v27')
    for p_ in range(3):
        a(f'v_add_u32 v{32+p_}, s{42+p_}, v4')
        a(f'v_add_u32 v{35+p_}, s{42+p_}, v14')
    a('s_lshl_b32 s29, s3, 9')
    a('v_and_b32 v6, 3, v0')
    a('v_lshl_add_u32 v18, v6, 2, v20')
    a(f's_add_u32 s38, s29, {RT}')
    a('v_add_u32 v18, s38, v18')
    a(f'v_add_u32 v20, {56*2048}, v20')
    a('v_add_u32 v21, s29, v20')
    a('s_lshl_b32 s29, s3, 7')
    a('v_lshl_add_u32 v22, v5, 2, s29')
    a(f'v_add_u32 v19, {RT+8192}, v22')
    a(f'v_add_u32 v22, {R2O}, v22')
    a(f'v_add_u32 v23, {RT}, v1')
    a('s_lshl_b32 s29, s3, 11')
    a(f's_add_u32 s29, s29, {RT}')
    a('v_lshl_add_u32 v24, v2, 4, s29')
    a('s_lshl_b32 s29, s3, 9')
    a(f's_add_u32 s29, s29, {RT+8192}')
    a('v_lshl_add_u32 v25, v2, 2, s29')
    for q in range(4): a(f'v_mov_b32 v{28+q}, 0x3f803f80')
    a('s_mov_b32 s40, 0x00f0000f')
    a('s_mov_b32 s41, 0xf0000f00')
    emit(load_tile(2))
    vm.wait('R')
    a('s_barrier')
    R1 = 64
    for q in range(16):
        lg.op(f'ds_read_b128 v[{R1+4*q}:{R1+4*q+3}], v23 offset:{1024*q}', 'R')
    ACC, PK, TT, TAB = 128, 160, 176, 192
    ta = lambda t: TAB + 16 * (t % 4)
    def rdT(t):
        return [('l', f'ds_read_b64_tr_b16 v[{ta(t)+4*ks+2*h}:{ta(t)+4*ks+2*h+1}], {"v4" if t == 6 else f"v{32+t//2}"} offset:{(24576 if t == 6 else 4096*(t%2))+1024*ks+512*h}', f'T{t}')
                for ks in range(4) for h in range(2)]
    units = []
    for p in range(3):
        for n in range(4):
            for tt in range(2): units.append((2 * p + tt, n))
    for n in range(4): units.append((6, n))
    side = {}
    def spread(lst, u0, u1):
        k = len(lst); m = u1 - u0
        for i, x in enumerate(lst): side.setdefault(u0 + i * m // k, []).append(x)
    spread(load_tile(4) + load_tile(5), 0, 10)
    spread([('wv', None, 't3')] + rdT(2) + rdT(3), 6, 8)
    spread(load_tile(6), 10, 16)
    spread([('wv', None, 't5')] + rdT(4) + rdT(5), 14, 16)
    spread(LW(0, NPRE), 16, 28)
    spread([('wv', None, 't6')] + rdT(6), 23, 24)
    SQ, SM = 80, 112
    def post(ui):
        t, n = units[ui]
        e = ACC + 8 * (ui % 4); o = e + 4
        grp = (ui // 2) % 2 if t < 6 else ui % 2
        pk = PK + 8 * grp + (2 * (t % 2) if t < 6 else 0)
        T = TT + 8 * (ui % 2)
        ops = []
        for q in range(4):
            ops.append(('x', f'v_add_f32 v{T+q}, v{e+q}, v{o+q}', None))
            ops.append(('x', f'v_sub_f32 v{T+4+q}, v{e+q}, v{o+q}', None))
        for q in range(2):
            ops.append(('x', f'v_cvt_pk_bf16_f32 v{pk+q}, v{T+2*q}, v{T+2*q+1}', None))
            ops.append(('x', f'v_cvt_pk_bf16_f32 v{pk+4+q}, v{T+4+2*q}, v{T+5+2*q}', None))
        b = PK + 8 * grp
        if t < 6 and t % 2 == 1:
            p = t // 2
            ops.append(('l', f'ds_write_b128 v{35+p}, v[{b}:{b+3}] offset:{256*n}', 'aw'))
            ops.append(('l', f'ds_write_b128 v{35+p}, v[{b+4}:{b+7}] offset:{256*n+1024}', 'aw'))
        elif t == 6:
            ops.append(('l', f'ds_write_b64 v15, v[{b}:{b+1}] offset:{24576+256*n}', 'aw'))
            ops.append(('l', f'ds_write_b64 v15, v[{b+4}:{b+5}] offset:{24576+256*n+1024}', 'aw'))
            if n < 2: ops += X_([f'v_mov_b32 v{b+z}, 0' for z in (2, 3, 6, 7)])
        if t % 2 == 1 or t == 6:
            for hi in range(2):
                P_ = f'v[{b+4*hi}:{b+4*hi+3}]'; q_ = SQ + 4 * (4 * hi + n); m_ = SM + 4 * (4 * hi + n)
                cq = '0' if t == 1 else f'a[{q_}:{q_+3}]'; cm = '0' if t == 1 else f'a[{m_}:{m_+3}]'
                ops += X_([f'v_mfma_f32_16x16x32_bf16 a[{q_}:{q_+3}], {P_}, {P_}, {cq}',
                           f'v_mfma_f32_16x16x32_bf16 a[{m_}:{m_+3}], v[28:31], {P_}, {cm}'])
        return ops
    LAG = 2
    emit(load_tile(3))
    vm.wait('t1')
    st(1)
    emit(rdT(0) + rdT(1))
    for ui, (t, n) in enumerate(units):
        if n == 0: lg.wait(f'T{t}')
        e = ACC + 8 * (ui % 4); o = e + 4
        X = f'a[{XA+16*t+4*n}:{XA+16*t+4*n+3}]'
        TA = lambda ks: f'v[{ta(t)+4*ks}:{ta(t)+4*ks+3}]'
        RR = lambda ks: f'v[{R1+16*n+4*ks}:{R1+16*n+4*ks+3}]'
        E = f'v[{e}:{e+3}]'; O = f'v[{o}:{o+3}]'
        mf = [f'v_mfma_f32_16x16x32_bf16 {E}, v[{SEL}:{SEL+3}], {X}, 0',
              f'v_mfma_f32_16x16x32_bf16 {O}, v[{SEL+2}:{SEL+5}], {X}, 0',
              f'v_mfma_f32_16x16x32_bf16 {E}, {TA(0)}, {RR(0)}, {E}',
              f'v_mfma_f32_16x16x32_bf16 {O}, {TA(2)}, {RR(2)}, {O}',
              f'v_mfma_f32_16x16x32_bf16 {E}, {TA(1)}, {RR(1)}, {E}',
              f'v_mfma_f32_16x16x32_bf16 {O}, {TA(3)}, {RR(3)}, {O}']
        fill = (post(ui - LAG) if ui >= LAG else []) + side.get(ui, [])
        if 'V' in exp: fill = [f for f in fill if f[0] not in ('v', 'wv')]
        if 'S' in exp: fill = [f for f in fill if not (f[0] == 'x' and f[1].startswith('v_mfma'))]
        if 'W' in exp: fill = [f for f in fill if not (f[0] == 'l' and f[1].startswith('ds_write'))]
        if 'A' in exp: fill = [f for f in fill if not (f[0] == 'x' and f[1].startswith(('v_add', 'v_sub', 'v_cvt')))]
        if 'T' in exp: fill = [f for f in fill if not (f[0] == 'l' and f[1].startswith('ds_read'))]
        k = len(fill)
        for i, m in enumerate(mf):
            a(m)
            emit(fill[i * k // 6:(i + 1) * k // 6])
    for ui in range(len(units) - LAG, len(units)): emit(post(ui))
    a('s_waitcnt lgkmcnt(0)')
    a('s_barrier')
    st(2)
    G = 128
    BF = 64
    SA = 112
    def baddr(k, rt):
        if k < 28: return f'v{VB[k//7]} offset:{4096*(k%7)+512*rt}'
        return f'v20 offset:{512*rt}'
    steps = [[(KORD[i], rt) for rt in range(4)] for i in range(25)] + [[(KORD[25 + z], rt) for z in range(4)] for rt in range(4)]
    def rdB(i):
        return [('l', f'ds_read_b128 v[{BF+16*(i%3)+4*z}:{BF+16*(i%3)+4*z+3}], {baddr(k, rt)}', f'b{i}') for z, (k, rt) in enumerate(steps[i])]
    pw = []
    for tl in range(8):
        pw += X_(['s_mov_b64 exec, s[40:41]'])
        pw += [('l', f'ds_write_b128 v24, a[{SQ+4*tl}:{SQ+4*tl+3}] offset:{256*tl}', 'pw'), ('l', f'ds_write_b32 v25, a{SM+4*tl} offset:{64*tl}', 'pw')]
        pw += X_(['s_mov_b64 exec, -1'])
    inv = 0x3b124925
    fin = []
    for w in range(4):
        fin += [('l', f'ds_read_b32 v{SA+w}, v19 offset:{512*w}', 'pr'), ('l', f'ds_read_b32 v{SA+4+w}, v18 offset:{2048*w}', 'pr')]
    fin2 = [('wl', None, 'pr')] + X_([f'v_add_f32 v{SA}, v{SA}, v{SA+1}', f'v_add_f32 v{SA+2}, v{SA+2}, v{SA+3}', f'v_add_f32 v{SA+4}, v{SA+4}, v{SA+5}',
            f'v_add_f32 v{SA+6}, v{SA+6}, v{SA+7}', f'v_add_f32 v{SA}, v{SA}, v{SA+2}', f'v_add_f32 v{SA+2}, v{SA+4}, v{SA+6}', 'v_mov_b32 v31, 0',
            f'v_mul_f32 v{SA}, {inv:#x}, v{SA}', f'v_mul_f32 v{SA+2}, {inv:#x}, v{SA+2}',
            f'v_fma_f32 v{SA+2}, -v{SA}, v{SA}, v{SA+2}', f'v_max_f32 v{SA+2}, 0, v{SA+2}',
            f'v_cvt_pk_bf16_f32 v28, -v{SA}, -v{SA}', f'v_cvt_pk_bf16_f32 v{SA+2}, v{SA+2}, v{SA+2}',
            f'v_lshlrev_b32 v{SA+2}, 16, v{SA+2}', f'v_add_f32 v{SA+2}, 0x3727c5ac, v{SA+2}',
            f'v_cvt_pk_bf16_f32 v{SA+2}, v{SA+2}, v{SA+2}', f'v_lshlrev_b32 v{SA+2}, 16, v{SA+2}',
            f'v_sqrt_f32 v{SA+2}, v{SA+2}', 's_nop 0',
            f'v_cvt_pk_bf16_f32 v30, v{SA+2}, v{SA+2}', f'v_cvt_pk_bf16_f32 v29, -v{SA}, v{SA+2}',
            f'v_lshlrev_b32 v{SA+2}, 16, v30', f'v_rcp_f32 v{SA+2}, v{SA+2}'])
    fin2 += [('l', 'ds_write_b128 v21, v[28:31]', 'st')] + X_([f'v_mul_f32 v{SA+2}, v{SA+2}, v{SA+2}']) + [('l', f'ds_write_b32 v22, v{SA+2}', 'st')]
    wd_setup = X_(['s_mul_i32 s30, s21, 112', 's_mul_i32 s31, s3, 28', 's_add_u32 s30, s30, s31', 's_lshl_b32 s30, s30, 11',
                   f's_add_u32 s30, s30, {WS_WDF:#x}', 's_and_b32 s32, s3, 1', 's_lshl_b32 s32, s32, 10',
                   'v_add_u32 v2, s32, v1', 'v_xor_b32 v3, 0x400, v2', 's_mov_b32 s61, 0'])
    for q in range(4): wd_setup += X_([f's_xor_b32 s{62+q}, s61, {q}', f's_mul_i32 s{62+q}, s{62+q}, 7168'])
    dreg = lambda j: 232 + 8 * j if j < 3 else 8 * KORD[j - 3]
    def load_wd(j):
        r = dreg(j); out = []
        if j % 7 == 0: out += X_([f's_lshl_b32 s39, s{62+j//7}, 1', 's_add_u32 s39, s39, s30'])
        elif (j % 7) % 2 == 0: out += X_(['s_add_u32 s39, s39, 4096'])
        out += [('v', f'buffer_load_dwordx4 a[{r}:{r+3}], v2, s[8:11], s39 offen offset:{2048*((j%7)%2)}', f'd{j}'),
                ('v', f'buffer_load_dwordx4 a[{r+4}:{r+7}], v3, s[8:11], s39 offen offset:{2048*((j%7)%2)}', f'd{j}')]
        return out
    res = X_(['s_lshl_b32 s33, s22, 1', 's_lshr_b32 s34, s3, 1', 's_add_u32 s33, s33, s34',
              's_lshl_b32 s34, s21, 4', 's_and_b32 s35, s3, 1', 's_lshl_b32 s35, s35, 3', 's_add_u32 s34, s34, s35',
              'v_lshrrev_b32 v10, 5, v0', 'v_and_b32 v11, 31, v0', 's_lshl_b32 s35, s33, 9', 'v_lshl_add_u32 v12, v11, 4, s35',
              's_lshl_b32 s35, s33, 7', 'v_lshl_add_u32 v9, v11, 2, s35', f'v_add_u32 v9, {R2O}, v9',
              'v_add_u32 v11, s34, v10'])
    for q in range(4):
        res += X_(['v_mul_u32_u24 v13, 147, v11', 'v_lshrrev_b32 v13, 10, v13',
                   'v_mul_u32_u24 v14, 7, v13', 'v_sub_u32 v14, v11, v14',
                   'v_and_b32 v15, 3, v13', 'v_lshrrev_b32 v13, 2, v13',
                   'v_cmp_eq_u32 vcc, 6, v14',
                   'v_lshl_add_u32 v8, v15, 1, v14', 'v_and_b32 v14, 6, v14', 'v_lshl_add_u32 v8, v14, 2, v8', 'v_sub_u32 v8, v8, v14',
                   'v_add_u32 v15, 24, v15', 'v_cndmask_b32 v8, v8, v15, vcc',
                   'v_mul_u32_u24 v13, 28672, v13', 'v_lshrrev_b32 v14, 1, v8', 'v_lshl_add_u32 v13, v14, 11, v13',
                   'v_and_b32 v8, 1, v8', 'v_lshl_add_u32 v13, v8, 3, v13', f'v_add_u32 v{4+q}, v13, v12', 'v_add_u32 v11, 2, v11'])
    res += X_(['v_lshlrev_b32 v10, 4, v10', 's_lshl_b32 s34, s34, 4', f's_add_u32 s34, s34, {WS_MOD + 5*1792}'])
    for q in range(4):
        res.append(('v', f'buffer_load_dwordx4 v[{44+4*q}:{47+4*q}], v10, s[8:11], s34 offen offset:{32*q}', 'gb'))
    for q in range(4): res.append(('l', f'ds_read_b64 v[{32+2*q}:{33+2*q}], v{4+q}', 'res'))
    res.append(('l', 'ds_read_b32 v40, v9', 'res'))
    XU = 112
    res2 = [('wl', None, 'res'), ('wv', None, 'gb')]
    res2 += X_([f'v_mul_f32 v{44+i}, v40, v{44+i}' for i in range(16)])
    res2 += X_(['s_mul_i32 s29, s20, 448', 's_lshl_b32 s31, s28, 1', 's_add_u32 s29, s29, s31', 's_lshl_b32 s29, s29, 10', f's_add_u32 s29, s29, {WS_HF:#x}'])
    def epi(rt, packed):
        g = G + 32 * rt; u = g + 16; o = []
        for hh in range(2):
            o += X_([f'v_max_f32 v{g+i}, 0, v{g+i}' for i in range(8 * hh, 8 * hh + 8)])
            if packed: o += X_([f'v_pk_mul_f32 v[{g+2*i}:{g+2*i+1}], v[{g+2*i}:{g+2*i+1}], v[{u+2*i}:{u+2*i+1}]' for i in range(4 * hh, 4 * hh + 4)])
            else: o += X_([f'v_mul_f32 v{g+i}, v{g+i}, v{u+i}' for i in range(8 * hh, 8 * hh + 8)])
            o += X_([f'v_cvt_pk_bf16_f32 v{u+i}, v{g+2*i}, v{g+2*i+1}' for i in range(4 * hh, 4 * hh + 4)])
            o.append(('v', f'buffer_store_dwordx4 v[{u+4*hh}:{u+4*hh+3}], v1, s[8:11], s29 offen offset:{1024*hh} sc1', 'hs'))
        if rt < 3: o += X_([f's_add_u32 s29, s29, {112*1024}'])
        return o
    def merge(x, y):
        m = []; n = max(len(x), len(y), 1)
        for i in range(n):
            m += x[i * len(x) // n:(i + 1) * len(x) // n] + y[i * len(y) // n:(i + 1) * len(y) // n]
        return m
    vq = [load_w(k) for k in KORD[NPRE:]] + [load_wd(j) for j in range(28)]
    vsched = {}
    nw = 29 - NPRE
    for idx, item in enumerate(vq):
        p_ = (2 * idx) // 3
        if idx >= nw: p_ = max(p_, (idx - nw - 3) + 1)
        vsched.setdefault(min(p_, 29), []).extend(item)
    emit(rdB(0) + rdB(1) + wd_setup)
    extra = {0: pw[:16], 1: pw[16:], 2: [('wl', None, 'pw'), ('x', 's_barrier', None)] + fin, 3: fin2[:16], 4: fin2[16:],
             6: [('wl', None, 'st'), ('x', 's_barrier', None)], 24: res2}
    for z in range(6): extra[8 + z] = res[z * len(res) // 6:(z + 1) * len(res) // 6]
    for i in range(29):
        if i == 15: st(5)
        if i <= 25:
            for k in sorted(set(k for k, _ in steps[i]), key=KORD.index)[-1:]: vm.wait(f'w{k}')
        lg.wait(f'b{i}')
        fill = (rdB(i + 2) if i + 2 <= 28 else []) + vsched.get(i, [])
        ex = extra.get(i, [])
        if 'v' in exp: fill = [f for f in fill if f[0] != 'v']
        if 'x' in exp and i >= 2: ex = [f for f in ex if f[0] == 'x' and f[1].startswith('s_')]
        if i >= 26: ex = epi(i - 26, False)
        if i in (0, 1):
            groups = [ex[4*z:4*z+4] for z in range(4)]
            gaps = [[] for _ in range(8)]
            for z in range(4): gaps[2 * z + 1] += groups[z]
            for z in range(4): gaps[2 * z] += fill[z * len(fill) // 4:(z + 1) * len(fill) // 4]
        else:
            fill = merge(fill, ex); nf = len(fill)
            gaps = [fill[z * nf // 8:(z + 1) * nf // 8] for z in range(8)]
            if i >= 26:
                gaps = [[]] + [fill[z * nf // 7:(z + 1) * nf // 7] for z in range(7)]
        z = 0
        for fi, (k, rt) in enumerate(steps[i]):
            for m in range(2):
                d = G + 32 * rt + 16 * m; w = 8 * k + 4 * m; b = BF + 16 * (i % 3) + 4 * fi
                c = '0' if i == 0 else f'v[{d}:{d+15}]'
                a(f'v_mfma_f32_32x32x16_bf16 v[{d}:{d+15}], a[{w}:{w+3}], v[{b}:{b+3}], {c}')
                emit(gaps[z]); z += 1
    st(3)
    emit(epi(3, True))
    a('s_lshl_b32 s26, s20, 2')
    a('s_add_u32 s28, s26, s33')
    a('s_xor_b32 s29, s28, 1')
    a('s_mul_i32 s31, s3, 28')
    a('s_mul_i32 s28, s28, 112')
    a('s_mul_i32 s29, s29, 112')
    a('s_add_u32 s28, s28, s31')
    a('s_add_u32 s29, s29, s31')
    a('s_lshl_b32 s28, s28, 10')
    a('s_lshl_b32 s29, s29, 10')
    a(f's_add_u32 s28, s28, {WS_HF:#x}')
    a(f's_add_u32 s29, s29, {WS_HF:#x}')
    a('s_lshl_b32 s35, s20, 7')
    a(f's_add_u32 s35, s35, {WS_FLAGS:#x}')
    a('s_lshl_b32 s36, s23, 2')
    a('v_mov_b32 v10, s36')
    a('v_mov_b32 v11, 1')
    a('v_min_u32 v12, 13, v0')
    a('v_lshlrev_b32 v12, 2, v12')
    srd(a, 12, 50, NB_X)
    for lam in range(1, 4):
        a(f's_xor_b32 s30, s3, {lam}')
        a('s_mul_i32 s30, s30, 12288')
        a(f'v_add_u32 v{4+lam}, s30, v1')
    a('s_mul_i32 s30, s3, 12288')
    a('v_add_u32 v8, s30, v1')
    a('v_and_b32 v9, 15, v0')
    a('v_lshlrev_b32 v9, 1, v9')
    a('v_bfe_u32 v13, v0, 4, 1')
    a('v_add_u32 v9, v9, v13')
    a(f'v_mul_u32_u24 v9, {16*896}, v9')
    a('v_lshrrev_b32 v13, 5, v0')
    a('v_lshl_add_u32 v9, v13, 4, v9')
    a(f's_mul_i32 s30, s33, {32*16*896}')
    a('s_mul_i32 s31, s20, 896')
    a('s_add_u32 s30, s30, s31')
    a('s_lshl_b32 s31, s21, 7')
    a('s_add_u32 s30, s30, s31')
    a('s_and_b32 s31, s3, 1')
    a('s_lshl_b32 s31, s31, 6')
    a('s_add_u32 s30, s30, s31')
    XU = 16
    for i in range(8):
        a(f'v_lshlrev_b32 v{XU+2*i}, 16, v{32+i}')
        a(f'v_and_b32 v{XU+2*i+1}, 0xffff0000, v{32+i}')
    a('s_waitcnt vmcnt(0) lgkmcnt(0)')
    a('s_barrier')
    st(4)
    a('s_cmp_lg_u32 s3, 0')
    a('s_cbranch_scc1 K2_NOFLAG')
    a('s_mov_b64 exec, 1')
    a('buffer_store_dword v11, v10, s[8:11], s35 offen sc1')
    a('s_mov_b64 exec, -1')
    a.label('K2_NOFLAG')
    emit(vsched.get(29, []))
    a('s_cmp_lg_u32 s3, 0')
    a('s_cbranch_scc1 K2_WAITB')
    a('s_mov_b32 s36, 0')
    a.label('K2_POLL')
    a('buffer_load_dword v13, v12, s[8:11], s35 offen sc1')
    a('s_add_u32 s36, s36, 1')
    a('s_waitcnt vmcnt(0)')
    a('v_cmp_ne_u32 vcc, 1, v13')
    a('s_cmp_gt_u32 s36, 400000')
    a('s_cbranch_scc1 K2_WAITB')
    a('s_nop 2')
    a('s_cbranch_vccnz K2_POLL')
    a.label('K2_WAITB')
    a('s_barrier')
    vm.tags = []
    st(6)
    G2 = 192
    HB = 64; RING = 16
    def loadh(k):
        b = HB + 8 * (k % RING); j = k % 7
        if j == 0:
            a(f's_add_u32 s46, s28, s{62+k//7}'); a(f's_add_u32 s47, s29, s{62+k//7}')
        elif j == 4:
            a('s_add_u32 s46, s46, 4096'); a('s_add_u32 s47, s47, 4096')
        vm.op(f'buffer_load_dwordx4 v[{b}:{b+3}], v1, s[8:11], s46 offen offset:{1024*(j%4)} sc1', f'h{k}')
        vm.op(f'buffer_load_dwordx4 v[{b+4}:{b+7}], v1, s[8:11], s47 offen offset:{1024*(j%4)} sc1', f'h{k}')
    PRE = 11
    for k in range(PRE): loadh(k)
    nxt = PRE
    for k in range(28):
        vm.wait(f'h{k}')
        if k == 0: st(7)
        b = HB + 8 * (k % RING); dr = dreg(k)
        order = [(1, 1), (1, 0), (0, 1), (0, 0)]
        for z, (r, c) in enumerate(order):
            d = G2 + 16 * (2 * r + c)
            cc = '0' if k == 0 else f'v[{d}:{d+15}]'
            a(f'v_mfma_f32_32x32x16_bf16 v[{d}:{d+15}], a[{dr+4*c}:{dr+4*c+3}], v[{b+4*r}:{b+4*r+3}], {cc}')
            if z == 0 and nxt < 28 and nxt < k + RING:
                loadh(nxt); nxt += 1
    st(8)
    for lam in (3, 2, 1):
        for q in range(4):
            d = G2 + 16 * lam + 4 * q
            a(f'ds_write_b128 v{4+lam}, v[{d}:{d+3}] offset:{4096*(lam-1)+1024*q}')
    a('s_waitcnt lgkmcnt(0)')
    a('s_barrier')
    RB = 64
    for z in range(12):
        a(f'ds_read_b128 v[{RB+4*z}:{RB+4*z+3}], v8 offset:{1024*z}')
    for lam in range(3):
        a(f's_waitcnt lgkmcnt({4*(2-lam)})')
        for i in range(8):
            a(f'v_pk_add_f32 v[{G2+2*i}:{G2+2*i+1}], v[{G2+2*i}:{G2+2*i+1}], v[{RB+16*lam+2*i}:{RB+16*lam+2*i+1}]')
    for i in range(8):
        a(f'v_pk_fma_f32 v[{G2+2*i}:{G2+2*i+1}], v[{G2+2*i}:{G2+2*i+1}], v[{44+2*i}:{45+2*i}], v[{XU+2*i}:{XU+2*i+1}]')
    for i in range(8):
        a(f'v_cvt_pk_bf16_f32 v{32+i}, v{G2+2*i}, v{G2+2*i+1}')
    for p in range(2):
        a(f'v_permlane32_swap_b32 v{32+4*p}, v{34+4*p}')
        a(f'v_permlane32_swap_b32 v{33+4*p}, v{35+4*p}')
        a(f'buffer_store_dwordx4 v[{32+4*p}:{35+4*p}], v9, s[12:15], s30 offen offset:{32*p}')
    if stamps:
        a('s_waitcnt vmcnt(0)')
        st(9)
    a.label('K2_END')
    a('s_endpgm')
    return a
```

```python
S, D, F = 2048, 448, 1792
WS_MOD   = 0x000000
WS_FLAGS = 0x004000
WS_U     = 0x010000
WS_XF    = 0x200000
WS_TP    = 0x400000
WS_WF    = 0x600000
WS_WDF   = 0xA00000
WS_HF    = 0xC00000
WS_ST    = 0x1300000
WS_G     = 0x1380000
WS_WEFF  = 0x1400000
WS_STAMP = 0x1800000
WS_X1    = 0x1A00000
FLAG_BYTES = 3 * 8192
WS_REG   = 0x003000
WS_SIZE  = 0x10000000
OOB      = 0x7FFF0000
NB_X = S * D * 2
NB_W = S * 225 * 2
NB_WG = D * F * 2
NB_WMOD = D * 6 * D * 2
def s1_of_rho(rho):
    return 64 * (rho // 64) + 32 * ((rho % 64) // 32) + 2 * (rho % 16) + ((rho // 16) % 2)
def slotp_of(kp):
    if kp == 64: return 0
    return kp // 2 if kp % 2 == 0 else 32 + (kp - 1) // 2
def kmap():
    out = [[0] * 8 for _ in range(56)]
    for w in range(4):
        for g in range(4):
            u = 4 * w + g
            for p in range(3):
                for j in range(8): out[14 * w + 4 * p + g][j] = 28 * u + 8 * p + j
            for j in range(4): out[14 * w + 12 + g // 2][4 * (g % 2) + j] = 28 * u + 24 + j
    return out
K0_A0, K0_NA = 0, 128
K0_B0, K0_NB = 128, 42
K0_C0, K0_NC = 176, 65
K0_GRID = K0_C0 + K0_NC
K1_NF, K1_NW, K1_ND, K1_NX = 65, 112, 56, 64
K1_W0 = 72
K1_D0 = K1_W0 + K1_NW
K1_GRID = K1_D0 + K1_NX
GROUPS = {0: [('A', 0, 128), ('B', 128, 170), ('C', 176, 241)], 1: [('fft', 0, 65), ('wx', K1_W0, K1_W0 + 64), ('wf', K1_W0 + 64, K1_D0), ('wd', K1_D0, K1_D0 + K1_ND)]}
```

```python
import sys
sys.path.insert(0, 'gen')
from asmlib import *
from layout import *
import k0, k1, k2, tables

HEADER = open('adaLN_cond__spectral_gfnet__glu_gated_reglu__prompt.s.ref').read().split('; Override launch')[0]

def kd(name, mx, accum=None):
    nv = mx['v'] + 1; na = mx['a'] + 1
    acc = max(4, (nv + 3) // 4 * 4)
    nfv = acc + na if na else nv
    return f'''.amdhsa_kernel {name}
  .amdhsa_next_free_vgpr {nfv}
  .amdhsa_next_free_sgpr {max(mx['s'] + 1, 16)}
  .amdhsa_accum_offset {acc}
  .amdhsa_group_segment_fixed_size 0
  .amdhsa_kernarg_size 96
  .amdhsa_user_sgpr_count 2
  .amdhsa_user_sgpr_kernarg_segment_ptr 1
  .amdhsa_system_sgpr_workgroup_id_x 1
  .amdhsa_float_denorm_mode_32 3
.end_amdhsa_kernel
'''

def build(kernels, tables=''):
    s = HEADER
    for name, a, grid, block, lds in kernels:
        s += f'; @launch kernel={name} grid=({grid},1,1) block=({block},1,1) lds={lds}\n'
    s += '.amdgcn_target "amdgcn-amd-amdhsa--gfx950"\n.text\n'
    kds = ''
    for name, a, grid, block, lds in kernels:
        body = a.finalize()
        s += f'.globl {name}\n.p2align 8\n.type {name},@function\n' + body
        kds += '.p2align 6\n' + kd(name, a.max_regs())
    s += tables + 'CODE_END:\n'
    s += '.section .rodata,"a"\n' + kds
    return s

if __name__ == '__main__':
    stamps = '--stamps' in sys.argv
    exp = ''.join(x[6:] for x in sys.argv if x.startswith('--exp='))
    out = [x for x in sys.argv[1:] if not x.startswith('--')][0]
    ks = [('k0_kernel', k0.gen_k0(stamps), K0_GRID, 512, k0.K0_LDS),
          ('k1_kernel', k1.gen_k1(stamps), K1_GRID, 512, k1.K1_LDS),
          ('k2_kernel', k2.gen_k2(stamps, exp), k2.K2_N, 256, k2.K2_LDS)]
    tb = tables.emit('k1_tbl', tables.k1_table()) + tables.emit('k2_tbl', tables.k2_table())
    open(out, 'w').write(build(ks, tb))
```

```python
from asmlib import *
from layout import *
import struct

XS = 912
RO = 64 * XS
MO = RO + 256
K0_LDS = 57344 + 2048 + 512

def srd(a, d, base, nbytes):
    a(f's_mov_b32 s{d}, s{base}')
    a(f's_mov_b32 s{d+1}, s{base+1}')
    a(f's_mov_b32 s{d+2}, {nbytes:#x}' if isinstance(nbytes, int) else f's_mov_b32 s{d+2}, {nbytes}')
    a(f's_mov_b32 s{d+3}, 0x00020000')

def rb16(a, dst, src):
    a(f'v_cvt_pk_bf16_f32 v{dst}, v{src}, v{src}')
    a(f'v_lshlrev_b32 v{dst}, 16, v{dst}')

def stamp(a, kidx, slot, ws_srd, enable, wgreg='s2', tmp_s=96, tmp_v=(250, 251, 252)):
    if not enable: return
    v0_, v1_, v2_ = tmp_v
    a(f's_memrealtime s[{tmp_s}:{tmp_s+1}]')
    a(f's_memtime s[{tmp_s+2}:{tmp_s+3}]')
    a('s_waitcnt lgkmcnt(0)')
    a(f'v_mov_b32 v{v0_}, s{tmp_s}')
    a(f'v_mov_b32 v{v1_}, s{tmp_s+2}')
    a(f's_lshl_b32 s{tmp_s+2}, {wgreg}, 7')
    a(f's_add_u32 s{tmp_s+2}, s{tmp_s+2}, {WS_STAMP + kidx * 0x10000 + slot * 8:#x}')
    a(f'v_mov_b32 v{v2_}, s{tmp_s+2}')
    a(f'buffer_store_dwordx2 v[{v0_}:{v1_}], v{v2_}, s[{ws_srd}:{ws_srd+3}], 0 offen')

def w_rows(a, kp, wave, vdst, vt0, vt1, st):
    a(f'v_and_b32 v{vt0}, 31, v0')
    a(f'v_lshlrev_b32 v{vt0}, 4, v{vt0}')
    a('v_cmp_gt_u32 vcc, 32, v0')
    for kk in range(2):
        s0, s1 = st + 2 * kk, st + 2 * kk + 1
        a(f's_lshl_b32 s{s0}, {wave}, 8')
        a(f's_add_u32 s{s0}, s{s0}, {kp}')
        if kk: a(f's_add_u32 s{s0}, s{s0}, 128')
        a(f's_sub_u32 s{s1}, 2048, s{s0}')
        a(f's_and_b32 s{s1}, s{s1}, 2047')
        a(f's_mul_i32 s{s0}, s{s0}, 450')
        a(f's_mul_i32 s{s1}, s{s1}, 450')
        a(f'v_mov_b32 v{vdst+kk}, s{s1}')
        a(f'v_mov_b32 v{vt1}, s{s0}')
        a(f'v_cndmask_b32 v{vdst+kk}, v{vdst+kk}, v{vt1}, vcc')
        a(f'v_and_b32 v{vdst+kk}, -16, v{vdst+kk}')
        a(f'v_add_u32 v{vdst+kk}, v{vdst+kk}, v{vt0}')

def gen_k0(stamps=False):
    a = Asm()
    TV = (120, 121, 122)
    a.label('k0_kernel')
    a(f's_cmp_ge_u32 s2, {K0_GRID}')
    a('s_cbranch_scc1 K0_END')
    a('s_load_dwordx2 s[4:5], s[0:1], 0')
    a('s_load_dwordx2 s[6:7], s[0:1], 88')
    a('s_load_dwordx4 s[16:19], s[0:1], 56')
    a('s_load_dwordx4 s[32:35], s[0:1], 8')
    a('s_getpc_b64 s[36:37]')
    a.label('K0_PC')
    a('s_sub_u32 s36, s36, K0_PC-k0_kernel')
    a('s_subb_u32 s37, s37, 0')
    a('s_mov_b32 s38, k1_kernel-k0_kernel')
    a('s_mov_b32 s39, 0x00020000')
    a('v_lshlrev_b32 v1, 4, v0')
    a('buffer_load_dwordx4 v[112:115], v1, s[36:39], 0 offen')
    a('v_lshrrev_b32 v1, 6, v0')
    a('v_and_b32 v0, 63, v0')
    a('v_readfirstlane_b32 s3, v1')
    a('v_lshlrev_b32 v1, 4, v0')
    a('v_and_b32 v2, 15, v0')
    a('v_lshrrev_b32 v3, 4, v0')
    a(f's_cmp_ge_u32 s2, {K0_NA}')
    a('s_cbranch_scc1 K0_B')
    a('s_lshr_b32 s21, s2, 5')
    a('s_lshl_b32 s21, s21, 3')
    a('s_and_b32 s20, s2, 7')
    a('s_add_u32 s21, s21, s20')
    a('s_mul_i32 s23, s21, 896')
    a(f's_mul_i32 s24, s3, {8*28672}')
    a('s_add_u32 s23, s23, s24')
    a(f's_mul_i32 s24, s3, {8*XS}')
    a('s_mov_b32 m0, s24')
    a('s_waitcnt lgkmcnt(0)')
    srd(a, 8, 4, NB_X)
    a('s_mov_b32 exec_hi, 0x00ffffff')
    for r in range(8):
        a('buffer_load_dwordx4 v1, s[8:11], s23 offen lds')
        if r < 7:
            a(f's_add_u32 m0, m0, {XS}')
            a('s_add_u32 s23, s23, 28672')
    a('s_mov_b32 exec_hi, -1')
    srd(a, 12, 6, WS_SIZE)
    stamp(a, 0, 0, 12, stamps, tmp_v=TV)
    a('s_lshr_b32 s22, s2, 2')
    a('s_and_b32 s22, s22, 6')
    a('s_lshr_b32 s20, s3, 2')
    a('s_add_u32 s22, s22, s20')
    a('s_and_b32 s29, s3, 3')
    CT = 80
    a('s_lshl_b32 s24, s29, 4')
    a('v_add_u32 v4, s24, v2')
    a('v_lshrrev_b32 v5, 1, v4')
    a('v_and_b32 v6, 1, v4')
    a('v_cmp_eq_u32 vcc, 1, v4')
    a('v_mov_b32 v7, 32')
    a('v_cndmask_b32 v5, v5, v7, vcc')
    a('v_mov_b32 v7, 0')
    a('v_cndmask_b32 v6, v6, v7, vcc')
    a('v_cvt_f32_u32 v5, v5')
    a('v_cvt_f32_u32 v6, v6')
    a('v_mul_f32 v5, 0x3c800000, v5')
    a('v_mul_f32 v6, 0x3e800000, v6')
    a('v_lshlrev_b32 v7, 3, v3')
    a('v_cvt_f32_u32 v7, v7')
    a('v_fma_f32 v6, v5, v7, v6')
    a('v_mul_f32 v7, 0x42000000, v5')
    a('v_add_f32 v7, v7, v6')
    for j in range(8):
        a(f'v_cos_f32 v{CT+j}, v6')
        a(f'v_cos_f32 v{CT+8+j}, v7')
        if j < 7:
            a('v_add_f32 v6, v6, v5')
            a('v_add_f32 v7, v7, v5')
    a('s_lshl_b32 s24, s3, 3')
    a('v_lshrrev_b32 v4, 3, v0')
    a('v_add_u32 v4, s24, v4')
    a(f'v_mul_u32_u24 v5, {XS}, v4')
    a('v_and_b32 v6, 7, v0')
    a('v_lshl_add_u32 v5, v6, 4, v5')
    a('v_and_b32 v6, 3, v0')
    a('v_lshrrev_b32 v7, 2, v2')
    a('v_lshl_add_u32 v7, v3, 3, v7')
    a(f'v_mul_u32_u24 v8, {XS}, v7')
    a('v_mul_u32_u24 v7, 224, v6')
    a('s_lshl_b32 s25, s22, 3')
    a('v_add3_u32 v8, v8, v7, s25')
    a(f'v_mul_u32_u24 v9, {XS}, v2')
    a('v_mul_u32_u24 v7, 56, v3')
    a('s_mul_i32 s26, s29, 224')
    a('s_add_u32 s26, s26, s25')
    a('v_add3_u32 v9, v9, v7, s26')
    a('s_and_b32 s30, s21, 15')
    a('s_lshl_b32 s30, s30, 2')
    a('s_add_u32 s30, s30, s29')
    a('s_mul_i32 s30, s30, 28672')
    a('s_lshr_b32 s27, s21, 4')
    a('s_lshl_b32 s27, s27, 10')
    a('s_add_u32 s30, s30, s27')
    a('s_lshl_b32 s27, s22, 12')
    a('s_add_u32 s30, s30, s27')
    a(f's_add_u32 s30, s30, {WS_XF:#x}')
    a(f'v_mul_u32_u24 v11, {2*57344}, v3')
    a('s_and_b32 s27, s21, 3')
    a('v_xor_b32 v7, s27, v2')
    a('v_lshl_add_u32 v11, v7, 4, v11')
    a(f's_mul_i32 s26, s29, {8*57344}')
    a('s_lshl_b32 s27, s21, 8')
    a('s_add_u32 s26, s26, s27')
    a('s_lshl_b32 s27, s22, 13')
    a('s_add_u32 s26, s26, s27')
    a(f's_add_u32 s26, s26, {WS_U:#x}')
    a('s_add_u32 s27, s26, 57344')
    a('v_lshlrev_b32 v12, 2, v4')
    a('v_lshlrev_b32 v13, 1, v4')
    a('v_lshlrev_b32 v14, 5, v3')
    a('v_lshlrev_b32 v15, 4, v3')
    a('s_mov_b32 s28, 0x3f803f80')
    for i in range(4): a(f'v_mov_b32 v{16+i}, 0')
    a(f's_waitcnt vmcnt({1 if stamps else 0})')
    stamp(a, 0, 1, 12, stamps, tmp_v=TV)
    XB = 20
    for i in range(7):
        a(f'ds_read_b128 v[{XB+4*i}:{XB+4*i+3}], v5 offset:{128*i}')
    for i in range(7):
        a(f's_waitcnt lgkmcnt({6-i})')
        for j in range(4):
            r = XB + 4 * i + j
            a(f'v_dot2c_f32_bf16 v{16+(j&1)}, s28, v{r}')
            a(f'v_dot2c_f32_bf16 v{18+(j&1)}, v{r}, v{r}')
    a('v_add_f32 v16, v16, v17')
    a('v_add_f32 v18, v18, v19')
    for qp in ('quad_perm:[1,0,3,2]', 'quad_perm:[2,3,0,1]', 'row_half_mirror'):
        a(f'v_add_f32_dpp v16, v16, v16 {qp} row_mask:0xf bank_mask:0xf')
        a(f'v_add_f32_dpp v18, v18, v18 {qp} row_mask:0xf bank_mask:0xf')
    inv = 0x3b124925
    a(f'v_mul_f32 v16, {inv:#x}, v16')
    a(f'v_mul_f32 v18, {inv:#x}, v18')
    a('v_fma_f32 v18, -v16, v16, v18')
    a('v_max_f32 v18, 0, v18')
    a('v_cvt_pk_bf16_f32 v17, -v16, -v16')
    rb16(a, 18, 18)
    a(f'ds_write_b16 v13, v17 offset:{MO}')
    a('v_add_f32 v18, 0x3727c5ac, v18')
    rb16(a, 18, 18)
    a('v_sqrt_f32 v18, v18')
    rb16(a, 18, 18)
    a('v_rcp_f32 v18, v18')
    a(f'ds_write_b32 v12, v18 offset:{RO}')
    a('s_waitcnt lgkmcnt(0)')
    a('s_barrier')
    a('s_cmp_eq_u32 s22, 7')
    a('s_cbranch_scc1 K0_END')
    for ks in range(2):
        for h in range(2):
            a(f'ds_read_b128 v[{20+8*ks+4*h}:{23+8*ks+4*h}], v14 offset:{RO+128*ks+16*h}')
    for ks in range(2):
        a(f'ds_read_b128 v[{36+4*ks}:{39+4*ks}], v15 offset:{MO+64*ks}')
    for ks in range(2):
        for t in range(4):
            for h in range(2):
                b = 44 + 8 * t + 4 * ks + 2 * h
                a(f'ds_read_b64_tr_b16 v[{b}:{b+1}], v8 offset:{ks*32*XS + h*4*XS + t*56}')
        if ks == 0:
            a('s_waitcnt lgkmcnt(10)')
            for p in range(8):
                a(f'v_pk_mul_f32 v[{CT+2*p}:{CT+2*p+1}], v[{CT+2*p}:{CT+2*p+1}], v[{20+2*p}:{21+2*p}]')
    for nh in range(2):
        for hi in range(2):
            a(f'ds_read_b64 v[{96+4*nh+2*hi}:{97+4*nh+2*hi}], v9 offset:{nh*16*XS + hi*32*XS}')
    for p in range(8):
        a(f'v_cvt_pk_bf16_f32 v{20+p}, v{CT+2*p}, v{CT+2*p+1}')
    a('s_waitcnt lgkmcnt(12)')
    a('v_mfma_f32_16x16x32_bf16 v[28:31], v[20:23], v[36:39], 0')
    a('v_mfma_f32_16x16x32_bf16 v[28:31], v[24:27], v[40:43], v[28:31]')
    DT = 80
    for t in range(4):
        a(f'v_mfma_f32_16x16x32_bf16 v[{DT+4*t}:{DT+4*t+3}], v[20:23], v[{44+8*t}:{47+8*t}], v[28:31]')
    a('s_waitcnt lgkmcnt(4)')
    for t in range(4):
        a(f'v_mfma_f32_16x16x32_bf16 v[{DT+4*t}:{DT+4*t+3}], v[24:27], v[{48+8*t}:{51+8*t}], v[{DT+4*t}:{DT+4*t+3}]')
    a('s_waitcnt lgkmcnt(0)')
    a('buffer_store_dwordx4 v[96:99], v1, s[12:15], s30 offen')
    a('buffer_store_dwordx4 v[100:103], v1, s[12:15], s30 offen offset:2048')
    for i in range(4):
        a(f'v_cvt_pk_bf16_f32 v{104+2*i}, v{DT+i}, v{DT+4+i}')
        a(f'v_cvt_pk_bf16_f32 v{105+2*i}, v{DT+8+i}, v{DT+12+i}')
    a('buffer_store_dwordx4 v[104:107], v11, s[12:15], s26 offen')
    a('buffer_store_dwordx4 v[108:111], v11, s[12:15], s27 offen')
    if stamps:
        a('s_waitcnt vmcnt(0)')
        stamp(a, 0, 2, 12, stamps, tmp_v=TV)
    a('s_endpgm')
    a.label('K0_B')
    a(f's_cmp_ge_u32 s2, {K0_B0 + K0_NB}')
    a('s_cbranch_scc1 K0_C')
    a(f's_sub_u32 s20, s2, {K0_B0}')
    a('v_lshrrev_b32 v4, 3, v0')
    a('v_lshlrev_b32 v5, 1, v3')
    a('v_and_b32 v6, 7, v0')
    a('v_xor_b32 v6, v6, v5')
    a('v_mul_u32_u24 v4, 5376, v4')
    a('v_lshl_add_u32 v4, v6, 4, v4')
    a('s_lshl_b32 s22, s20, 7')
    a(f's_mul_i32 s23, s3, {56*5376}')
    a('s_add_u32 s23, s23, s22')
    a(f's_mul_i32 s24, s3, {7*1024}')
    a('s_mov_b32 m0, s24')
    a('s_lshl_b32 s25, s3, 8')
    a('v_lshl_add_u32 v7, v0, 2, s25')
    a('s_waitcnt lgkmcnt(0)')
    srd(a, 8, 18, NB_WMOD)
    srd(a, 28, 16, 896)
    a('buffer_load_dword v8, v7, s[28:31], 0 offen')
    for r in range(7):
        a('buffer_load_dwordx4 v4, s[8:11], s23 offen lds')
        if r < 6:
            a('s_add_u32 m0, m0, 1024')
            a(f's_add_u32 s23, s23, {8*5376}')
    srd(a, 12, 6, WS_SIZE)
    stamp(a, 0, 0, 12, stamps, tmp_v=TV)
    a('s_mul_i32 s21, s20, 37')
    a('s_lshr_b32 s21, s21, 8')
    SO = 57344
    a('v_lshrrev_b32 v10, 2, v0')
    a('v_lshrrev_b32 v11, 3, v0')
    a('v_xor_b32 v11, s3, v11')
    a('v_and_b32 v11, 3, v11')
    a('v_lshlrev_b32 v10, 7, v10')
    a('v_lshl_add_u32 v10, v11, 5, v10')
    a('v_and_b32 v11, 3, v0')
    a('v_lshl_add_u32 v10, v11, 3, v10')
    a('v_lshlrev_b32 v11, 3, v3')
    a('s_mul_i32 s24, s21, 448')
    a('s_lshl_b32 s25, s20, 6')
    a('s_sub_u32 s25, s25, s24')
    a('s_lshl_b32 s26, s3, 4')
    a('s_add_u32 s25, s25, s26')
    a('v_add_u32 v12, s25, v2')
    a('v_mul_u32_u24 v13, 2341, v12')
    a('v_lshrrev_b32 v13, 16, v13')
    a('v_mul_u32_u24 v14, 28, v13')
    a('v_sub_u32 v14, v12, v14')
    a('v_lshl_add_u32 v13, v14, 4, v13')
    a('s_cmp_lt_u32 s21, 3')
    a('s_cselect_b64 vcc, -1, 0')
    a('v_cndmask_b32 v12, v12, v13, vcc')
    a('v_add_u32 v12, s24, v12')
    a('v_lshlrev_b32 v12, 2, v12')
    a(f'v_mov_b32 v13, {OOB:#x}')
    a('v_cmp_gt_u32 vcc, 16, v0')
    a('v_cndmask_b32 v12, v13, v12, vcc')
    a('s_mov_b32 s26, 0')
    a('s_mov_b32 s27, 1.0')
    a('s_cmp_eq_u32 s21, 1')
    a('s_cselect_b32 s26, 1.0, s26')
    a('s_cmp_eq_u32 s21, 4')
    a('s_cselect_b32 s26, 1.0, s26')
    a('s_cmp_eq_u32 s21, 0')
    a('s_cselect_b32 s27, 0x45000000, s27')
    a('s_cmp_eq_u32 s21, 2')
    sc = struct.unpack('<I', struct.pack('<f', 2.0 / (S * D)))[0]
    a(f's_cselect_b32 s27, {sc:#x}, s27')
    a(f's_waitcnt vmcnt({8 if stamps else 7})')
    a('v_lshlrev_b32 v9, 16, v8')
    a('v_and_b32 v8, 0xffff0000, v8')
    for r in (8, 9):
        a(f'v_mul_f32 v{r+6}, 0xbfb8aa3b, v{r}')
        a(f'v_exp_f32 v{r+6}, v{r+6}')
        a(f'v_add_f32 v{r+6}, 1.0, v{r+6}')
        a(f'v_rcp_f32 v{r+6}, v{r+6}')
        a(f'v_mul_f32 v{r}, v{r}, v{r+6}')
    a('v_cvt_pk_bf16_f32 v9, v9, v8')
    a(f'ds_write_b32 v7, v9 offset:{SO}')
    a('s_waitcnt vmcnt(0) lgkmcnt(0)')
    a('s_barrier')
    a('s_cmp_ge_u32 s3, 4')
    a('s_cbranch_scc1 K0_END')
    stamp(a, 0, 1, 12, stamps, tmp_v=TV)
    def rd(ks, base):
        a(f'ds_read_b64 v[{base}:{base+1}], v11 offset:{SO + 64*ks}')
        a(f'ds_read_b64 v[{base+2}:{base+3}], v11 offset:{SO + 64*ks + 32}')
        a(f'ds_read_b64_tr_b16 v[{base+4}:{base+5}], v10 offset:{4096*ks}')
        a(f'ds_read_b64_tr_b16 v[{base+6}:{base+7}], v10 offset:{4096*ks + 2048}')
    base = lambda ks: 20 + 8 * (ks % 8)
    for ks in range(3): rd(ks, base(ks))
    for ks in range(14):
        if ks + 3 < 14:
            rd(ks + 3, base(ks + 3))
            a('s_waitcnt lgkmcnt(12)')
        else:
            a(f's_waitcnt lgkmcnt({4*(13-ks)})')
        b = base(ks)
        c = '0' if ks == 0 else 'v[16:19]'
        a(f'v_mfma_f32_16x16x32_bf16 v[16:19], v[{b}:{b+3}], v[{b+4}:{b+7}], {c}')
    rb16(a, 16, 16)
    a('v_add_f32 v16, s26, v16')
    rb16(a, 16, 16)
    a('v_mul_f32 v16, s27, v16')
    a('buffer_store_dword v16, v12, s[12:15], 0 offen')
    if stamps:
        a('s_waitcnt vmcnt(0)')
        stamp(a, 0, 2, 12, stamps, tmp_v=TV)
    a('s_endpgm')
    a.label('K0_C')
    a(f's_cmp_lt_u32 s2, {K0_C0}')
    a('s_cbranch_scc1 K0_Z')
    a(f's_sub_u32 s20, s2, {K0_C0}')
    a('s_lshr_b32 s21, s20, 3')
    a('s_lshl_b32 s21, s21, 13')
    a('s_lshl_b32 s22, s3, 10')
    a('s_add_u32 s21, s21, s22')
    a('s_add_u32 s21, s21, k1_kernel-k0_kernel')
    a('s_mov_b32 s38, CODE_END-k0_kernel')
    a('buffer_load_dwordx4 v[116:119], v1, s[36:39], s21 offen')
    w_rows(a, 's20', 's3', 4, 6, 7, 24)
    a('s_lshl_b32 s28, s3, 12')
    a('s_mov_b32 m0, s28')
    a('s_waitcnt lgkmcnt(0)')
    srd(a, 40, 32, NB_W)
    srd(a, 44, 34, NB_W)
    for kk in range(2):
        for arr in range(2):
            a(f'buffer_load_dwordx4 v{4+kk}, s[{40+4*arr}:{43+4*arr}], 0 offen lds')
            if not (kk and arr): a('s_add_u32 m0, m0, 1024')
    srd(a, 12, 6, WS_SIZE)
    stamp(a, 0, 0, 12, stamps, tmp_v=TV)
    WA, WW, PK = 24, 40, 80
    a('v_lshlrev_b32 v8, 7, v3')
    a('v_lshl_add_u32 v8, v2, 1, v8')
    a('v_sub_u32 v9, 288, v8')
    a('v_max_i32 v9, 0, v9')
    a('v_cmp_eq_u32 vcc, 3, v3')
    a('v_add_u32 v11, 64, v8')
    a('v_sub_u32 v12, 832, v8')
    a('v_cndmask_b32 v11, v11, v12, vcc')
    a('v_add_u32 v12, 96, v8')
    a('v_sub_u32 v13, 800, v8')
    a('v_cndmask_b32 v12, v12, v13, vcc')
    a('v_mov_b32 v13, 0')
    a('v_bfrev_b32 v14, 1')
    a('v_cndmask_b32 v20, v13, v14, vcc')
    a('v_cmp_eq_u32 s[48:49], 0, v0')
    a('v_cmp_eq_u32 s[50:51], 48, v0')
    a('v_cndmask_b32 v21, v13, v14, s[48:49]')
    for kk in range(2):
        w = WA + 5 * kk
        a(f's_and_b32 s29, s{24+2*kk}, 15')
        a('s_add_u32 s29, s29, s28')
        a(f's_and_b32 s30, s{25+2*kk}, 15')
        a('s_add_u32 s30, s30, s28')
        a('s_add_u32 s30, s30, 512')
        a('v_mov_b32 v15, s29')
        a('v_mov_b32 v16, s30')
        a('v_cndmask_b32 v17, v15, v16, vcc')
        a(f'v_add_u32 v{w+1}, v17, v11')
        a(f'v_add_u32 v{w+2}, v17, v12')
        a('v_add_u32 v15, 448, v15')
        a(f'v_cndmask_b32 v{w+4}, v15, v16, s[48:49]')
        a(f'v_add_u32 v{w}, s29, v8')
        a(f'v_add_u32 v{w+3}, s30, v9')
    a('s_lshl_b32 s29, s20, 15')
    a('s_add_u32 s29, s29, s28')
    a(f's_add_u32 s29, s29, {WS_WEFF:#x}')
    a(f's_waitcnt vmcnt({1 if stamps else 0})')
    for kk in range(2):
        w = WA + 5 * kk
        for arr in range(2):
            b = WW + 18 * kk + 9 * arr; of = 2048 * kk + 1024 * arr
            a(f'ds_read_u16 v{b+0}, v{w} offset:{of}')
            a(f'ds_read_u16 v{b+1}, v{w} offset:{of+32}')
            a(f'ds_read_u16 v{b+2}, v{w+1} offset:{of}')
            a(f'ds_read_u16 v{b+3}, v{w+2} offset:{of}')
            for i in range(4):
                a(f'ds_read_u16 v{b+4+i}, v{w+3} offset:{of+32*(3-i)}')
            a(f'ds_read_u16 v{b+8}, v{w+4} offset:{of}')
    for kk in range(2):
        a(f's_waitcnt lgkmcnt({15 if kk == 0 else 0})')
        b = WW + 18 * kk; o = PK + 8 * kk
        for i in range(8): a(f'v_lshl_or_b32 v{o+i}, v{b+9+i}, 16, v{b+i}')
        a(f'v_lshl_or_b32 v15, v{b+17}, 16, v{b+8}')
        for i in range(4, 8): a(f'v_xor_b32 v{o+i}, v14, v{o+i}')
        a(f'buffer_store_dwordx4 v[{o+4}:{o+7}], v1, s[12:15], s29 offen offset:{2048*kk+1024}')
        for i in (2, 3): a(f'v_xor_b32 v{o+i}, v20, v{o+i}')
        a('v_xor_b32 v15, v21, v15')
        a('v_lshlrev_b32 v16, 16, v15')
        a('v_and_b32 v17, 0xffff0000, v15')
        for i, m in ((0, 's[48:49]'), (2, 's[50:51]')):
            a(f'v_lshlrev_b32 v18, 16, v{o+i}')
            a(f'v_and_b32 v19, 0xffff0000, v{o+i}')
            a('v_pk_add_f32 v[18:19], v[18:19], v[16:17]')
            a('v_pk_mul_f32 v[18:19], v[18:19], 0.5 op_sel_hi:[1,0]')
            a('v_cvt_pk_bf16_f32 v18, v18, v19')
            a(f'v_cndmask_b32 v{o+i}, v{o+i}, v18, {m}')
        a(f'buffer_store_dwordx4 v[{o}:{o+3}], v1, s[12:15], s29 offen offset:{2048*kk}')
    if stamps:
        a('s_waitcnt vmcnt(0)')
        stamp(a, 0, 2, 12, stamps, tmp_v=TV)
    a('s_endpgm')
    a.label('K0_Z')
    a(f's_cmp_lg_u32 s2, {K0_B0 + K0_NB}')
    a('s_cbranch_scc1 K0_END')
    a('s_waitcnt lgkmcnt(0)')
    srd(a, 12, 6, WS_SIZE)
    for q in range(4): a(f'v_mov_b32 v{4+q}, 0')
    a('s_mul_i32 s20, s3, 3072')
    a(f's_add_u32 s20, s20, {WS_FLAGS:#x}')
    for q in range(3): a(f'buffer_store_dwordx4 v[4:7], v1, s[12:15], s20 offen offset:{1024*q}')
    a.label('K0_END')
    a('s_endpgm')
    return a
```

```python
from asmlib import *
from layout import *
from k0 import srd, rb16, stamp

K2_N = 224
AT_BYTES = 57 * 2048
R2O = AT_BYTES
RT = R2O + 512
RA = RT + 16384
K2_LDS = RA + 24576
JT = 8192

class Trk:
    def __init__(self, a, name, mx): self.a = a; self.tags = []; self.name = name; self.mx = mx; self.done = -1; self.waited = set()
    def op(self, text, tag=None):
        assert tag not in self.waited, tag
        self.a(text); self.tags.append(tag)
    def wait(self, *tags):
        idx = [i for i, t in enumerate(self.tags) if t in tags]
        assert idx, tags
        self.waited.update(tags)
        last = max(idx)
        if last <= self.done: return
        n = min(len(self.tags) - 1 - last, self.mx)
        self.done = len(self.tags) - 1 - n
        self.a(f's_waitcnt {self.name}({n})')
    def all(self):
        self.done = len(self.tags) - 1

def ids(a):
    a('s_and_b32 s18, s2, 7')
    a('s_lshr_b32 s19, s2, 3')
    a('s_mul_i32 s20, s19, 37')
    a('s_lshr_b32 s20, s20, 8')
    a('s_mul_i32 s21, s20, 7')
    a('s_sub_u32 s21, s19, s21')
    a('s_lshr_b32 s22, s18, 1')
    a('s_lshl_b32 s22, s22, 2')
    a('s_add_u32 s20, s20, s22')
    a('s_and_b32 s22, s18, 1')
    a('s_mul_i32 s23, s22, 7')
    a('s_add_u32 s23, s23, s21')

DEF = dict(R=4, nB1=4, nK=4, n0=3, n1=5, f1=-1, g1=0, g2=3, b0=12, rate=3.5, fa=3, win=14, pb=6, w0=10, fb=0, cb=0, ca=0, qa=8, qd=4, sc=1.0, st='0123456789abcdef', p1=26, c1=24, gw=8, pa=8, ba=3, r0=3.5, sx='')

def gen_k2(stamps=False, exp=''):
    P = dict(DEF)
    for kv in exp.split(','):
        if '=' in kv:
            k_, v_ = kv.split('='); P[k_] = v_ if k_ in ('st', 'sx') else float(v_) if '.' in v_ else int(v_)
    a = Asm(); vm = Trk(a, 'vmcnt', 63); lg = Trk(a, 'lgkmcnt', 15)
    TV = (60, 61, 62)
    tail = []
    def st(slot, force=False):
        if stamps and (force or f'{slot:x}' in P['st']):
            stamp(a, 2, slot, 8, True, tmp_v=TV); vm.tags.append('stamp'); lg.all()
    def check(tag, voff, soff, name, pre=()):
        vm.wait(tag)
        a('v_cmp_ne_u32 vcc, 1, v37')
        a('s_nop 1')
        a(f's_cbranch_vccnz {name}_S')
        a.label(f'{name}_OK')
        tail.extend([f'{name}_S:'] + list(pre) + ['s_mov_b32 s36, 0', f'{name}_L:',
            f'buffer_load_dword v37, {voff}, s[8:11], {soff} offen sc1', 's_add_u32 s36, s36, 1', 's_waitcnt vmcnt(0)',
            'v_cmp_ne_u32 vcc, 1, v37', 's_cmp_gt_u32 s36, 400000', f's_cbranch_scc1 {name}_OK', 's_nop 1',
            f's_cbranch_vccnz {name}_L', f's_branch {name}_OK'])
    def emit(lst):
        for kind, text, tag in lst:
            if kind == 'x': a(text)
            elif kind == 'v': vm.op(text, tag)
            elif kind == 'l': lg.op(text, tag)
            elif kind == 'wv': vm.wait(tag)
            elif kind == 'wl': lg.wait(tag)
            elif kind == 'st': st(tag)
            elif kind == 'f': text()
    X_ = lambda lst: [('x', t, None) for t in lst]
    a.label('k2_kernel')
    a(f's_cmp_ge_u32 s2, {K2_N}')
    a('s_cbranch_scc1 K2_END')
    a('s_load_dwordx2 s[4:5], s[0:1], 88')
    a('s_load_dwordx2 s[50:51], s[0:1], 72')
    a('v_lshrrev_b32 v1, 6, v0')
    a('v_and_b32 v0, 63, v0')
    a('v_readfirstlane_b32 s3, v1')
    a('v_lshlrev_b32 v1, 4, v0')
    a('s_getpc_b64 s[6:7]')
    a.label('K2_PC')
    a('s_add_u32 s6, s6, k2_tbl-K2_PC')
    a('s_addc_u32 s7, s7, 0')
    srd(a, 12, 6, 16384)
    a('s_lshl_b32 s16, s3, 12')
    a(f's_add_u32 s17, s16, {RT}')
    a('s_mov_b32 m0, s17')
    ids(a)
    for q in range(4):
        vm.op(f'buffer_load_dwordx4 v1, s[12:15], s16 offen offset:{1024*q} lds', 'R')
    a('s_and_b32 s40, s23, 3')
    a('s_lshr_b32 s41, s23, 2')
    a('s_cmp_eq_u32 s41, 3')
    a('s_cselect_b32 s42, 1, 0')
    a('s_lshl_b32 s40, s40, s42')
    a('s_mul_i32 s40, s40, 28672')
    a('s_lshl_b32 s41, s41, 13')
    a('s_add_u32 s40, s40, s41')
    a('s_cmp_ge_u32 s23, 12')
    a('s_cselect_b32 s41, 7, 1')
    a('s_lshl_b32 s41, s41, 12')
    a(f's_mul_i32 s26, s20, {4*28672}')
    a('s_add_u32 s40, s40, s26')
    a('s_lshr_b32 s42, s3, 1')
    a('s_mul_i32 s42, s42, s41')
    a('s_and_b32 s43, s3, 1')
    a('s_lshl_b32 s43, s43, 11')
    a('s_add_u32 s42, s42, s43')
    a('s_add_u32 s42, s42, s40')
    a(f's_add_u32 s42, s42, {WS_TP:#x}')
    a('s_lshl_b32 s43, s3, 11')
    a(f's_add_u32 m0, s43, {JT}')
    a('s_lshl_b32 s43, s3, 10')
    a('s_add_u32 s43, s43, s40')
    a(f's_add_u32 s43, s43, {WS_XF:#x}')
    a('s_add_u32 s44, s43, s41')
    a('s_mul_i32 s25, s3, 28672')
    a('s_add_u32 s26, s26, s25')
    a(f's_add_u32 s24, s26, {WS_TP:#x}')
    a(f's_add_u32 s26, s26, {WS_XF:#x}')
    a('s_waitcnt lgkmcnt(0)')
    srd(a, 8, 4, WS_SIZE)
    XA = 200
    st(0)
    for q in range(2): vm.op(f'buffer_load_dwordx4 v1, s[8:11], s42 offen offset:{1024*q} lds', 'J')
    vm.op('buffer_load_dwordx4 a[248:251], v1, s[8:11], s43 offen', 'JX')
    vm.op('buffer_load_dwordx4 a[252:255], v1, s[8:11], s44 offen', 'JX')
    TL = (0, 1, 6) if P['R'] == 12 else (6,)
    def load_tile(ti):
        t = TL[ti]
        out = X_([f's_add_u32 m0, s25, {4096*t}', f's_add_u32 s46, s24, {4096*t}', f's_add_u32 s47, s26, {4096*t}'])
        for q in range(4):
            out.append(('v', f'buffer_load_dwordx4 v1, s[8:11], s46 offen offset:{1024*q} lds', f't{ti}'))
        for n in range(4):
            out.append(('v', f'buffer_load_dwordx4 a[{XA+16*ti+4*n}:{XA+16*ti+4*n+3}], v1, s[8:11], s47 offen offset:{1024*n}', f'x{ti}'))
        return out
    a('v_and_b32 v2, 15, v0')
    a('v_lshrrev_b32 v3, 4, v0')
    a('s_lshl_b32 s28, s23, 2')
    a('s_add_u32 s28, s28, s3')
    a(f's_mul_i32 s27, s28, {58*1024}')
    a(f's_add_u32 s27, s27, {WS_WF:#x}')
    RED = [7 * q + z for z in TL for q in range(4)]
    CH = [[2, 3], [4, 5]] if P['R'] == 12 else [[0], [1], [2, 3], [4, 5]]
    SPL = [7 * q + z for ch in CH for z in ch for q in range(4)]
    KORD = RED + SPL + [28]
    wreg = lambda k: 8 * KORD.index(k)
    def load_w(k):
        out = X_([f's_add_u32 s37, s27, {2048*k}'])
        for m in range(2):
            r = wreg(k) + 4 * m
            out.append(('v', f'buffer_load_dwordx4 a[{r}:{r+3}], v1, s[8:11], s37 offen offset:{1024*m}', f'w{k}'))
        return out
    LW = lambda i0, i1: sum([load_w(k) for k in KORD[i0:i1]], [])
    SEL = 8
    a('v_lshrrev_b32 v5, 2, v2')
    a('v_cmp_eq_u32 vcc, v5, v3')
    a('v_and_b32 v5, 1, v0')
    a('v_lshlrev_b32 v5, 4, v5')
    a('v_mov_b32 v6, 0x3f00')
    a('v_lshlrev_b32 v6, v5, v6')
    a('v_mov_b32 v7, 0')
    a('v_cndmask_b32 v6, v7, v6, vcc')
    a(f'v_mov_b32 v26, {OOB:#x}')
    a('v_lshlrev_b32 v5, 3, v2')
    a('v_cndmask_b32 v26, v26, v5, vcc')
    a('v_and_b32 v5, 2, v0')
    a('v_cmp_eq_u32 vcc, 0, v5')
    a(f'v_cndmask_b32 v{SEL}, v7, v6, vcc')
    a(f'v_cndmask_b32 v{SEL+1}, v6, v7, vcc')
    a(f'v_mov_b32 v{SEL+2}, v{SEL}')
    a(f'v_mov_b32 v{SEL+3}, v{SEL+1}')
    for q in range(2):
        a(f'v_lshlrev_b32 v5, 2, v{SEL+q}')
        a('v_and_b32 v5, 0x80008000, v5')
        a(f'v_or_b32 v{SEL+4+q}, v5, v{SEL+q}')
    a('v_lshrrev_b32 v33, 3, v0')
    a('v_lshlrev_b32 v33, 6, v33')
    a('v_and_b32 v5, 3, v0')
    a('v_lshl_add_u32 v33, v5, 4, v33')
    a('v_bfe_u32 v5, v0, 2, 1')
    a('v_lshl_add_u32 v33, v5, 3, v33')
    a('v_add_u32 v4, s25, v33')
    a(f'v_add_u32 v23, {RT}, v1')
    a('v_add_u32 v24, s17, v1')
    a('v_lshlrev_b32 v5, 4, v2')
    a('v_lshl_add_u32 v25, v3, 11, v5')
    a('v_add_u32 v14, s25, v25')
    a('v_lshrrev_b32 v6, 1, v3')
    a('v_lshl_add_u32 v15, v6, 11, v5')
    a('v_and_b32 v6, 1, v3')
    a('v_lshl_add_u32 v15, v6, 3, v15')
    a('v_add_u32 v15, s25, v15')
    for q in range(4): a(f'v_mov_b32 v{28+q}, 0x3f803f80')
    a('s_lshl_b32 s45, s20, 4')
    a('s_add_u32 s45, s45, s23')
    a('s_lshl_b32 s48, s45, 10')
    a('s_lshl_b32 s45, s45, 13')
    a('s_lshl_b32 s29, s3, 8')
    a('s_add_u32 s45, s45, s29')
    a(f's_add_u32 s45, s45, {WS_X1:#x}')
    a('s_lshl_b32 s29, s3, 7')
    a('s_add_u32 s48, s48, s29')
    a(f's_add_u32 s48, s48, {WS_ST:#x}')
    a('s_mov_b32 s52, 0xaaaaaaaa')
    a('s_mov_b32 s53, 0xaaaaaaaa')
    a('s_mov_b32 s54, 0xcccccccc')
    a('s_mov_b32 s55, 0xcccccccc')
    for ti in range(len(TL)): emit(load_tile(ti))
    vm.wait('J')
    a('s_barrier')
    if 'FF' not in exp and 'GG' not in exp: st(1)
    R1 = 64
    ACC, PK, TT, TAB = 128, 160, 176, 192
    RJ = ACC + 16
    def rdT(buf, addr, off, tag):
        b = TAB + 16 * buf
        return [('l', f'ds_read_b64_tr_b16 v[{b+4*ks+2*h}:{b+4*ks+2*h+1}], {addr} offset:{off+1024*ks+512*h}', tag) for ks in range(4) for h in range(2)]
    def unit(e, X, tb, rr):
        E = f'v[{e}:{e+3}]'; O = f'v[{e+4}:{e+7}]'
        TA = lambda ks: f'v[{tb+4*ks}:{tb+4*ks+3}]'
        RR = lambda ks: f'v[{rr+4*ks}:{rr+4*ks+3}]'
        return [f'v_mfma_f32_16x16x32_bf16 {E}, v[{SEL}:{SEL+3}], {X}, 0',
                f'v_mfma_f32_16x16x32_bf16 {O}, v[{SEL+2}:{SEL+5}], {X}, 0',
                f'v_mfma_f32_16x16x32_bf16 {E}, {TA(0)}, {RR(0)}, {E}',
                f'v_mfma_f32_16x16x32_bf16 {O}, {TA(2)}, {RR(2)}, {O}',
                f'v_mfma_f32_16x16x32_bf16 {E}, {TA(1)}, {RR(1)}, {E}',
                f'v_mfma_f32_16x16x32_bf16 {O}, {TA(3)}, {RR(3)}, {O}']
    def bfly(e, T, pk):
        ops = []
        for q in range(4):
            ops += [f'v_add_f32 v{T+q}, v{e+q}, v{e+4+q}', f'v_sub_f32 v{T+4+q}, v{e+q}, v{e+4+q}']
        for q in range(2):
            ops += [f'v_cvt_pk_bf16_f32 v{pk+q}, v{T+2*q}, v{T+2*q+1}', f'v_cvt_pk_bf16_f32 v{pk+4+q}, v{T+4+2*q}, v{T+5+2*q}']
        return X_(ops)
    for q in range(4): lg.op(f'ds_read_b128 v[{RJ+4*q}:{RJ+4*q+3}], v24 offset:{1024*q}', 'RJ')
    emit(rdT(2, 'v33', JT, 'JA') + rdT(3, 'v33', JT + 4096, 'JB'))
    a('v_and_b32 v5, 31, v0')
    a('v_lshlrev_b32 v20, 4, v5')
    a('v_lshrrev_b32 v6, 5, v0')
    a('v_lshl_add_u32 v16, v6, 11, v20')
    a('v_add_u32 v17, 57344, v16')
    a(f'v_add_u32 v20, {56*2048}, v20')
    a('s_lshl_b32 s29, s3, 9')
    a('v_add_u32 v21, s29, v20')
    a('s_lshl_b32 s29, s3, 7')
    a(f's_add_u32 s29, s29, {R2O}')
    a('v_lshl_add_u32 v22, v5, 2, s29')
    a('v_mul_u32_u24 v27, 7168, v6')
    a('v_lshl_add_u32 v27, v5, 3, v27')
    uA = unit(ACC, 'a[248:251]', TAB + 32, RJ); uB = unit(ACC + 8, 'a[252:255]', TAB + 48, RJ)
    job = [('wv', None, 'JX')] + X_(uA[:2] + uB[:2]) + [('wl', None, 'JA')] + X_(uA[2:]) + [('wl', None, 'JB')]
    r1 = [('l', f'ds_read_b128 v[{R1+4*q}:{R1+4*q+3}], v23 offset:{1024*q}', 'R') for q in range(16)]
    for i, m in enumerate(uB[2:]): job += X_([m]) + r1[2*i:2*i+2]
    job += bfly(ACC, TT, PK) + bfly(ACC + 8, TT + 8, PK + 2)
    w0 = LW(0, P['n0'])
    for i, x in enumerate(job): emit([x] + w0[i * len(w0) // len(job):(i + 1) * len(w0) // len(job)])
    SJ = TAB + 48
    for hi in range(2):
        P_ = f'v[{PK+4*hi}:{PK+4*hi+3}]'
        vm.op(f'buffer_store_dwordx4 {P_}, v25, s[8:11], s45 offen offset:{1024*hi} sc1', 'js')
        a(f'v_mfma_f32_16x16x32_bf16 v[{SJ+8*hi}:{SJ+8*hi+3}], {P_}, {P_}, 0')
        a(f'v_mfma_f32_16x16x32_bf16 v[{SJ+8*hi+4}:{SJ+8*hi+7}], v[28:31], {P_}, 0')
    emit(r1[8:])
    for hi in range(2):
        q = SJ + 8 * hi
        a(f'v_cndmask_b32 v{q}, v{q}, v{q+1}, s[52:53]')
        a(f'v_cndmask_b32 v{q+2}, v{q+2}, v{q+3}, s[52:53]')
        a(f'v_cndmask_b32 v{q+5}, v{q}, v{q+2}, s[54:55]')
        vm.op(f'buffer_store_dwordx2 v[{q+4}:{q+5}], v26, s[8:11], s48 offen offset:{512*hi} sc1', 'js')
    st(2)
    flg = X_(['s_mul_i32 s29, s28, 37', 's_lshr_b32 s29, s29, 9', 's_mul_i32 s29, s29, 72', 's_lshl_b32 s30, s28, 2', 's_add_u32 s29, s29, s30',
              'v_mov_b32 v35, 1', f'v_mov_b32 v36, {OOB:#x}', 'v_writelane_b32 v36, s29, 0',
              'v_min_u32 v32, 55, v0', 'v_mul_u32_u24 v34, 37, v32', 'v_lshrrev_b32 v34, 9, v34', 'v_mul_u32_u24 v34, 72, v34', 'v_lshl_add_u32 v32, v32, 2, v34',
              'v_min_u32 v34, 13, v0', 's_lshl_b32 s29, s3, 7', 'v_lshl_add_u32 v34, v34, 2, s29',
              's_lshl_b32 s35, s20, 9', f's_add_u32 s35, s35, {WS_FLAGS:#x}', 's_add_u32 s56, s35, 8192', 's_add_u32 s57, s35, 16384'])
    setflag = lambda so, tag: [('wv', None, tag), ('v', f'buffer_store_dword v35, v36, s[8:11], {so} offen sc1', 'fl')]
    tb = {0: 0, 1: 1, 6: 2}
    units = ([(tt, n) for n in range(4) for tt in range(2)] if P['R'] == 12 else []) + [(len(TL) - 1, n) for n in range(4)]
    side = {}
    def spread(lst, u0, u1):
        k = len(lst); m = u1 - u0
        for i, x in enumerate(lst): side.setdefault(u0 + i * m // k, []).append(x)
    NPRE = P['n0'] + P['n1']
    spread(flg, 0, 2)
    spread(LW(P['n0'], NPRE), 0, len(units))
    rdO = lambda ti: rdT(tb[TL[ti]], 'v4', 4096 * TL[ti], f'T{ti}')
    if P['R'] == 12: spread([('wv', None, 'x2')] + rdO(2), 5, 8)
    if P['f1'] < 0: spread(setflag('s35', 'js'), len(units) + P['f1'], len(units) + P['f1'] + 1)
    def post(ui):
        ti, n = units[ui]; t = TL[ti]
        e = ACC + 8 * (ui % 4)
        grp = (ui // 2) % 2 if t < 6 else ui % 2
        b = PK + 8 * grp
        ops = bfly(e, TT + 8 * (ui % 2), b + (2 * t if t < 6 else 0))
        if t == 1:
            ops.append(('l', f'ds_write_b128 v14, v[{b}:{b+3}] offset:{256*n}', 'aw'))
            ops.append(('l', f'ds_write_b128 v14, v[{b+4}:{b+7}] offset:{256*n+1024}', 'aw'))
        elif t == 6:
            ops.append(('l', f'ds_write_b64 v15, v[{b}:{b+1}] offset:{24576+256*n}', 'aw'))
            ops.append(('l', f'ds_write_b64 v15, v[{b+4}:{b+5}] offset:{24576+256*n+1024}', 'aw'))
        return ops
    LAG = 2
    l0 = min(1, len(TL) - 1)
    vm.wait(f't{l0}')
    for ti in range(l0 + 1): emit(rdO(ti))
    vm.wait(f'x{l0}')
    for ui, (ti, n) in enumerate(units):
        if n == 0: lg.wait(f'T{ti}')
        mf = unit(ACC + 8 * (ui % 4), f'a[{XA+16*ti+4*n}:{XA+16*ti+4*n+3}]', TAB + 16 * tb[TL[ti]], R1 + 16 * n)
        fill = (post(ui - LAG) if ui >= LAG else []) + side.get(ui, [])
        k = len(fill)
        for i, m in enumerate(mf):
            a(m)
            emit(fill[i * k // 6:(i + 1) * k // 6])
    for ui in range(len(units) - LAG, len(units)): emit(post(ui))
    a('s_waitcnt lgkmcnt(0)'); lg.all()
    a('s_barrier')
    st(3)
    GT = {0: 128, 2: 160, 1: 192, 3: 224}
    BF = 64
    SA = 112
    nB1 = P['nB1']
    def two(ks, r0, r1, skew):
        o = [(k, r) for k in ks[:len(ks) - skew] for r in (r0, r1)]
        return o + [(k, r0) for k in ks[len(ks) - skew:]] + [(k, r1) for k in ks[len(ks) - skew:]]
    nK = P['nK']
    seq = two(RED, 0, 2, 0) + two(RED[:nB1], 1, 3, 0) + [(k, r) for k in SPL[:nK] for r in (0, 2, 1, 3)]
    seq += two(SPL[nK:] + [28], 0, 2, 2) + two(RED[nB1:] + [28] + SPL[nK:], 1, 3, 4)
    assert len(seq) == 116
    last_use = {k: max(i for i, f in enumerate(seq) if f[0] == k) for k in KORD}
    first_use = {k: min(i for i, f in enumerate(seq) if f[0] == k) for k in KORD}
    done = {r: max(i for i, f in enumerate(seq) if f[1] == r) for r in range(4)}
    def baddr(k, rt):
        if k < 28: return f'v{16 + k // 14} offset:{4096*(k%14)+512*rt}'
        return f'v20 offset:{512*rt}'
    breg = lambda i: BF + 4 * (i % 12)
    rdB = lambda i: ('l', f'ds_read_b128 v[{breg(i)}:{breg(i)+3}], {baddr(*seq[i])}', f'b{i}')
    NS = 232
    fill = [[] for _ in range(NS + 1)]
    def put(lst, s0, s1):
        k = len(lst); m = s1 - s0
        for i, x in enumerate(lst): fill[min(s0 + i * m // k, NS)].append(x)
    AHEAD = 8
    released = set(RED)
    rel = lambda ks: ('f', lambda: released.update(ks), None)
    fx = first_use[SPL[0]]; fa = first_use[28]
    GAP = P['R'] == 4
    if P['f1'] >= 0: put(setflag('s35', 'js') + ([('st', None, 1)] if 'FF' in exp else []), P['f1'], P['f1'] + 1)
    poll1 = [('v', 'buffer_load_dword v37, v32, s[8:11], s35 offen sc1', 'p1')]
    chk1 = [('f', lambda: check('p1', 'v32', 's35', 'K2_P1'), None), ('st', None, 4)]
    x1s = X_(['s_lshl_b32 s29, s20, 14', 's_lshl_b32 s30, s3, 8', 's_add_u32 s30, s30, s29', f's_add_u32 s30, s30, {WS_ST:#x}', 's_add_u32 s31, s30, 4096',
              's_lshl_b32 s29, s20, 17', 's_lshl_b32 s49, s3, 13', 's_add_u32 s49, s49, s29', f's_add_u32 s49, s49, {WS_X1:#x}'])
    def load_x1(z, c):
        return X_([f's_add_u32 m0, s25, {4096*z}', f's_add_u32 s46, s49, {32768*(z>>1)+4096*(z&1)}']) + \
               [('v', f'buffer_load_dwordx4 v1, s[8:11], s46 offen offset:{1024*q} sc1 lds', f'c{c}') for q in range(4)]
    load_sd = [('v', f'buffer_load_dwordx2 v[{SA+2*j}:{SA+2*j+1}], v27, s[8:11], s{30+j//4} offen offset:{1024*(j%4)} sc1', 'sd') for j in range(7)]
    bar = {}
    for c, ch in enumerate(CH):
        bar[c] = 2 * (first_use[ch[0]] - P['ba']) - 1 if (c or not GAP) else 2 * fx - 1
    bx = bar[len(CH) - 1] + 1
    inv = 0x3b124925
    fin = [('wv', None, 'sd')]
    for (d, s_) in ((0, 2), (4, 6), (8, 10), (0, 4), (8, 12), (0, 8)):
        fin += X_([f'v_add_f32 v{SA+d}, v{SA+d}, v{SA+s_}', f'v_add_f32 v{SA+d+1}, v{SA+d+1}, v{SA+s_+1}'])
    fin += X_([f'v_mov_b32 v{SA+2}, v{SA}', f'v_mov_b32 v{SA+3}, v{SA+1}', 'v_mov_b32 v31, 0',
               f'v_permlane32_swap_b32 v{SA}, v{SA+2}', f'v_permlane32_swap_b32 v{SA+1}, v{SA+3}',
               f'v_add_f32 v{SA}, v{SA}, v{SA+2}', f'v_add_f32 v{SA+2}, v{SA+1}, v{SA+3}',
               f'v_mul_f32 v{SA}, {inv:#x}, v{SA}', f'v_mul_f32 v{SA+2}, {inv:#x}, v{SA+2}',
               f'v_fma_f32 v{SA+2}, -v{SA}, v{SA}, v{SA+2}', f'v_max_f32 v{SA+2}, 0, v{SA+2}',
               f'v_cvt_pk_bf16_f32 v28, -v{SA}, -v{SA}', f'v_cvt_pk_bf16_f32 v{SA+2}, v{SA+2}, v{SA+2}',
               f'v_lshlrev_b32 v{SA+2}, 16, v{SA+2}', f'v_add_f32 v{SA+2}, 0x3727c5ac, v{SA+2}',
               f'v_cvt_pk_bf16_f32 v{SA+2}, v{SA+2}, v{SA+2}', f'v_lshlrev_b32 v{SA+2}, 16, v{SA+2}',
               f'v_sqrt_f32 v{SA+2}, v{SA+2}', 's_nop 0',
               f'v_cvt_pk_bf16_f32 v30, v{SA+2}, v{SA+2}', f'v_cvt_pk_bf16_f32 v29, -v{SA}, v{SA+2}',
               f'v_lshlrev_b32 v{SA+2}, 16, v30', f'v_rcp_f32 v{SA+2}, v{SA+2}'])
    fin += [('l', 'ds_write_b128 v21, v[28:31]', 'st')] + X_([f'v_mul_f32 v{SA+2}, v{SA+2}, v{SA+2}']) + [('l', f'ds_write_b32 v22, v{SA+2}', 'st')]
    fs = bx - 19
    put(fin + [('wl', None, 'st')], fs, fs + 17)
    wd_setup = X_(['s_mul_i32 s38, s21, 112', 's_mul_i32 s31, s3, 28', 's_add_u32 s38, s38, s31', 's_lshl_b32 s38, s38, 11',
                   f's_add_u32 s38, s38, {WS_WDF:#x}', 's_and_b32 s32, s3, 1', 's_lshl_b32 s32, s32, 10', 's_lshr_b32 s31, s3, 1', 's_lshl_b32 s31, s31, 8',
                   's_or_b32 s32, s32, s31', 'v_xor_b32 v2, s32, v1', 'v_xor_b32 v3, 0x400, v2',
                   's_mul_i32 s29, s20, 448', 's_lshl_b32 s31, s28, 1', 's_add_u32 s29, s29, s31', 's_lshl_b32 s29, s29, 10', f's_add_u32 s58, s29, {WS_HF:#x}'])
    free = [(0, 232), (0, 240), (0, 248)] + sorted((2 * last_use[k] + 2, wreg(k)) for k in KORD)
    dreg = lambda j: free[j][1]
    def load_wd(j):
        r = dreg(j); out = []
        if j % 2 == 0: out += X_([f's_add_u32 s39, s38, {2048*j}'])
        out += [('v', f'buffer_load_dwordx4 a[{r}:{r+3}], v2, s[8:11], s39 offen offset:{2048*(j%2)}', f'd{j}'),
                ('v', f'buffer_load_dwordx4 a[{r+4}:{r+7}], v3, s[8:11], s39 offen offset:{2048*(j%2)}', f'd{j}')]
        return out
    res = X_(['s_lshl_b32 s33, s22, 1',
              's_lshl_b32 s34, s21, 4', 's_and_b32 s59, s3, 1', 's_lshl_b32 s59, s59, 3', 's_add_u32 s34, s34, s59',
              's_and_b32 s59, s3, 2', 's_lshl_b32 s59, s59, 1', 's_add_u32 s34, s34, s59',
              'v_lshrrev_b32 v10, 5, v0', 'v_and_b32 v11, 31, v0', 's_lshl_b32 s59, s33, 9', 'v_lshl_add_u32 v12, v11, 4, s59',
              's_lshl_b32 s59, s33, 7', f's_add_u32 s59, s59, {R2O}', 'v_lshl_add_u32 v18, v11, 2, s59',
              'v_add_u32 v11, s34, v10'])
    for q in range(2):
        res += X_(['v_mul_u32_u24 v13, 147, v11', 'v_lshrrev_b32 v13, 10, v13',
                   'v_mul_u32_u24 v14, 7, v13', 'v_sub_u32 v14, v11, v14',
                   'v_and_b32 v15, 3, v13', 'v_lshrrev_b32 v13, 2, v13',
                   'v_cmp_eq_u32 vcc, 6, v14',
                   'v_lshl_add_u32 v8, v15, 1, v14', 'v_and_b32 v14, 6, v14', 'v_lshl_add_u32 v8, v14, 2, v8', 'v_sub_u32 v8, v8, v14',
                   'v_add_u32 v15, 24, v15', 'v_cndmask_b32 v8, v8, v15, vcc',
                   'v_mul_u32_u24 v13, 28672, v13', 'v_lshrrev_b32 v14, 1, v8', 'v_lshl_add_u32 v13, v14, 11, v13',
                   'v_and_b32 v8, 1, v8', 'v_lshl_add_u32 v13, v8, 3, v13', f'v_add_u32 v{38+q}, v13, v12', 'v_add_u32 v11, 2, v11'])
    res += X_(['v_lshlrev_b32 v4, 4, v10', 's_lshl_b32 s59, s34, 4', f's_add_u32 s59, s59, {WS_MOD + 5*1792}'])
    for q in range(2):
        res.append(('v', f'buffer_load_dwordx4 v[{40+4*q}:{43+4*q}], v4, s[8:11], s59 offen offset:{32*q}', 'gb'))
    for q in range(2):
        res.append(('l', f'ds_read_b64 v[{56+2*q}:{57+2*q}], v{38+q}', 'res'))
        res.append(('l', f'ds_read_b64 v[{8+2*q}:{9+2*q}], v{38+q} offset:512', 'res'))
    res += [('l', 'ds_read_b32 v12, v18', 'res'), ('l', 'ds_read_b32 v13, v18 offset:128', 'res')]
    res += X_(['v_and_b32 v19, 15, v0', 'v_lshlrev_b32 v19, 1, v19', 'v_bfe_u32 v14, v0, 4, 1', 'v_add_u32 v19, v19, v14',
               f'v_mul_u32_u24 v19, {16*896}, v19', 'v_add_u32 v19, v19, v4',
               f's_mul_i32 s60, s33, {32*16*896}', 's_mul_i32 s59, s20, 896', 's_add_u32 s60, s60, s59', 's_lshl_b32 s59, s34, 3', 's_add_u32 s60, s60, s59',
               f's_add_u32 s61, s60, {32*16*896}',
               's_lshl_b32 s62, s20, 2', 's_add_u32 s62, s62, s33', 's_mul_i32 s62, s62, 112', 's_mul_i32 s59, s3, 28', 's_add_u32 s62, s62, s59',
               's_lshl_b32 s62, s62, 10', f's_add_u32 s62, s62, {WS_HF:#x}', f's_add_u32 s63, s62, {112*1024}',
               's_mov_b32 s12, s50', 's_mov_b32 s13, s51', f's_mov_b32 s14, {NB_X:#x}', 's_mov_b32 s15, 0x00020000'])
    for lam in range(1, 4):
        res += X_([f's_xor_b32 s59, s3, {lam}', 's_mul_i32 s59, s59, 6144', f'v_add_u32 v{4+lam}, s59, v1'])
    res += X_(['s_mul_i32 s59, s3, 6144', 'v_add_u32 v14, s59, v1'])
    res2 = [('wl', None, 'res'), ('wv', None, 'gb')]
    res2 += X_([f'v_mul_f32 v{48+i}, v13, v{40+i}' for i in range(8)] + [f'v_mul_f32 v{40+i}, v12, v{40+i}' for i in range(8)])
    put(res, bx, bx + 32)
    def epi(rt, packed, tag):
        g = GT[rt]; u = g + 16; o = X_([f's_add_u32 s29, s58, {rt*112*1024}'])
        for hh in range(2):
            o += X_([f'v_max_f32 v{g+i}, 0, v{g+i}' for i in range(8 * hh, 8 * hh + 8)])
            if packed: o += X_([f'v_pk_mul_f32 v[{g+2*i}:{g+2*i+1}], v[{g+2*i}:{g+2*i+1}], v[{u+2*i}:{u+2*i+1}]' for i in range(4 * hh, 4 * hh + 4)])
            else: o += X_([f'v_mul_f32 v{g+i}, v{g+i}, v{u+i}' for i in range(8 * hh, 8 * hh + 8)])
            o += X_([f'v_cvt_pk_bf16_f32 v{u+i}, v{g+2*i}, v{g+2*i+1}' for i in range(4 * hh, 4 * hh + 4)])
            o.append(('v', f'buffer_store_dwordx4 v[{u+4*hh}:{u+4*hh+3}], v1, s[8:11], s29 offen offset:{1024*hh} sc1', tag))
        return o
    e0 = 2 * done[0] + 2
    put(epi(0, False, 'hA'), e0, e0 + 9)
    put(epi(2, False, 'hA') + ([('st', None, 6)] if 'FF' not in exp else []), e0 + 9, e0 + 18)
    assert 2 * done[2] + 2 <= e0 + 9
    put(res2, e0 + 18, e0 + 24)
    put(setflag('s56', 'hA') + ([('st', None, 1)] if 'GG' in exp else []), e0 + 18 + 8 * P['fa'], e0 + 19 + 8 * P['fa'])
    put(epi(1, False, 'hB'), 2 * done[1] + 2, NS)
    put([('v', 'buffer_load_dword v37, v34, s[8:11], s56 offen sc1', 'pA')], NS - P['pa'], NS - P['pa'] + 1)
    hreg = lambda s: 128 + 4 * (s % 32) if s % 32 < 16 else 64 + 4 * (s % 32 - 16)
    def loadh(s):
        ph, k = divmod(s, 28); b = hreg(s); o = []
        if k % 4 == 0: o += X_([f's_add_u32 s47, s{62+ph}, {1024*k}'])
        return o + [('v', f'buffer_load_dwordx4 v[{b}:{b+3}], v1, s[8:11], s47 offen offset:{1024*(k%4)} sc1', f'h{s}')]
    dt = 8 / P['rate']
    nld = lambda item: sum(0.5 if 'x2' in x[1] else 1 for x in item if x[0] == 'v')
    wq = list(KORD[NPRE:]); t = 0.0
    c1 = 2 * fx if GAP else P['c1']
    d0 = 8 / P['r0']
    while wq and t + d0 < c1:
        put(load_w(wq.pop(0)), int(t), int(t + d0) + 1); t += 2 * d0
    gap = []
    if GAP:
        def paced(n):
            o = []
            for _ in range(n):
                if wq: o += [('f', lambda: a(f"s_waitcnt vmcnt({P['gw']})"), None)] + load_w(wq.pop(0))
            return o
        pl = ([('st', None, 6)] if 'FF' in exp else []) + poll1
        if P['p1'] >= 0: put(pl, P['p1'], P['p1'] + 1); pl = []
        gap = paced(P['g1']) + pl + paced(P['g2']) + chk1
    else:
        put(poll1, P['p1'], P['p1'] + 1); put(chk1, c1 - 1, c1)
    q_ = [(bar[c] - 24, 0, load_x1(z, c)) for c, ch in enumerate(CH) for z in ch] + [(fs - 16, 0, load_sd)]
    q_ += [(2 * first_use[k] - 8, 0, load_w(k)) for k in wq]
    q_.sort(key=lambda x: x[0])
    q_ += [(1000 + j, free[j][0], load_wd(j)) for j in range(28)]
    t = float(c1); late = []; burst = P['b0']
    stores = [i for i, f in enumerate(fill) for x in f if x[0] == 'v' and 'store_dwordx4' in x[1]]
    ca = NS - P['ca']; nh = 0
    if P['ca']: put([('f', lambda: check('pA', 'v34', 's56', 'K2_PA'), None), ('st', None, 8)], ca - 1, ca)
    while q_:
        dl, earl, item = q_[0]
        if GAP and burst > 0: gap += item; burst -= nld(item); q_.pop(0); continue
        while stores and stores[0] <= t: t += P['sc'] * dt; stores.pop(0)
        if P['ca'] and ca <= max(t, min(earl, ca)) and t < NS - P['qa'] and nh < 16:
            t = max(t, ca); item = loadh(nh); nh += 1
        else:
            q_.pop(0); t = max(t, earl)
            if t >= NS - P['qd']: late.append(dl - 1000); continue
        put(item, int(t), int(t + dt * (nld(item) - 1)) + 1)
        if 'dbg' in exp and dl < 1000: print(item[-1][2], 'issue', int(t), 'need', dl)
        t += dt * nld(item)
    for c, ch in enumerate(CH):
        b_ = [('wv', None, f'c{c}'), ('x', 's_barrier', None), rel([k for k in SPL if k % 7 in ch] + ([28] if c == len(CH) - 1 else []))] + ([('st', None, 5)] if c == 0 else [])
        if GAP and c == 0: fill[bar[0]] += gap + b_
        else: fill[bar[c]] += b_
    if 'dbg' in exp: print('late Wd', late, 'nh', nh, 'bar', bar, 'e0', e0, 'max fill', sorted(len(f) for f in fill)[-3:])
    for z, sl in enumerate(P['sx'].split(':') if P['sx'] else []): fill[int(sl)].append(('f', lambda z=z: st(8 + z, True), None))
    if 'noW' in exp: fill = [[f for f in fl if not (f[0] == 'v' and f[2][0] in 'wd')] for fl in fill]; late = []
    if 'noD' in exp: fill = [[f for f in fl if not (f[0] == 'v' and f[2][0] in 'd')] for fl in fill]; late = []
    if 'noX' in exp: fill = [[f for f in fl if not (f[0] in ('v', 'wv') and f[2] in ('x1d', 'sd'))] for fl in fill]
    if 'noA' in exp: fill = [[f for f in fl if not (f[0] == 'x' and f[1].startswith(('v_max', 'v_mul_f32', 'v_cvt', 'v_add_f32')))] for fl in fill]
    if 'noB' in exp: fill = [[f for f in fl if not (f[0] == 'x' and f[1].startswith('s_barrier'))] for fl in fill]
    if 'noS' in exp: fill = [[f for f in fl if not (f[0] in ('v', 'wv') and f[2] in ('hA',))] for fl in fill]
    emit([rdB(i) for i in range(AHEAD)] + wd_setup + x1s)
    started = set(); nb = AHEAD
    for i, (k, rt) in enumerate(seq):
        while nb <= i + 2 and nb < 116 and seq[nb][0] in released: emit([rdB(nb)]); nb += 1
        if 'noW' not in exp: vm.wait(f'w{k}')
        lg.wait(f'b{i}')
        for m in range(2):
            d = GT[rt] + 16 * m; w = wreg(k) + 4 * m; b = breg(i)
            c = f'v[{d}:{d+15}]' if rt in started else '0'
            a(f'v_mfma_f32_32x32x16_bf16 v[{d}:{d+15}], a[{w}:{w+3}], v[{b}:{b+3}], {c}')
            if nb <= i + AHEAD and nb < 116 and seq[nb][0] in released: emit([rdB(nb)]); nb += 1
            emit(fill[2 * i + m])
        started.add(rt)
    st(7)
    emit(fill[NS] + epi(3, True, 'hB'))
    flB = 'buffer_store_dword v35, v36, s[8:11], s57 offen sc1'
    if not P['ca']:
        check('pA', 'v34', 's56', 'K2_PA', ['s_waitcnt vmcnt(0)', flB])
        st(8)
    stream = []
    for k in range(28):
        if k in late: stream.append((0, load_wd(k)))
        if k >= nh: stream.append((0, loadh(k)))
    stream.insert(max(len(stream) - P['pb'], P['w0']), (0, [('v', 'buffer_load_dword v37, v34, s[8:11], s57 offen sc1', 'pB')]))
    stream.append((P['cb'], [('f', lambda: check('pB', 'v34', 's57', 'K2_PB'), None), ('st', None, 11)]))
    stream += [(k - 3, loadh(28 + k)) for k in range(28)]
    def topup(win, s):
        while stream and stream[0][0] <= s and len(vm.tags) - 1 - vm.done < win: emit(stream.pop(0)[1])
    for _ in range(P['w0']): emit(stream.pop(0)[1])
    def reduce(ph):
        G2 = 192 + 32 * ph; gb = 40 + 8 * ph; xs = 56 if ph == 0 else 8; T = 20; ad = (5, 6, 7, 14) if ph else (32, 33, 38, 39)
        blk = lambda lam: G2 + 16 * (lam & 1) + 8 * (lam >> 1)
        def fma(r):
            if ph: return X_([f'v_pk_fma_f32 v[{T+2*i}:{T+1+2*i}], v[{r+2*i}:{r+2*i+1}], v[{gb+2*i}:{gb+2*i+1}], v[{T+2*i}:{T+1+2*i}]' for i in range(4)])
            return X_([f'v_fma_f32 v{T+i}, v{r+i}, v{gb+i}, v{T+i}' for i in range(8)])
        o1 = [('l', f'ds_write_b128 v{ad[lam-1]}, v[{blk(lam)+4*q}:{blk(lam)+4*q+3}] offset:{2048*(lam-1)+1024*q}', f'rw{ph}') for lam in (2, 1, 3) for q in range(2)]
        o0 = []
        for i in range(4): o0 += X_([f'v_lshlrev_b32 v{T+2*i}, 16, v{xs+i}', f'v_and_b32 v{T+1+2*i}, 0xffff0000, v{xs+i}'])
        o1 += fma(G2)
        o2 = [('wl', None, f'rw{ph}'), ('x', 's_barrier', None)]
        o2 += [('l', f'ds_read_b128 v[{G2+8+4*z}:{G2+11+4*z}], v{ad[3]} offset:{1024*z}', f'rr{ph}{z//2}') for z in range(6)]
        o3 = []
        for lam in range(3): o3 += [('wl', None, f'rr{ph}{lam}')] + fma(G2 + 8 + 8 * lam)
        o3 += X_([f'v_cvt_pk_bf16_f32 v{28+i}, v{T+2*i}, v{T+1+2*i}' for i in range(4)] + ['v_permlane32_swap_b32 v28, v30', 'v_permlane32_swap_b32 v29, v31'])
        o3 += [('v', f'buffer_store_dwordx4 v[28:31], v19, s[12:15], s{60+ph} offen', 'out')]
        return o0, o1, o2, o3
    f2 = [[] for _ in range(113)]
    def put2(lst, s0, s1):
        k = len(lst); m = s1 - s0
        for i, x in enumerate(lst): f2[s0 + i * m // k].append(x)
    rA = reduce(0); rB = reduce(1)
    put2(setflag('s57', 'hB') + [('st', None, 9)], P['fb'], P['fb'] + 1)
    put2(X_([f'v_add_u32 v{d}, {RA}, v{r}' for d, r in zip((32, 33, 38, 39), (5, 6, 7, 14))]) + rA[0], 40, 50)
    put2(rA[1], 58, 64); put2(rA[2], 68, 72); put2(rA[3], 76, 88); put2(rB[0], 90, 96)
    emit(f2[0])
    for s in range(56):
        ph, k = divmod(s, 28)
        while f'h{s}' not in vm.tags: emit(stream.pop(0)[1])
        vm.wait(f'h{s}')
        if ph == 0 and 'no' not in exp: vm.wait(f'd{k}')
        if k == 0: st(10 + 3 * ph)
        b = hreg(s); dr = dreg(k)
        for c in (1, 0):
            d = 192 + 32 * ph + 16 * c
            cc = '0' if k == 0 else f'v[{d}:{d+15}]'
            a(f'v_mfma_f32_32x32x16_bf16 v[{d}:{d+15}], a[{dr+4*c}:{dr+4*c+3}], v[{b}:{b+3}], {cc}')
            if c == 1 and 2 * s + 1 >= P['fb']: topup(P['win'], s)
            emit(f2[2 * s + 2 - c])
        if k == 27: st(12 + 2 * ph)
    emit(rB[1] + rB[2] + rB[3])
    if stamps:
        a('s_waitcnt vmcnt(0)')
        st(15)
    a.label('K2_END')
    a('s_endpgm')
    for t_ in tail:
        if t_.endswith(':'): a.label(t_[:-1])
        else: a(t_)
    return a
```

```python
from asmlib import *
from layout import *
from k0 import srd
from k2 import ids, K2_N
def gen_kp(what):
    a = Asm()
    a.label('kp_kernel')
    a(f's_cmp_ge_u32 s2, {K2_N}')
    a('s_cbranch_scc1 KP_END')
    a('s_load_dwordx2 s[4:5], s[0:1], 88')
    a('v_lshrrev_b32 v1, 6, v0')
    a('v_and_b32 v0, 63, v0')
    a('v_readfirstlane_b32 s3, v1')
    a('v_lshlrev_b32 v1, 4, v0')
    ids(a)
    a('s_waitcnt lgkmcnt(0)')
    srd(a, 8, 4, WS_SIZE)
    def stream(n):
        for i in range(n):
            a(f'buffer_load_dwordx4 v[{4+4*(i%8)}:{7+4*(i%8)}], v1, s[8:11], s27 offen')
            a('s_add_u32 s27, s27, 1024')
            if i % 32 == 31: a('s_waitcnt vmcnt(16)')
    if 'w' in what:
        a('s_lshl_b32 s28, s23, 2'); a('s_add_u32 s28, s28, s3'); a(f's_mul_i32 s27, s28, {58*1024}'); a(f's_add_u32 s27, s27, {WS_WF:#x}')
        stream(58)
    if 'd' in what:
        a('s_waitcnt vmcnt(0)')
        a('s_mul_i32 s27, s21, 112'); a('s_mul_i32 s31, s3, 28'); a('s_add_u32 s27, s27, s31'); a('s_lshl_b32 s27, s27, 11'); a(f's_add_u32 s27, s27, {WS_WDF:#x}')
        stream(56)
    if 't' in what:
        a('s_waitcnt vmcnt(0)')
        a('s_lshl_b32 s27, s20, 2'); a('s_add_u32 s27, s27, s3'); a('s_mul_i32 s27, s27, 28672'); a(f's_add_u32 s27, s27, {WS_TP:#x}')
        stream(28)
    a('s_waitcnt vmcnt(0)')
    a.label('KP_END')
    a('s_endpgm')
    return a
```

```python
import sys
sys.path.insert(0, 'gen')
from asmlib import *
from layout import *
import k0, k1, k2, tables

HEADER = open('adaLN_cond__spectral_gfnet__glu_gated_reglu__prompt.s.ref').read().split('; Override launch')[0]

def kd(name, mx, accum=None):
    nv = mx['v'] + 1; na = mx['a'] + 1
    acc = max(4, (nv + 3) // 4 * 4)
    nfv = acc + na if na else nv
    return f'''.amdhsa_kernel {name}
  .amdhsa_next_free_vgpr {nfv}
  .amdhsa_next_free_sgpr {max(mx['s'] + 1, 16)}
  .amdhsa_accum_offset {acc}
  .amdhsa_group_segment_fixed_size 0
  .amdhsa_kernarg_size 96
  .amdhsa_user_sgpr_count 2
  .amdhsa_user_sgpr_kernarg_segment_ptr 1
  .amdhsa_system_sgpr_workgroup_id_x 1
  .amdhsa_float_denorm_mode_32 3
.end_amdhsa_kernel
'''

def build(kernels, tables=''):
    s = HEADER
    for name, a, grid, block, lds in kernels:
        s += f'; @launch kernel={name} grid=({grid},1,1) block=({block},1,1) lds={lds}\n'
    s += '.amdgcn_target "amdgcn-amd-amdhsa--gfx950"\n.text\n'
    kds = ''
    for name, a, grid, block, lds in kernels:
        body = a.finalize()
        s += f'.globl {name}\n.p2align 8\n.type {name},@function\n' + body
        kds += '.p2align 6\n' + kd(name, a.max_regs())
    s += tables + 'CODE_END:\n'
    s += '.section .rodata,"a"\n' + kds
    return s

if __name__ == '__main__':
    stamps = '--stamps' in sys.argv
    exp = ''.join(x[6:] for x in sys.argv if x.startswith('--exp='))
    out = [x for x in sys.argv[1:] if not x.startswith('--')][0]
    ks = [('k0_kernel', k0.gen_k0(stamps, exp), K0_GRID, 512, k0.K0_LDS),
          ('k1_kernel', k1.gen_k1(stamps, exp), K1_GRID, 512, k1.K1_LDS),
          ('k2_kernel', k2.gen_k2(stamps, exp), k2.K2_N, 256, k2.K2_LDS)]
    kpw = ''.join(x[5:] for x in sys.argv if x.startswith('--kp='))
    if kpw:
        import kp
        ks.insert(2, ('kp_kernel', kp.gen_kp(kpw), k2.K2_N, 256, 0))
    tb = tables.emit('k1_tbl', tables.k1_table()) + tables.emit('k2_tbl', tables.k2_table())
    open(out, 'w').write(build(ks, tb))
```

```python
from asmlib import *
from layout import *
import struct

XS = 912
RO = 64 * XS
MO = RO + 256
K0_LDS = 57344 + 2048 + 512

def srd(a, d, base, nbytes):
    a(f's_mov_b32 s{d}, s{base}')
    a(f's_mov_b32 s{d+1}, s{base+1}')
    a(f's_mov_b32 s{d+2}, {nbytes:#x}' if isinstance(nbytes, int) else f's_mov_b32 s{d+2}, {nbytes}')
    a(f's_mov_b32 s{d+3}, 0x00020000')

def rb16(a, dst, src):
    a(f'v_cvt_pk_bf16_f32 v{dst}, v{src}, v{src}')
    a(f'v_lshlrev_b32 v{dst}, 16, v{dst}')

def stamp(a, kidx, slot, ws_srd, enable, wgreg='s2', tmp_s=96, tmp_v=(250, 251, 252)):
    if not enable: return
    v0_, v1_, v2_ = tmp_v
    a(f's_memrealtime s[{tmp_s}:{tmp_s+1}]')
    a(f's_memtime s[{tmp_s+2}:{tmp_s+3}]')
    a('s_waitcnt lgkmcnt(0)')
    a(f'v_mov_b32 v{v0_}, s{tmp_s}')
    a(f'v_mov_b32 v{v1_}, s{tmp_s+2}')
    a(f's_lshl_b32 s{tmp_s+2}, {wgreg}, 7')
    a(f's_add_u32 s{tmp_s+2}, s{tmp_s+2}, {WS_STAMP + kidx * 0x10000 + slot * 8:#x}')
    a(f'v_mov_b32 v{v2_}, s{tmp_s+2}')
    a(f'buffer_store_dwordx2 v[{v0_}:{v1_}], v{v2_}, s[{ws_srd}:{ws_srd+3}], 0 offen')

def w_rows(a, kp, wave, vdst, vt0, vt1, st):
    a(f'v_and_b32 v{vt0}, 31, v0')
    a(f'v_lshlrev_b32 v{vt0}, 4, v{vt0}')
    a('v_cmp_gt_u32 vcc, 32, v0')
    for kk in range(2):
        s0, s1 = st + 2 * kk, st + 2 * kk + 1
        a(f's_lshl_b32 s{s0}, {wave}, 8')
        a(f's_add_u32 s{s0}, s{s0}, {kp}')
        if kk: a(f's_add_u32 s{s0}, s{s0}, 128')
        a(f's_sub_u32 s{s1}, 2048, s{s0}')
        a(f's_and_b32 s{s1}, s{s1}, 2047')
        a(f's_mul_i32 s{s0}, s{s0}, 450')
        a(f's_mul_i32 s{s1}, s{s1}, 450')
        a(f'v_mov_b32 v{vdst+kk}, s{s1}')
        a(f'v_mov_b32 v{vt1}, s{s0}')
        a(f'v_cndmask_b32 v{vdst+kk}, v{vdst+kk}, v{vt1}, vcc')
        a(f'v_and_b32 v{vdst+kk}, -16, v{vdst+kk}')
        a(f'v_add_u32 v{vdst+kk}, v{vdst+kk}, v{vt0}')

def gen_k0(stamps=False, exp=''):
    a = Asm()
    TV = (120, 121, 122)
    a.label('k0_kernel')
    a(f's_cmp_ge_u32 s2, {K0_GRID}')
    a('s_cbranch_scc1 K0_END')
    a('s_load_dwordx2 s[4:5], s[0:1], 0')
    a('s_load_dwordx2 s[6:7], s[0:1], 88')
    a('s_load_dwordx4 s[16:19], s[0:1], 56')
    a('s_load_dwordx4 s[32:35], s[0:1], 8')
    a('s_getpc_b64 s[36:37]')
    a.label('K0_PC')
    a('s_sub_u32 s36, s36, K0_PC-k0_kernel')
    a('s_subb_u32 s37, s37, 0')
    a('s_mov_b32 s38, k1_kernel-k0_kernel')
    a('s_mov_b32 s39, 0x00020000')
    a('v_lshlrev_b32 v1, 4, v0')
    a('buffer_load_dwordx4 v[112:115], v1, s[36:39], 0 offen')
    a('v_lshrrev_b32 v1, 6, v0')
    a('v_and_b32 v0, 63, v0')
    a('v_readfirstlane_b32 s3, v1')
    a('v_lshlrev_b32 v1, 4, v0')
    a('v_and_b32 v2, 15, v0')
    a('v_lshrrev_b32 v3, 4, v0')
    a(f's_cmp_ge_u32 s2, {K0_NA}')
    a('s_cbranch_scc1 K0_B')
    a('s_lshr_b32 s21, s2, 5')
    a('s_lshl_b32 s21, s21, 3')
    a('s_and_b32 s20, s2, 7')
    a('s_add_u32 s21, s21, s20')
    a('s_mul_i32 s23, s21, 896')
    a(f's_mul_i32 s24, s3, {8*28672}')
    a('s_add_u32 s23, s23, s24')
    a(f's_mul_i32 s24, s3, {8*XS}')
    a('s_mov_b32 m0, s24')
    a('s_waitcnt lgkmcnt(0)')
    srd(a, 8, 4, NB_X)
    a('s_mov_b32 exec_hi, 0x00ffffff')
    for r in range(8):
        a('buffer_load_dwordx4 v1, s[8:11], s23 offen lds')
        if r < 7:
            a(f's_add_u32 m0, m0, {XS}')
            a('s_add_u32 s23, s23, 28672')
    a('s_mov_b32 exec_hi, -1')
    srd(a, 12, 6, WS_SIZE)
    stamp(a, 0, 0, 12, stamps, tmp_v=TV)
    a('s_lshr_b32 s22, s2, 2')
    a('s_and_b32 s22, s22, 6')
    a('s_lshr_b32 s20, s3, 2')
    a('s_add_u32 s22, s22, s20')
    a('s_and_b32 s29, s3, 3')
    CT = 80
    a('s_lshl_b32 s24, s29, 4')
    a('v_add_u32 v4, s24, v2')
    a('v_lshrrev_b32 v5, 1, v4')
    a('v_and_b32 v6, 1, v4')
    a('v_cmp_eq_u32 vcc, 1, v4')
    a('v_mov_b32 v7, 32')
    a('v_cndmask_b32 v5, v5, v7, vcc')
    a('v_mov_b32 v7, 0')
    a('v_cndmask_b32 v6, v6, v7, vcc')
    a('v_cvt_f32_u32 v5, v5')
    a('v_cvt_f32_u32 v6, v6')
    a('v_mul_f32 v5, 0x3c800000, v5')
    a('v_mul_f32 v6, 0x3e800000, v6')
    a('v_lshlrev_b32 v7, 3, v3')
    a('v_cvt_f32_u32 v7, v7')
    a('v_fma_f32 v6, v5, v7, v6')
    a('v_mul_f32 v7, 0x42000000, v5')
    a('v_add_f32 v7, v7, v6')
    for j in range(8):
        a(f'v_cos_f32 v{CT+j}, v6')
        a(f'v_cos_f32 v{CT+8+j}, v7')
        if j < 7:
            a('v_add_f32 v6, v6, v5')
            a('v_add_f32 v7, v7, v5')
    a('s_lshl_b32 s24, s3, 3')
    a('v_lshrrev_b32 v4, 3, v0')
    a('v_add_u32 v4, s24, v4')
    a(f'v_mul_u32_u24 v5, {XS}, v4')
    a('v_and_b32 v6, 7, v0')
    a('v_lshl_add_u32 v5, v6, 4, v5')
    a('v_and_b32 v6, 3, v0')
    a('v_lshrrev_b32 v7, 2, v2')
    a('v_lshl_add_u32 v7, v3, 3, v7')
    a(f'v_mul_u32_u24 v8, {XS}, v7')
    a('v_mul_u32_u24 v7, 224, v6')
    a('s_lshl_b32 s25, s22, 3')
    a('v_add3_u32 v8, v8, v7, s25')
    a(f'v_mul_u32_u24 v9, {XS}, v2')
    a('v_mul_u32_u24 v7, 56, v3')
    a('s_mul_i32 s26, s29, 224')
    a('s_add_u32 s26, s26, s25')
    a('v_add3_u32 v9, v9, v7, s26')
    a('s_and_b32 s30, s21, 15')
    a('s_lshl_b32 s30, s30, 2')
    a('s_add_u32 s30, s30, s29')
    a('s_mul_i32 s30, s30, 28672')
    a('s_lshr_b32 s27, s21, 4')
    a('s_lshl_b32 s27, s27, 10')
    a('s_add_u32 s30, s30, s27')
    a('s_lshl_b32 s27, s22, 12')
    a('s_add_u32 s30, s30, s27')
    a(f's_add_u32 s30, s30, {WS_XF:#x}')
    a(f'v_mul_u32_u24 v11, {2*57344}, v3')
    a('s_and_b32 s27, s21, 3')
    a('v_xor_b32 v7, s27, v2')
    a('v_lshl_add_u32 v11, v7, 4, v11')
    a(f's_mul_i32 s26, s29, {8*57344}')
    a('s_lshl_b32 s27, s21, 8')
    a('s_add_u32 s26, s26, s27')
    a('s_lshl_b32 s27, s22, 13')
    a('s_add_u32 s26, s26, s27')
    a(f's_add_u32 s26, s26, {WS_U:#x}')
    a('s_add_u32 s27, s26, 57344')
    a('v_lshlrev_b32 v12, 2, v4')
    a('v_lshlrev_b32 v13, 1, v4')
    a('v_lshlrev_b32 v14, 5, v3')
    a('v_lshlrev_b32 v15, 4, v3')
    a('s_mov_b32 s28, 0x3f803f80')
    for i in range(4): a(f'v_mov_b32 v{16+i}, 0')
    a(f's_waitcnt vmcnt({1 if stamps else 0})')
    stamp(a, 0, 1, 12, stamps, tmp_v=TV)
    XB = 20
    for i in range(7):
        a(f'ds_read_b128 v[{XB+4*i}:{XB+4*i+3}], v5 offset:{128*i}')
    for i in range(7):
        a(f's_waitcnt lgkmcnt({6-i})')
        for j in range(4):
            r = XB + 4 * i + j
            a(f'v_dot2c_f32_bf16 v{16+(j&1)}, s28, v{r}')
            a(f'v_dot2c_f32_bf16 v{18+(j&1)}, v{r}, v{r}')
    a('v_add_f32 v16, v16, v17')
    a('v_add_f32 v18, v18, v19')
    for qp in ('quad_perm:[1,0,3,2]', 'quad_perm:[2,3,0,1]', 'row_half_mirror'):
        a(f'v_add_f32_dpp v16, v16, v16 {qp} row_mask:0xf bank_mask:0xf')
        a(f'v_add_f32_dpp v18, v18, v18 {qp} row_mask:0xf bank_mask:0xf')
    inv = 0x3b124925
    a(f'v_mul_f32 v16, {inv:#x}, v16')
    a(f'v_mul_f32 v18, {inv:#x}, v18')
    a('v_fma_f32 v18, -v16, v16, v18')
    a('v_max_f32 v18, 0, v18')
    a('v_cvt_pk_bf16_f32 v17, -v16, -v16')
    rb16(a, 18, 18)
    a(f'ds_write_b16 v13, v17 offset:{MO}')
    a('v_add_f32 v18, 0x3727c5ac, v18')
    rb16(a, 18, 18)
    a('v_sqrt_f32 v18, v18')
    rb16(a, 18, 18)
    a('v_rcp_f32 v18, v18')
    a(f'ds_write_b32 v12, v18 offset:{RO}')
    a('s_waitcnt lgkmcnt(0)')
    a('s_barrier')
    a('s_cmp_eq_u32 s22, 7')
    a('s_cbranch_scc1 K0_END')
    for ks in range(2):
        for h in range(2):
            a(f'ds_read_b128 v[{20+8*ks+4*h}:{23+8*ks+4*h}], v14 offset:{RO+128*ks+16*h}')
    for ks in range(2):
        a(f'ds_read_b128 v[{36+4*ks}:{39+4*ks}], v15 offset:{MO+64*ks}')
    for ks in range(2):
        for t in range(4):
            for h in range(2):
                b = 44 + 8 * t + 4 * ks + 2 * h
                a(f'ds_read_b64_tr_b16 v[{b}:{b+1}], v8 offset:{ks*32*XS + h*4*XS + t*56}')
        if ks == 0:
            a('s_waitcnt lgkmcnt(10)')
            for p in range(8):
                a(f'v_pk_mul_f32 v[{CT+2*p}:{CT+2*p+1}], v[{CT+2*p}:{CT+2*p+1}], v[{20+2*p}:{21+2*p}]')
    for nh in range(2):
        for hi in range(2):
            a(f'ds_read_b64 v[{96+4*nh+2*hi}:{97+4*nh+2*hi}], v9 offset:{nh*16*XS + hi*32*XS}')
    for p in range(8):
        a(f'v_cvt_pk_bf16_f32 v{20+p}, v{CT+2*p}, v{CT+2*p+1}')
    a('s_waitcnt lgkmcnt(12)')
    a('v_mfma_f32_16x16x32_bf16 v[28:31], v[20:23], v[36:39], 0')
    a('v_mfma_f32_16x16x32_bf16 v[28:31], v[24:27], v[40:43], v[28:31]')
    DT = 80
    for t in range(4):
        a(f'v_mfma_f32_16x16x32_bf16 v[{DT+4*t}:{DT+4*t+3}], v[20:23], v[{44+8*t}:{47+8*t}], v[28:31]')
    a('s_waitcnt lgkmcnt(4)')
    for t in range(4):
        a(f'v_mfma_f32_16x16x32_bf16 v[{DT+4*t}:{DT+4*t+3}], v[24:27], v[{48+8*t}:{51+8*t}], v[{DT+4*t}:{DT+4*t+3}]')
    a('s_waitcnt lgkmcnt(0)')
    a('buffer_store_dwordx4 v[96:99], v1, s[12:15], s30 offen sc1')
    a('buffer_store_dwordx4 v[100:103], v1, s[12:15], s30 offen offset:2048 sc1')
    for i in range(4):
        a(f'v_cvt_pk_bf16_f32 v{104+2*i}, v{DT+i}, v{DT+4+i}')
        a(f'v_cvt_pk_bf16_f32 v{105+2*i}, v{DT+8+i}, v{DT+12+i}')
    a('buffer_store_dwordx4 v[104:107], v11, s[12:15], s26 offen sc1')
    a('buffer_store_dwordx4 v[108:111], v11, s[12:15], s27 offen sc1')
    if stamps:
        a('s_waitcnt vmcnt(0)')
        stamp(a, 0, 2, 12, stamps, tmp_v=TV)
    a('s_endpgm')
    a.label('K0_B')
    a(f's_cmp_ge_u32 s2, {K0_B0 + K0_NB}')
    a('s_cbranch_scc1 K0_C')
    a(f's_sub_u32 s20, s2, {K0_B0}')
    a('v_lshrrev_b32 v4, 3, v0')
    a('v_lshlrev_b32 v5, 1, v3')
    a('v_and_b32 v6, 7, v0')
    a('v_xor_b32 v6, v6, v5')
    a('v_mul_u32_u24 v4, 5376, v4')
    a('v_lshl_add_u32 v4, v6, 4, v4')
    a('s_lshl_b32 s22, s20, 7')
    a(f's_mul_i32 s23, s3, {56*5376}')
    a('s_add_u32 s23, s23, s22')
    a(f's_mul_i32 s24, s3, {7*1024}')
    a('s_mov_b32 m0, s24')
    a('s_lshl_b32 s25, s3, 8')
    a('v_lshl_add_u32 v7, v0, 2, s25')
    a('s_waitcnt lgkmcnt(0)')
    srd(a, 8, 18, NB_WMOD)
    srd(a, 28, 16, 896)
    a('buffer_load_dword v8, v7, s[28:31], 0 offen')
    for r in range(7):
        a('buffer_load_dwordx4 v4, s[8:11], s23 offen lds')
        if r < 6:
            a('s_add_u32 m0, m0, 1024')
            a(f's_add_u32 s23, s23, {8*5376}')
    srd(a, 12, 6, WS_SIZE)
    stamp(a, 0, 0, 12, stamps, tmp_v=TV)
    a('s_mul_i32 s21, s20, 37')
    a('s_lshr_b32 s21, s21, 8')
    SO = 57344
    a('v_lshrrev_b32 v10, 2, v0')
    a('v_lshrrev_b32 v11, 3, v0')
    a('v_xor_b32 v11, s3, v11')
    a('v_and_b32 v11, 3, v11')
    a('v_lshlrev_b32 v10, 7, v10')
    a('v_lshl_add_u32 v10, v11, 5, v10')
    a('v_and_b32 v11, 3, v0')
    a('v_lshl_add_u32 v10, v11, 3, v10')
    a('v_lshlrev_b32 v11, 3, v3')
    a('s_mul_i32 s24, s21, 448')
    a('s_lshl_b32 s25, s20, 6')
    a('s_sub_u32 s25, s25, s24')
    a('s_lshl_b32 s26, s3, 4')
    a('s_add_u32 s25, s25, s26')
    a('v_add_u32 v12, s25, v2')
    a('v_mul_u32_u24 v13, 2341, v12')
    a('v_lshrrev_b32 v13, 16, v13')
    a('v_mul_u32_u24 v14, 28, v13')
    a('v_sub_u32 v14, v12, v14')
    a('v_lshl_add_u32 v13, v14, 4, v13')
    a('s_cmp_lt_u32 s21, 3')
    a('s_cselect_b64 vcc, -1, 0')
    a('v_cndmask_b32 v12, v12, v13, vcc')
    a('v_add_u32 v12, s24, v12')
    a('v_lshlrev_b32 v12, 2, v12')
    a(f'v_mov_b32 v13, {OOB:#x}')
    a('v_cmp_gt_u32 vcc, 16, v0')
    a('v_cndmask_b32 v12, v13, v12, vcc')
    a('s_mov_b32 s26, 0')
    a('s_mov_b32 s27, 1.0')
    a('s_cmp_eq_u32 s21, 1')
    a('s_cselect_b32 s26, 1.0, s26')
    a('s_cmp_eq_u32 s21, 4')
    a('s_cselect_b32 s26, 1.0, s26')
    a('s_cmp_eq_u32 s21, 0')
    a('s_cselect_b32 s27, 0x45000000, s27')
    a('s_cmp_eq_u32 s21, 2')
    sc = struct.unpack('<I', struct.pack('<f', 2.0 / (S * D)))[0]
    a(f's_cselect_b32 s27, {sc:#x}, s27')
    a(f's_waitcnt vmcnt({8 if stamps else 7})')
    a('v_lshlrev_b32 v9, 16, v8')
    a('v_and_b32 v8, 0xffff0000, v8')
    for r in (8, 9):
        a(f'v_mul_f32 v{r+6}, 0xbfb8aa3b, v{r}')
        a(f'v_exp_f32 v{r+6}, v{r+6}')
        a(f'v_add_f32 v{r+6}, 1.0, v{r+6}')
        a(f'v_rcp_f32 v{r+6}, v{r+6}')
        a(f'v_mul_f32 v{r}, v{r}, v{r+6}')
    a('v_cvt_pk_bf16_f32 v9, v9, v8')
    a(f'ds_write_b32 v7, v9 offset:{SO}')
    a('s_waitcnt vmcnt(0) lgkmcnt(0)')
    a('s_barrier')
    a('s_cmp_ge_u32 s3, 4')
    a('s_cbranch_scc1 K0_END')
    stamp(a, 0, 1, 12, stamps, tmp_v=TV)
    def rd(ks, base):
        a(f'ds_read_b64 v[{base}:{base+1}], v11 offset:{SO + 64*ks}')
        a(f'ds_read_b64 v[{base+2}:{base+3}], v11 offset:{SO + 64*ks + 32}')
        a(f'ds_read_b64_tr_b16 v[{base+4}:{base+5}], v10 offset:{4096*ks}')
        a(f'ds_read_b64_tr_b16 v[{base+6}:{base+7}], v10 offset:{4096*ks + 2048}')
    base = lambda ks: 20 + 8 * (ks % 8)
    for ks in range(3): rd(ks, base(ks))
    for ks in range(14):
        if ks + 3 < 14:
            rd(ks + 3, base(ks + 3))
            a('s_waitcnt lgkmcnt(12)')
        else:
            a(f's_waitcnt lgkmcnt({4*(13-ks)})')
        b = base(ks)
        c = '0' if ks == 0 else 'v[16:19]'
        a(f'v_mfma_f32_16x16x32_bf16 v[16:19], v[{b}:{b+3}], v[{b+4}:{b+7}], {c}')
    rb16(a, 16, 16)
    a('v_add_f32 v16, s26, v16')
    rb16(a, 16, 16)
    a('v_mul_f32 v16, s27, v16')
    a('buffer_store_dword v16, v12, s[12:15], 0 offen')
    if stamps:
        a('s_waitcnt vmcnt(0)')
        stamp(a, 0, 2, 12, stamps, tmp_v=TV)
    a('s_endpgm')
    a.label('K0_C')
    a(f's_cmp_lt_u32 s2, {K0_C0}')
    a('s_cbranch_scc1 K0_Z')
    a(f's_sub_u32 s20, s2, {K0_C0}')
    a('s_lshr_b32 s21, s20, 3')
    a('s_lshl_b32 s21, s21, 13')
    a('s_lshl_b32 s22, s3, 10')
    a('s_add_u32 s21, s21, s22')
    a('s_add_u32 s21, s21, k1_kernel-k0_kernel')
    a('s_mov_b32 s38, CODE_END-k0_kernel')
    a('buffer_load_dwordx4 v[116:119], v1, s[36:39], s21 offen')
    w_rows(a, 's20', 's3', 4, 6, 7, 24)
    a('s_lshl_b32 s28, s3, 12')
    a('s_mov_b32 m0, s28')
    a('s_waitcnt lgkmcnt(0)')
    srd(a, 40, 32, NB_W)
    srd(a, 44, 34, NB_W)
    for kk in range(2):
        for arr in range(2):
            a(f'buffer_load_dwordx4 v{4+kk}, s[{40+4*arr}:{43+4*arr}], 0 offen lds')
            if not (kk and arr): a('s_add_u32 m0, m0, 1024')
    srd(a, 12, 6, WS_SIZE)
    stamp(a, 0, 0, 12, stamps, tmp_v=TV)
    WA, WW, PK = 24, 40, 80
    a('v_lshlrev_b32 v8, 7, v3')
    a('v_lshl_add_u32 v8, v2, 1, v8')
    a('v_sub_u32 v9, 288, v8')
    a('v_max_i32 v9, 0, v9')
    a('v_cmp_eq_u32 vcc, 3, v3')
    a('v_add_u32 v11, 64, v8')
    a('v_sub_u32 v12, 832, v8')
    a('v_cndmask_b32 v11, v11, v12, vcc')
    a('v_add_u32 v12, 96, v8')
    a('v_sub_u32 v13, 800, v8')
    a('v_cndmask_b32 v12, v12, v13, vcc')
    a('v_mov_b32 v13, 0')
    a('v_bfrev_b32 v14, 1')
    a('v_cndmask_b32 v20, v13, v14, vcc')
    a('v_cmp_eq_u32 s[48:49], 0, v0')
    a('v_cmp_eq_u32 s[50:51], 48, v0')
    a('v_cndmask_b32 v21, v13, v14, s[48:49]')
    for kk in range(2):
        w = WA + 5 * kk
        a(f's_and_b32 s29, s{24+2*kk}, 15')
        a('s_add_u32 s29, s29, s28')
        a(f's_and_b32 s30, s{25+2*kk}, 15')
        a('s_add_u32 s30, s30, s28')
        a('s_add_u32 s30, s30, 512')
        a('v_mov_b32 v15, s29')
        a('v_mov_b32 v16, s30')
        a('v_cndmask_b32 v17, v15, v16, vcc')
        a(f'v_add_u32 v{w+1}, v17, v11')
        a(f'v_add_u32 v{w+2}, v17, v12')
        a('v_add_u32 v15, 448, v15')
        a(f'v_cndmask_b32 v{w+4}, v15, v16, s[48:49]')
        a(f'v_add_u32 v{w}, s29, v8')
        a(f'v_add_u32 v{w+3}, s30, v9')
    a('s_lshl_b32 s29, s20, 15')
    a('s_add_u32 s29, s29, s28')
    a(f's_add_u32 s29, s29, {WS_WEFF:#x}')
    a(f's_waitcnt vmcnt({1 if stamps else 0})')
    for kk in range(2):
        w = WA + 5 * kk
        for arr in range(2):
            b = WW + 18 * kk + 9 * arr; of = 2048 * kk + 1024 * arr
            a(f'ds_read_u16 v{b+0}, v{w} offset:{of}')
            a(f'ds_read_u16 v{b+1}, v{w} offset:{of+32}')
            a(f'ds_read_u16 v{b+2}, v{w+1} offset:{of}')
            a(f'ds_read_u16 v{b+3}, v{w+2} offset:{of}')
            for i in range(4):
                a(f'ds_read_u16 v{b+4+i}, v{w+3} offset:{of+32*(3-i)}')
            a(f'ds_read_u16 v{b+8}, v{w+4} offset:{of}')
    for kk in range(2):
        a(f's_waitcnt lgkmcnt({15 if kk == 0 else 0})')
        b = WW + 18 * kk; o = PK + 8 * kk
        for i in range(8): a(f'v_lshl_or_b32 v{o+i}, v{b+9+i}, 16, v{b+i}')
        a(f'v_lshl_or_b32 v15, v{b+17}, 16, v{b+8}')
        for i in range(4, 8): a(f'v_xor_b32 v{o+i}, v14, v{o+i}')
        a(f'buffer_store_dwordx4 v[{o+4}:{o+7}], v1, s[12:15], s29 offen offset:{2048*kk+1024} sc1')
        for i in (2, 3): a(f'v_xor_b32 v{o+i}, v20, v{o+i}')
        a('v_xor_b32 v15, v21, v15')
        a('v_lshlrev_b32 v16, 16, v15')
        a('v_and_b32 v17, 0xffff0000, v15')
        for i, m in ((0, 's[48:49]'), (2, 's[50:51]')):
            a(f'v_lshlrev_b32 v18, 16, v{o+i}')
            a(f'v_and_b32 v19, 0xffff0000, v{o+i}')
            a('v_pk_add_f32 v[18:19], v[18:19], v[16:17]')
            a('v_pk_mul_f32 v[18:19], v[18:19], 0.5 op_sel_hi:[1,0]')
            a('v_cvt_pk_bf16_f32 v18, v18, v19')
            a(f'v_cndmask_b32 v{o+i}, v{o+i}, v18, {m}')
        a(f'buffer_store_dwordx4 v[{o}:{o+3}], v1, s[12:15], s29 offen offset:{2048*kk} sc1')
    if stamps:
        a('s_waitcnt vmcnt(0)')
        stamp(a, 0, 2, 12, stamps, tmp_v=TV)
    a('s_endpgm')
    a.label('K0_Z')
    a(f's_cmp_lg_u32 s2, {K0_B0 + K0_NB}')
    a('s_cbranch_scc1 K0_END')
    a('s_waitcnt lgkmcnt(0)')
    srd(a, 12, 6, WS_SIZE)
    for q in range(4): a(f'v_mov_b32 v{4+q}, 0')
    a('s_mul_i32 s20, s3, 3072')
    a(f's_add_u32 s20, s20, {WS_FLAGS:#x}')
    for q in range(3): a(f'buffer_store_dwordx4 v[4:7], v1, s[12:15], s20 offen offset:{1024*q} sc1')
    a.label('K0_END')
    a('s_endpgm')
    return a
```

```python
from asmlib import *
from layout import *
from k0 import srd, rb16, stamp, w_rows
from tables import TB_FB, TB_FA, TB_TWI, TB_TWF

MODL = 16384
X1 = MODL + 8192
M2L = X1 + 256 * 144
UL = M2L + 4096
X2 = UL
K1_LDS = UL + 57344
ZERO = TB_TWF + 7 * 512

def inter(a, mf, va):
    n, k = len(mf), len(va)
    for i, m in enumerate(mf):
        a(m)
        for x in va[i * k // n:(i + 1) * k // n]: a(x)

def gen_k1(stamps=False, exp=''):
    exp += ',HU,HW,H2,H3'
    EARLY = 4 if 'k1e' in exp else 0
    a = Asm()
    TV = (250, 251, 252)
    nst = 1 if stamps else 0
    a.label('k1_kernel')
    a(f's_cmp_ge_u32 s2, {K1_GRID}')
    a('s_cbranch_scc1 K1_END')
    a('s_load_dwordx2 s[16:17], s[0:1], 88')
    a('s_load_dwordx4 s[36:39], s[0:1], 32')
    a('s_load_dwordx2 s[40:41], s[0:1], 48')
    a('v_lshrrev_b32 v1, 6, v0')
    a('v_and_b32 v0, 63, v0')
    a('v_readfirstlane_b32 s3, v1')
    a('v_lshlrev_b32 v1, 4, v0')
    a('v_and_b32 v2, 15, v0')
    a('v_lshrrev_b32 v3, 4, v0')
    a(f's_cmp_ge_u32 s2, {K1_NF}')
    a('s_cbranch_scc1 K1_PREP')
    if 'noF' in exp: a('s_endpgm')
    a('s_getpc_b64 s[42:43]')
    a.label('K1_PC')
    a('s_add_u32 s42, s42, k1_tbl-K1_PC')
    a('s_addc_u32 s43, s43, 0')
    srd(a, 44, 42, 16384)
    a('s_lshl_b32 s18, s3, 11')
    a('s_mov_b32 m0, s18')
    a('s_and_b32 s19, s2, 7')
    a('s_lshr_b32 s21, s2, 4')
    a('buffer_load_dwordx4 v1, s[44:47], s18 offen lds')
    a('buffer_load_dwordx4 v1, s[44:47], s18 offen offset:1024 lds')
    a('s_lshl_b32 s21, s21, 3')
    a('s_add_u32 s19, s19, s21')
    a('s_bfe_u32 s48, s2, 0x10003')
    a('s_sub_u32 s21, 64, s19')
    a('s_cmp_eq_u32 s19, 0')
    a('s_cselect_b32 s21, 32, s21')
    a('s_cmp_eq_u32 s48, 0')
    a('s_cselect_b32 s21, s19, s21')
    a('s_cmp_eq_u32 s2, 64')
    a('s_cselect_b32 s2, 64, s21')
    a('s_and_b32 s19, s19, 31')
    a('s_and_b32 s25, s2, 63')
    a('s_cmp_gt_u32 s25, 32')
    a('s_cselect_b32 s20, -1.0, 1.0')
    a('s_cmp_eq_u32 s19, 0')
    a('s_cselect_b32 s20, 0, s20')
    a('s_mul_i32 s19, s19, 57344')
    a('s_lshl_b32 s21, s3, 13')
    a('s_add_u32 s19, s19, s21')
    a(f's_add_u32 s19, s19, {WS_U:#x}')
    a(f's_add_u32 s23, s21, {UL}')
    a('s_lshl_b32 s48, s48, 12')
    a('s_xor_b32 s49, s48, 4096')
    a('s_add_u32 s22, s19, s49')
    a('s_add_u32 s19, s19, s48')
    a('s_add_u32 m0, s23, s48')
    a('s_waitcnt lgkmcnt(0)')
    srd(a, 28, 16, WS_SIZE)
    stamp(a, 1, 0, 28, stamps, tmp_v=TV)
    a('s_cmp_eq_u32 s3, 7')
    a('s_cbranch_scc1 K1_NOU')
    for q in range(4): a(f'buffer_load_dwordx4 v1, s[28:31], s19 offen offset:{1024*q} lds')
    a('s_add_u32 m0, s23, s49')
    for q in range(4): a(f'buffer_load_dwordx4 v1, s[28:31], s22 offen offset:{1024*q} lds')
    a('s_branch K1_U1')
    a.label('K1_NOU')
    a(f's_mov_b32 m0, {MODL}')
    a('s_mov_b32 s24, 4096')
    for q in range(4): a(f'buffer_load_dwordx4 v1, s[28:31], 0 offen offset:{1024*q} lds')
    a(f's_mov_b32 m0, {MODL+4096}')
    for q in range(2): a(f'buffer_load_dwordx4 v1, s[28:31], s24 offen offset:{1024*q} lds')
    a.label('K1_U1')
    UA, M2, CA, SA, GA, M2I, FA, TWF, FB, TWI, WW, DD, WP = 32, 64, 80, 96, 112, 116, 124, 132, 140, 164, 180, 216, 8
    a('v_lshlrev_b32 v13, 7, v2')
    a('v_add_u32 v13, s2, v13')
    a('s_lshr_b32 s27, s3, 1')
    a('s_lshl_b32 s27, s27, 3')
    a('s_and_b32 s21, s3, 1')
    a('s_add_u32 s27, s27, s21')
    a('v_lshl_add_u32 v14, v3, 1, s27')
    a('v_mul_u32_u24 v13, v13, v14')
    a('v_cvt_f32_u32 v13, v13')
    a('v_mul_f32 v13, 0x3a000000, v13')
    a('v_sin_f32 v17, v13')
    a('v_cos_f32 v18, v13')
    a('s_lshr_b32 s27, s3, 2')
    a('s_lshl_b32 s27, s27, 10')
    a('s_and_b32 s21, s3, 3')
    a('s_lshl_b32 s21, s21, 2')
    a('s_add_u32 s27, s27, s21')
    a('v_add_u32 v14, s27, v1')
    a('v_mul_f32 v19, s20, v17')
    a('v_mul_f32 v21, s20, v18')
    a('v_cvt_pk_bf16_f32 v15, v18, v19')
    a('v_cvt_pk_bf16_f32 v16, -v17, v21')
    a(f'ds_write_b32 v14, v15 offset:{M2L}')
    a(f'ds_write_b32 v14, v16 offset:{M2L+2048}')
    a('v_lshrrev_b32 v8, 3, v0')
    a('v_lshlrev_b32 v9, 8, v8')
    a('v_and_b32 v10, 3, v0')
    a('v_lshl_add_u32 v9, v10, 6, v9')
    a('v_bfe_u32 v10, v0, 2, 1')
    a('s_cmp_eq_u32 s25, 32')
    a('s_cselect_b32 s27, 1, 0')
    a('v_xor_b32 v10, s27, v10')
    a('v_lshl_add_u32 v9, v10, 3, v9')
    a('v_add_u32 v9, s23, v9')
    a('v_and_b32 v8, 3, v8')
    a('v_lshl_add_u32 v4, v8, 4, v9')
    for e in range(1, 4): a(f'v_xor_b32 v{4+e}, {16*e}, v4')
    a('s_lshl_b32 s27, s2, 15')
    a('s_lshl_b32 s21, s3, 12')
    a('s_add_u32 s27, s27, s21')
    a(f's_add_u32 s50, s27, {WS_WEFF:#x}')
    late = []
    late += [f'buffer_load_dwordx4 v[{WP+4*q}:{WP+4*q+3}], v1, s[28:31], s50 offen offset:{1024*q}' for q in range(4)]
    a('s_lshl_b32 s27, s3, 9')
    a('v_lshl_add_u32 v26, v2, 5, s27')
    a('s_lshl_b32 s27, s3, 8')
    a(f's_add_u32 s27, s27, {MODL}')
    a('v_lshl_add_u32 v28, v3, 4, s27')
    a('v_lshl_add_u32 v30, v2, 2, s27')
    a('s_cmp_eq_u32 s2, 0')
    a('s_cselect_b32 s27, 0, 99')
    a('v_cmp_eq_u32 vcc, s27, v2')
    a(f'v_mov_b32 v29, {ZERO}')
    a('v_lshl_add_u32 v24, v3, 6, v2')
    a('v_cndmask_b32 v29, v29, v28, vcc')
    a('v_mul_u32_u24 v24, 144, v24')
    a('s_lshl_b32 s27, s3, 4')
    a(f's_add_u32 s27, s27, {X1}')
    a('v_add_u32 v24, s27, v24')
    a('v_mul_u32_u24 v25, 144, v2')
    a('v_lshl_add_u32 v25, v3, 4, v25')
    a(f's_mul_i32 s27, s3, {32*144}')
    a(f's_add_u32 s27, s27, {X1}')
    a('v_add_u32 v25, s27, v25')
    if EARLY:
        a(f's_waitcnt vmcnt({EARLY})')
        for x in late: a(x)
        a('s_waitcnt vmcnt(4)')
    else:
        a('s_waitcnt vmcnt(0)')
        for x in late: a(x)
    a('s_cmp_eq_u32 s3, 7')
    a('s_cbranch_scc1 K1_W7')
    for d2l in range(4):
        for ks in range(2):
            for h in range(2):
                b = UA + 8 * d2l + 4 * ks + 2 * h
                a(f'ds_read_b64_tr_b16 v[{b}:{b+1}], v{4+d2l} offset:{4096*ks+2048*h}')
    a('s_waitcnt lgkmcnt(15)')
    a('s_barrier')
    stamp(a, 1, 1, 28, stamps, tmp_v=TV)
    def phase1(d2l):
        o = []
        for ks in range(2):
            for c in range(2):
                d = DD + 8 * d2l + 4 * c
                cc = '0' if ks == 0 else f'v[{d}:{d+3}]'
                o.append(f'v_mfma_f32_16x16x32_bf16 v[{d}:{d+3}], v[{UA+8*d2l+4*ks}:{UA+8*d2l+4*ks+3}], v[{M2+8*c+4*ks}:{M2+8*c+4*ks+3}], {cc}')
        return o
    VA = UA
    def modul(d2l):
        o = []; d = DD + 8 * d2l
        for p in range(2):
            o.append(f'v_pk_fma_f32 v[{d+2*p}:{d+2*p+1}], v[{d+2*p}:{d+2*p+1}], v[{CA+4*d2l+2*p}:{CA+4*d2l+2*p+1}], v[{SA+4*d2l+2*p}:{SA+4*d2l+2*p+1}]')
            o.append(f'v_pk_mul_f32 v[{d+4+2*p}:{d+5+2*p}], v[{d+4+2*p}:{d+5+2*p}], v[{CA+4*d2l+2*p}:{CA+4*d2l+2*p+1}]')
        return o
    def cvt4(dst, src):
        return [f'v_cvt_pk_bf16_f32 v{dst+p}, v{src+2*p}, v{src+2*p+1}' for p in range(4)]
    def dft16(src, d):
        return [f'v_mfma_f32_16x16x32_bf16 v[{d}:{d+3}], v[{src}:{src+3}], v[{FA+2}:{FA+5}], 0',
                f'v_mfma_f32_16x16x32_bf16 v[{d+4}:{d+7}], v[{src}:{src+3}], v[{FA}:{FA+3}], 0']
    def cmulc(d, e, c_, s_, selc, sels):
        o = []
        for p in range(2):
            re = f'v[{d+2*p}:{d+2*p+1}]'; im = f'v[{d+4+2*p}:{d+5+2*p}]'
            ore = f'v[{e+2*p}:{e+2*p+1}]'; oim = f'v[{e+4+2*p}:{e+5+2*p}]'
            o.append(f'v_pk_mul_f32 {ore}, {im}, {s_(p)} {sels}')
            o.append(f'v_pk_mul_f32 {oim}, {re}, {s_(p)} {sels}')
            o.append(f'v_pk_fma_f32 {ore}, {re}, {c_(p)}, {ore} {selc}')
            o.append(f'v_pk_fma_f32 {oim}, {im}, {c_(p)}, {oim} {selc} neg_lo:[0,0,1] neg_hi:[0,0,1]')
        return o
    E = 64
    P = 96
    fbread = [f'ds_read_b128 v[{FB+4*q}:{FB+4*q+3}], v1 offset:{TB_FB+1024*q}' for q in range(6)]
    for q in range(4): a(f'ds_read_b128 v[{M2+4*q}:{M2+4*q+3}], v1 offset:{M2L+1024*q}')
    rd = []
    for d2l in range(4):
        rd.append(f'ds_read_b128 v[{CA+4*d2l}:{CA+4*d2l+3}], v28 offset:{1792+64*d2l}')
        rd.append(f'ds_read_b128 v[{SA+4*d2l}:{SA+4*d2l+3}], v29 offset:{64*d2l}')
    for q in range(2): rd.append(f'ds_read_b128 v[{FA+4*q}:{FA+4*q+3}], v1 offset:{TB_FA+1024*q}')
    for q in range(2): rd.append(f'ds_read_b128 v[{TWF+4*q}:{TWF+4*q+3}], v26 offset:{TB_TWF+16*q}')
    for d2l in range(4): rd.append(f'ds_read_b32 v{GA+d2l}, v30 offset:{3584+64*d2l}')
    rd += fbread
    rd += ['v_lshrrev_b32 v27, 2, v2', 'v_mul_u32_u24 v27, 28672, v27', 'v_and_b32 v31, 3, v2', 'v_lshl_add_u32 v27, v31, 4, v27',
           f'v_mul_u32_u24 v31, {4*114688}, v3', 'v_add_u32 v27, v27, v31',
           'v_lshlrev_b32 v28, 6, v2', 'v_lshl_add_u32 v28, v3, 4, v28', 's_mul_i32 s27, s3, 4160', f's_add_u32 s27, s27, {X2}', 'v_add_u32 v28, s27, v28']
    a('s_waitcnt lgkmcnt(0)')
    inter(a, phase1(0) + phase1(1) + phase1(2) + phase1(3), rd)
    a('s_waitcnt lgkmcnt(14)')
    for d2l in range(4):
        for x in modul(d2l): a(x)
    a('s_waitcnt lgkmcnt(10)')
    for x in cvt4(VA, DD): a(x)
    for d2l in range(4):
        inter(a, dft16(VA + 8 * d2l, DD + 8 * d2l), cvt4(VA + 8 * d2l + 8, DD + 8 * d2l + 8) if d2l < 3 else
              ['s_lshr_b32 s24, s2, 1', 's_and_b32 s24, s24, 31', 's_and_b32 s27, s2, 1', 's_lshl_b32 s27, s27, 5', 's_add_u32 s24, s24, s27',
               's_lshl_b32 s24, s24, 6', 's_lshl_b32 s27, s3, 12', 's_add_u32 s24, s24, s27'])
    for d2l in range(4):
        tw = f'v[{TWF+2*d2l}:{TWF+2*d2l+1}]'
        for x in cmulc(DD + 8 * d2l, E + 8 * d2l, lambda p: tw, lambda p: tw, 'op_sel_hi:[1,0,1]', 'op_sel:[0,1] op_sel_hi:[1,1]'): a(x)
    for i in range(4):
        a(f'v_cvt_pk_bf16_f32 v{P+4*i+0}, v{E+i}, v{E+8+i}')
        a(f'v_cvt_pk_bf16_f32 v{P+4*i+1}, v{E+16+i}, v{E+24+i}')
        a(f'v_cvt_pk_bf16_f32 v{P+4*i+2}, v{E+4+i}, v{E+12+i}')
        a(f'v_cvt_pk_bf16_f32 v{P+4*i+3}, v{E+20+i}, v{E+28+i}')
        a(f'ds_write_b128 v24, v[{P+4*i}:{P+4*i+3}] offset:{2304*i}')
    a('s_branch K1_J1')
    a.label('K1_W7')
    a('s_waitcnt lgkmcnt(0)')
    a('s_barrier')
    for q in range(4): a(f'v_mov_b32 v{P+q}, 0')
    a(f'v_mov_b32 v27, {OOB:#x}')
    for i in range(4): a(f'ds_write_b128 v24, v[{P}:{P+3}] offset:{2304*i}')
    for x in fbread: a(x)
    a.label('K1_J1')
    a('s_waitcnt lgkmcnt(0)')
    a('s_barrier')
    stamp(a, 1, 2, 28, stamps, tmp_v=TV)
    BX = 32
    for kk in range(2):
        for ks in range(2):
            b = BX + 8 * kk + 4 * ks
            a(f'ds_read_b128 v[{b}:{b+3}], v25 offset:{2304*kk+64*ks}')
    for q in range(4): a(f'ds_read_b128 v[{TWI+4*q}:{TWI+4*q+3}], v1 offset:{TB_TWI+1024*q}')
    def dft28(kk, data, data_is_a):
        o = []
        for ks in range(2):
            for t in range(2):
                for c in range(2):
                    d = DD + 16 * kk + 8 * t + 4 * c
                    f = FB + 6 * (2 * t + ks) + (2 if c == 0 else 0)
                    b = data + 8 * kk + 4 * ks
                    cc = '0' if ks == 0 else f'v[{d}:{d+3}]'
                    A, B = (b, f) if data_is_a else (f, b)
                    o.append(f'v_mfma_f32_16x16x32_bf16 v[{d}:{d+3}], v[{A}:{A+3}], v[{B}:{B+3}], {cc}')
        return o
    def wunp(kk):
        o = []
        for t in range(2):
            for i in range(4):
                src = WP + 8 * kk + 4 * t + i; w = WW + 16 * kk + 8 * t
                o.append(f'v_lshlrev_b32 v{w+i}, 16, v{src}')
                o.append(f'v_and_b32 v{w+4+i}, s21, v{src}')
        return o
    YA = 48
    def wmul(kk):
        o = []
        for t in range(2):
            d = DD + 16 * kk + 8 * t; e = E + 16 * kk + 8 * t; wr = WW + 16 * kk + 8 * t; wi = wr + 4
            for p in range(2):
                xr = f'v[{d+2*p}:{d+2*p+1}]'; xi = f'v[{d+4+2*p}:{d+5+2*p}]'
                Wr = f'v[{wr+2*p}:{wr+2*p+1}]'; Wi = f'v[{wi+2*p}:{wi+2*p+1}]'
                ore = f'v[{e+2*p}:{e+2*p+1}]'; oim = f'v[{e+4+2*p}:{e+5+2*p}]'
                o.append(f'v_pk_mul_f32 {ore}, {xi}, {Wi}')
                o.append(f'v_pk_mul_f32 {oim}, {xr}, {Wi}')
                o.append(f'v_pk_fma_f32 {ore}, {xr}, {Wr}, {ore} neg_lo:[0,0,1] neg_hi:[0,0,1]')
                o.append(f'v_pk_fma_f32 {oim}, {xi}, {Wr}, {oim} neg_lo:[1,0,1] neg_hi:[1,0,1]')
        return o
    m2i = ['v_lshlrev_b32 v12, 9, v3', 'v_add_u32 v12, s2, v12', 'v_mul_u32_u24 v12, v12, v2', 'v_cvt_f32_u32 v12, v12',
           'v_mul_f32 v12, 0x3a000000, v12', 'v_cvt_f32_u32 v31, v2', 'v_mul_f32 v31, 0x3d800000, v31']
    for j in range(4):
        m2i += [f'v_sin_f32 v{4+j}, v12', f'v_cos_f32 v{8+j}, v12']
        if j < 3: m2i.append('v_add_f32 v12, v12, v31')
    m2i2 = [f'v_cvt_pk_bf16_f32 v{M2I+0}, -v4, -v5', f'v_cvt_pk_bf16_f32 v{M2I+1}, -v6, -v7', f'v_cvt_pk_bf16_f32 v{M2I+2}, v8, v9',
            f'v_cvt_pk_bf16_f32 v{M2I+3}, v10, v11', f'v_cvt_pk_bf16_f32 v{M2I+4}, v4, v5', f'v_cvt_pk_bf16_f32 v{M2I+5}, v6, v7']
    a('s_mov_b32 s21, 0xffff0000')
    a('v_mul_u32_u24 v26, 1040, v2')
    a('v_lshl_add_u32 v26, v3, 4, v26')
    a('s_lshl_b32 s27, s3, 7')
    a(f's_add_u32 s27, s27, {X2}')
    a('v_add_u32 v26, s27, v26')
    a(f's_waitcnt vmcnt({nst}) lgkmcnt(6)')
    inter(a, dft28(0, BX, False), wunp(0))
    a('s_waitcnt lgkmcnt(4)')
    inter(a, dft28(1, BX, False), wunp(1))
    for x in wmul(0) + wmul(1): a(x)
    for x in cvt4(YA, E) + cvt4(YA + 4, E + 8): a(x)
    inter(a, dft28(0, YA, True), cvt4(YA + 8, E + 16) + cvt4(YA + 12, E + 24) + m2i[:7])
    inter(a, dft28(1, YA, True), m2i[7:])
    a('s_waitcnt lgkmcnt(0)')
    P2 = 32
    for kk in range(2):
        for t in range(2):
            c_ = lambda p: f'v[{TWI+8*t+2*p}:{TWI+8*t+2*p+1}]'
            s_ = lambda p: f'v[{TWI+8*t+4+2*p}:{TWI+8*t+5+2*p}]'
            e = E + 16 * kk + 8 * t; q = P2 + 8 * kk + 4 * t
            for x in cmulc(DD + 16 * kk + 8 * t, e, c_, s_, '', '') + cvt4(q, e): a(x)
            a(f'ds_write_b128 v26, v[{q}:{q+3}] offset:{16640*t+64*kk}')
    for x in m2i2: a(x)
    for i in range(4): a(f's_add_u32 s{60+i}, s24, {WS_TP + i*114688:#x}')
    a('s_waitcnt lgkmcnt(0)')
    a('s_barrier')
    a('s_cmp_eq_u32 s3, 7')
    a('s_cbranch_scc1 K1_END')
    stamp(a, 1, 3, 28, stamps, tmp_v=TV)
    ZA = 48
    for d2l in range(4):
        a(f'ds_read_b128 v[{ZA+4*d2l}:{ZA+4*d2l+3}], v28 offset:{1040*d2l}')
    ZB = 32
    def ph3(d2l):
        e = E + 8 * d2l
        return [f'v_mfma_f32_16x16x32_bf16 v[{e}:{e+3}], v[{M2I+2}:{M2I+5}], v[{ZB+4*d2l}:{ZB+4*d2l+3}], 0',
                f'v_mfma_f32_16x16x32_bf16 v[{e+4}:{e+7}], v[{M2I}:{M2I+3}], v[{ZB+4*d2l}:{ZB+4*d2l+3}], 0']
    def scl(d2l):
        e = E + 8 * d2l; gp = GA + (d2l & ~1)
        sel = 'op_sel_hi:[1,0]' if d2l % 2 == 0 else 'op_sel:[0,1] op_sel_hi:[1,1]'
        return [f'v_pk_mul_f32 v[{e+2*p}:{e+2*p+1}], v[{e+2*p}:{e+2*p+1}], v[{gp}:{gp+1}] {sel}' for p in range(4)]
    O = 48
    for d2l in range(4):
        a(f's_waitcnt lgkmcnt({3-d2l})')
        for x in dft16(ZA + 4 * d2l, DD + 8 * d2l): a(x)
    for x in cvt4(ZB, DD): a(x)
    for d2l in range(4):
        inter(a, ph3(d2l), cvt4(ZB + 4 * d2l + 4, DD + 8 * d2l + 8) if d2l < 3 else [])
    for d2l in range(4):
        for x in scl(d2l): a(x)
    a('s_cmp_eq_u32 s25, 0')
    a('s_cbranch_scc1 K1_SHORT')
    for i in range(4):
        a(f'v_cvt_pk_bf16_f32 v{O+4*i+0}, v{E+i}, v{E+8+i}')
        a(f'v_cvt_pk_bf16_f32 v{O+4*i+1}, v{E+16+i}, v{E+24+i}')
        a(f'v_cvt_pk_bf16_f32 v{O+4*i+2}, v{E+4+i}, v{E+12+i}')
        a(f'v_cvt_pk_bf16_f32 v{O+4*i+3}, v{E+20+i}, v{E+28+i}')
        a(f'buffer_store_dwordx4 v[{O+4*i}:{O+4*i+3}], v27, s[28:31], s{60+i} offen')
    if stamps:
        a('s_waitcnt vmcnt(0)')
        stamp(a, 1, 4, 28, stamps, tmp_v=TV)
    a('s_endpgm')
    a.label('K1_SHORT')
    a('s_lshr_b32 s24, s2, 3')
    a('v_add_u32 v27, s24, v27')
    for i in range(4):
        a(f'v_cvt_pk_bf16_f32 v{O+4*i+0}, v{E+i}, v{E+8+i}')
        a(f'v_cvt_pk_bf16_f32 v{O+4*i+1}, v{E+16+i}, v{E+24+i}')
        a(f'buffer_store_dwordx2 v[{O+4*i}:{O+4*i+1}], v27, s[28:31], s{60+i} offen')
    if stamps:
        a('s_waitcnt vmcnt(0)')
        stamp(a, 1, 4, 28, stamps, tmp_v=TV)
    a('s_endpgm')
    a.label('K1_PREP')
    if 'noP' in exp: a('s_endpgm')
    a(f's_cmp_lt_u32 s2, {K1_W0}')
    a('s_cbranch_scc1 K1_END')
    a('s_lshl_b32 s18, s3, 12')
    a('s_mov_b32 m0, s18')
    a('v_and_b32 v4, 3, v0')
    a('v_lshrrev_b32 v5, 2, v2')
    a('v_and_b32 v6, 1, v3')
    a('v_lshrrev_b32 v7, 5, v0')
    a('s_waitcnt lgkmcnt(0)')
    srd(a, 28, 16, WS_SIZE)
    a(f's_cmp_ge_u32 s2, {K1_D0}')
    a('s_cbranch_scc1 K1_WD')
    a(f's_sub_u32 s19, s2, {K1_W0}')
    if 'HU' in exp:
        a('s_and_b32 s20, s19, -8')
        a('s_add_u32 s20, s20, s3')
        a('s_mul_i32 s21, s20, 147')
        a('s_lshr_b32 s21, s21, 12')
        a(f's_mul_i32 s21, s21, {8*57344 - 28*2048}')
        a('s_lshl_b32 s20, s20, 11')
        a('s_add_u32 s21, s21, s20')
        a('s_and_b32 s20, s19, 7')
        a('s_mul_i32 s20, s20, 57344')
        a('s_add_u32 s21, s21, s20')
        a(f's_add_u32 s21, s21, {WS_U:#x}')
        a('buffer_load_dwordx4 v[200:203], v1, s[28:31], s21 offen offset:1024')
        a('buffer_load_dwordx4 v[204:207], v1, s[28:31], s21 offen')
    a('s_cmp_ge_u32 s19, 56')
    a('s_cselect_b32 s20, 1, 0')
    a('s_cselect_b32 s8, s38, s36')
    a('s_cselect_b32 s9, s39, s37')
    a(f's_mov_b32 s10, {NB_WG:#x}')
    a('s_mov_b32 s11, 0x00020000')
    a('s_mul_i32 s21, s20, 56')
    a('s_sub_u32 s19, s19, s21')
    a('s_and_b32 s21, s19, 1')
    a('s_lshr_b32 s19, s19, 1')
    a('s_mul_i32 s22, s19, 116')
    a('s_add_u32 s22, s22, s20')
    a('s_lshl_b32 s22, s22, 10')
    a(f's_add_u32 s22, s22, {WS_WF:#x}')
    a('s_cmp_eq_u32 s3, 7')
    a('s_cbranch_scc1 K1_WF_FIN')
    a('v_lshrrev_b32 v8, 3, v0')
    a('v_mul_u32_u24 v8, 3584, v8')
    a('v_and_b32 v9, 7, v0')
    a('v_lshl_add_u32 v8, v9, 4, v8')
    a('s_mul_i32 s23, s21, 7')
    a('s_add_u32 s23, s23, s3')
    a(f's_mul_i32 s23, s23, {32*3584}')
    a('s_lshl_b32 s24, s19, 7')
    a('s_add_u32 s23, s23, s24')
    if 'HU' in exp: a('s_waitcnt vmcnt(0)')
    if 'HB' in exp: a('s_barrier')
    for i in range(4):
        a('buffer_load_dwordx4 v8, s[8:11], s23 offen lds')
        if i < 3:
            a('s_add_u32 m0, m0, 1024')
            a(f's_add_u32 s23, s23, {8*3584}')
    stamp(a, 1, 0, 28, stamps, tmp_v=TV)
    a('s_and_b32 s23, s3, 1')
    a('s_mul_i32 s23, s23, 56')
    a('s_lshr_b32 s24, s3, 1')
    a('s_lshl_b32 s24, s24, 3')
    a('s_add_u32 s23, s23, s24')
    a('s_cmp_eq_u32 s3, 6')
    a('s_cselect_b32 s24, 56, 28')
    a('s_cselect_b32 s25, 28, 4')
    a('v_mul_u32_u24 v9, s24, v7')
    a('v_add_u32 v9, s23, v9')
    a('v_add_u32 v10, v9, v5')
    a('v_lshlrev_b32 v10, 7, v10')
    a('v_lshl_add_u32 v10, v6, 5, v10')
    a('v_lshl_add_u32 v10, v4, 3, v10')
    a('s_lshl_b32 s26, s25, 7')
    a('v_add_u32 v11, s26, v10')
    a('s_mul_i32 s26, s21, 896')
    a('v_lshl_add_u32 v9, v9, 2, s26')
    a('s_lshl_b32 s26, s25, 2')
    a('v_add_u32 v8, s26, v9')
    for q in range(4): a(f'v_mov_b32 v{12+q}, 0x3f803f80')
    a('s_mul_i32 s24, s21, 14')
    a('s_add_u32 s24, s24, s3')
    a('s_lshl_b32 s24, s24, 11')
    a('s_add_u32 s24, s24, s22')
    for z in range(1, 4): a(f's_add_u32 s{31+z}, s24, {7*2048*(z>>1) + 58*1024*(z&1)}')
    a('v_cmp_gt_u32 vcc, 32, v0')
    a('s_waitcnt vmcnt(0)')
    a('s_barrier')
    stamp(a, 1, 1, 28, stamps, tmp_v=TV)
    if 'PD' in exp:
        srd(a, 8, 40, NB_WG)
        a(f's_sub_u32 s19, s2, {K1_W0}')
        a('s_mul_i32 s19, s19, 7')
        a('s_add_u32 s19, s19, s3')
        a('s_lshl_b32 s19, s19, 11')
        a('buffer_load_dwordx4 v[200:203], v1, s[8:11], s19 offen')
        a('buffer_load_dwordx4 v[204:207], v1, s[8:11], s19 offen offset:1024')
    ML = 28672
    CB, SBF, RW, SBP, AB, AC, SC = 32, 48, 64, 16, 96, 128, 80
    for wq in range(2):
        a(f'ds_read_b128 v[{CB+8*wq}:{CB+8*wq+3}], v9 offset:{ML+1792+448*wq}')
        a(f'ds_read_b128 v[{CB+8*wq+4}:{CB+8*wq+7}], v8 offset:{ML+1792+448*wq}')
        for j in range(2):
            z = 2 * wq + j
            a(f'ds_read_b64_tr_b16 v[{RW+4*z}:{RW+4*z+1}], v10 offset:{14336*wq+64*j}')
            a(f'ds_read_b64_tr_b16 v[{RW+4*z+2}:{RW+4*z+3}], v11 offset:{14336*wq+64*j}')
    for wq in range(2):
        a(f'ds_read_b128 v[{SBF+8*wq}:{SBF+8*wq+3}], v9 offset:{ML+448*wq}')
        a(f'ds_read_b128 v[{SBF+8*wq+4}:{SBF+8*wq+7}], v8 offset:{ML+448*wq}')
    UP = 160
    for z in range(4):
        wq, j = z >> 1, z & 1
        a(f's_waitcnt lgkmcnt({(12, 10, 6, 4)[z]})')
        for p in range(4):
            u = UP + 2 * p
            a(f'v_lshlrev_b32 v{u}, 16, v{RW+4*z+p}')
            a(f'v_and_b32 v{u+1}, 0xffff0000, v{RW+4*z+p}')
            a(f'v_pk_mul_f32 v[{u}:{u+1}], v[{u}:{u+1}], v[{CB+8*wq+2*p}:{CB+8*wq+2*p+1}]')
            a(f'v_cvt_pk_bf16_f32 v{SC+4*z+p}, v{u}, v{u+1}')
        a(f'buffer_store_dwordx4 v[{SC+4*z}:{SC+4*z+3}], v1, s[28:31], s{31+z if z else 24} offen sc1')
        d = AC + 16 * j
        a(f'v_mfma_f32_32x32x16_bf16 v[{d}:{d+15}], v[12:15], v[{SC+4*z}:{SC+4*z+3}], {"0" if wq == 0 else f"v[{d}:{d+15}]"}')
    a('s_waitcnt lgkmcnt(0)')
    for p in range(8): a(f'v_cvt_pk_bf16_f32 v{SBP+p}, v{SBF+2*p}, v{SBF+2*p+1}')
    for z in range(4):
        wq, j = z >> 1, z & 1; d = AB + 16 * j
        a(f'v_mfma_f32_32x32x16_bf16 v[{d}:{d+15}], v[{SBP+4*wq}:{SBP+4*wq+3}], v[{RW+4*z}:{RW+4*z+3}], {"0" if wq == 0 else f"v[{d}:{d+15}]"}')
    RED = 32768
    a('s_lshl_b32 s24, s3, 9')
    a('v_lshl_add_u32 v11, v0, 3, s24')
    a(f'v_cndmask_b32 v12, v{AC+16}, v{AC}, vcc')
    a(f'v_cndmask_b32 v13, v{AB+16}, v{AB}, vcc')
    a(f'ds_write_b64 v11, v[12:13] offset:{RED}')
    a('s_waitcnt lgkmcnt(0)')
    a('s_barrier')
    a('s_endpgm')
    a.label('K1_WF_FIN')
    a(f's_mov_b32 s23, {WS_MOD + 3*1792}')
    for q in range(4): a(f'buffer_load_dwordx4 v1, s[28:31], s23 offen offset:{1024*q} lds')
    a('v_lshlrev_b32 v11, 3, v0')
    a('v_and_b32 v12, 31, v0')
    a('v_lshlrev_b32 v12, 4, v12')
    a(f'v_mul_u32_u24 v13, {58*1024}, v7')
    a('v_add_u32 v12, v12, v13')
    a('s_lshl_b32 s21, s21, 9')
    a('s_add_u32 s22, s22, s21')
    a(f's_add_u32 s22, s22, {28*2048}')
    a('v_mov_b32 v31, 0')
    a('s_waitcnt vmcnt(0)')
    if 'HB' in exp: a('s_barrier')
    a('s_barrier')
    a('s_barrier')
    for w in range(7):
        a(f'ds_read_b64 v[{16+2*w}:{17+2*w}], v11 offset:{RED+512*w}')
    a('s_waitcnt lgkmcnt(0)')
    for d_, s_ in ((16, 18), (20, 22), (24, 26), (16, 20), (24, 28), (16, 24)):
        a(f'v_pk_add_f32 v[{d_}:{d_+1}], v[{d_}:{d_+1}], v[{s_}:{s_+1}]')
    a('v_cvt_pk_bf16_f32 v20, v16, v17')
    a('v_lshlrev_b32 v22, 16, v20')
    a('v_and_b32 v23, 0xffff0000, v20')
    a('v_pk_add_f32 v[16:17], v[16:17], v[22:23] neg_lo:[0,1] neg_hi:[0,1]')
    a('v_cvt_pk_bf16_f32 v21, v16, v17')
    a('v_lshlrev_b32 v24, 16, v21')
    a('v_and_b32 v25, 0xffff0000, v21')
    a('v_pk_add_f32 v[16:17], v[16:17], v[24:25] neg_lo:[0,1] neg_hi:[0,1]')
    a('v_cvt_pk_bf16_f32 v28, v22, v24')
    a('v_cvt_pk_bf16_f32 v29, v16, v23')
    a('v_cvt_pk_bf16_f32 v30, v25, v17')
    a('buffer_store_dwordx4 v[28:31], v12, s[28:31], s22 offen sc1')
    if stamps:
        a('s_waitcnt vmcnt(0)')
        stamp(a, 1, 4, 28, stamps, tmp_v=TV)
    a('s_endpgm')
    a.label('K1_WD')
    if 'HW' in exp:
        a(f's_sub_u32 s19, s2, {K1_D0}')
        a('s_and_b32 s20, s19, 7')
        a('s_lshr_b32 s21, s3, 1')
        a('s_lshl_b32 s21, s21, 3')
        a('s_add_u32 s20, s20, s21')
        a('s_sub_u32 s21, 64, s20')
        a('s_cmp_eq_u32 s20, 0')
        a('s_cselect_b32 s21, 32, s21')
        a('s_bitcmp0_b32 s3, 0')
        a('s_cselect_b32 s21, s20, s21')
        a('s_lshl_b32 s21, s21, 15')
        a('s_lshr_b32 s19, s19, 3')
        a('s_mul_i32 s19, s19, 4608')
        a('s_add_u32 s21, s21, s19')
        a(f's_add_u32 s21, s21, {WS_WEFF:#x}')
        a('s_add_u32 s22, s21, 4096')
        for q in range(5):
            a(f'buffer_load_dwordx4 v[{32+4*q}:{35+4*q}], v1, s[28:31], s{21+q//4} offen offset:{1024*(q%4)}')
            if 'H3' in exp and q == 2: a('s_waitcnt vmcnt(0)')
        if 'H2' in exp:
            a('s_waitcnt vmcnt(0)')
            a('s_barrier')
    if 'noWD' in exp: a('s_endpgm')
    srd(a, 8, 40, NB_WG)
    a(f's_sub_u32 s19, s2, {K1_D0}')
    a('s_cmp_eq_u32 s3, 7')
    a('s_cbranch_scc1 K1_END')
    a('s_mul_i32 s20, s19, 37')
    a('s_lshr_b32 s20, s20, 8')
    a('s_mul_i32 s21, s20, 7')
    a('s_add_u32 s22, s21, s3')
    a('s_sub_u32 s21, s19, s21')
    a(f's_mul_i32 s23, s22, {32*896}')
    a('s_lshl_b32 s24, s21, 7')
    a('s_add_u32 s23, s23, s24')
    a('v_lshrrev_b32 v8, 3, v0')
    a('v_mul_u32_u24 v8, 896, v8')
    a('v_and_b32 v9, 7, v0')
    a('v_lshl_add_u32 v8, v9, 4, v8')
    for i in range(4):
        a('buffer_load_dwordx4 v8, s[8:11], s23 offen lds')
        if i < 3:
            a('s_add_u32 m0, m0, 1024')
            a(f's_add_u32 s23, s23, {8*896}')
    stamp(a, 1, 0, 28, stamps, tmp_v=TV)
    a('v_lshl_add_u32 v10, v7, 2, v5')
    a('v_lshlrev_b32 v10, 7, v10')
    a('v_lshl_add_u32 v10, v6, 5, v10')
    a('v_lshl_add_u32 v10, v4, 3, v10')
    a('v_add_u32 v10, s18, v10')
    a('s_mul_i32 s24, s21, 112')
    a('s_lshl_b32 s25, s22, 1')
    a('s_add_u32 s24, s24, s25')
    a('s_lshl_b32 s24, s24, 11')
    a(f's_add_u32 s24, s24, {WS_WDF:#x}')
    a('s_waitcnt vmcnt(0)')
    for ks2 in range(2):
        for ct in range(2):
            for q in range(2):
                b = 16 + 8 * ks2 + 4 * ct + 2 * q
                a(f'ds_read_b64_tr_b16 v[{b}:{b+1}], v10 offset:{2048*ks2+1024*q+64*ct}')
    for z in range(4):
        a(f's_waitcnt lgkmcnt({2*(3-z)})')
        a(f'buffer_store_dwordx4 v[{16+4*z}:{19+4*z}], v1, s[28:31], s24 offen offset:{1024*z} sc1')
    if stamps:
        a('s_waitcnt vmcnt(0)')
        stamp(a, 1, 4, 28, stamps, tmp_v=TV)
    a.label('K1_END')
    a('s_endpgm')
    return a
```

```python
from asmlib import *
from layout import *
from k0 import srd, rb16, stamp

K2_N = 224
AT_BYTES = 57 * 2048
R2O = AT_BYTES
RT = R2O + 512
RA = RT + 16384
K2_LDS = RA + 24576
JT = 8192

class Trk:
    def __init__(self, a, name, mx): self.a = a; self.tags = []; self.name = name; self.mx = mx; self.done = -1; self.waited = set()
    def op(self, text, tag=None):
        assert tag not in self.waited, tag
        self.a(text); self.tags.append(tag)
    def wait(self, *tags):
        idx = [i for i, t in enumerate(self.tags) if t in tags]
        assert idx, tags
        self.waited.update(tags)
        last = max(idx)
        if last <= self.done: return
        n = min(len(self.tags) - 1 - last, self.mx)
        self.done = len(self.tags) - 1 - n
        self.a(f's_waitcnt {self.name}({n})')
    def all(self):
        self.done = len(self.tags) - 1

def ids(a):
    a('s_and_b32 s18, s2, 7')
    a('s_lshr_b32 s19, s2, 3')
    a('s_mul_i32 s20, s19, 37')
    a('s_lshr_b32 s20, s20, 8')
    a('s_mul_i32 s21, s20, 7')
    a('s_sub_u32 s21, s19, s21')
    a('s_lshr_b32 s22, s18, 1')
    a('s_lshl_b32 s22, s22, 2')
    a('s_add_u32 s20, s20, s22')
    a('s_and_b32 s22, s18, 1')
    a('s_mul_i32 s23, s22, 7')
    a('s_add_u32 s23, s23, s21')

DEF = dict(R=4, nB1=4, nK=4, n0=3, n1=5, f1=-1, g1=0, g2=3, b0=12, rate=3.5, fa=3, win=14, pb=6, w0=10, fb=0, cb=0, ca=0, qa=8, qd=4, sc=1.0, st='0123456789abcdef', p1=26, c1=24, gw=8, pa=8, ba=3, r0=3.5, sx='')

def gen_k2(stamps=False, exp=''):
    P = dict(DEF)
    for kv in exp.split(','):
        if '=' in kv:
            k_, v_ = kv.split('='); P[k_] = v_ if k_ in ('st', 'sx') else float(v_) if '.' in v_ else int(v_)
    a = Asm(); vm = Trk(a, 'vmcnt', 63); lg = Trk(a, 'lgkmcnt', 15)
    TV = (60, 61, 62)
    tail = []
    def st(slot, force=False):
        if stamps and (force or f'{slot:x}' in P['st']):
            stamp(a, 2, slot, 8, True, tmp_v=TV); vm.tags.append('stamp'); lg.all()
    def check(tag, voff, soff, name, pre=()):
        vm.wait(tag)
        a('v_cmp_ne_u32 vcc, 1, v37')
        a('s_nop 1')
        a(f's_cbranch_vccnz {name}_S')
        a.label(f'{name}_OK')
        tail.extend([f'{name}_S:'] + list(pre) + ['s_mov_b32 s36, 0', f'{name}_L:',
            f'buffer_load_dword v37, {voff}, s[8:11], {soff} offen sc1', 's_add_u32 s36, s36, 1', 's_waitcnt vmcnt(0)',
            'v_cmp_ne_u32 vcc, 1, v37', 's_cmp_gt_u32 s36, 400000', f's_cbranch_scc1 {name}_OK', 's_nop 1',
            f's_cbranch_vccnz {name}_L', f's_branch {name}_OK'])
    def emit(lst):
        for kind, text, tag in lst:
            if kind == 'x': a(text)
            elif kind == 'v': vm.op(text, tag)
            elif kind == 'l': lg.op(text, tag)
            elif kind == 'wv': vm.wait(tag)
            elif kind == 'wl': lg.wait(tag)
            elif kind == 'st': st(tag)
            elif kind == 'f': text()
    X_ = lambda lst: [('x', t, None) for t in lst]
    a.label('k2_kernel')
    a(f's_cmp_ge_u32 s2, {K2_N}')
    a('s_cbranch_scc1 K2_END')
    a('s_load_dwordx2 s[4:5], s[0:1], 88')
    a('s_load_dwordx2 s[50:51], s[0:1], 72')
    a('v_lshrrev_b32 v1, 6, v0')
    a('v_and_b32 v0, 63, v0')
    a('v_readfirstlane_b32 s3, v1')
    a('v_lshlrev_b32 v1, 4, v0')
    a('s_getpc_b64 s[6:7]')
    a.label('K2_PC')
    a('s_add_u32 s6, s6, k2_tbl-K2_PC')
    a('s_addc_u32 s7, s7, 0')
    srd(a, 12, 6, 16384)
    a('s_lshl_b32 s16, s3, 12')
    a(f's_add_u32 s17, s16, {RT}')
    a('s_mov_b32 m0, s17')
    ids(a)
    for q in range(4):
        vm.op(f'buffer_load_dwordx4 v1, s[12:15], s16 offen offset:{1024*q} lds', 'R')
    a('s_and_b32 s40, s23, 3')
    a('s_lshr_b32 s41, s23, 2')
    a('s_cmp_eq_u32 s41, 3')
    a('s_cselect_b32 s42, 1, 0')
    a('s_lshl_b32 s40, s40, s42')
    a('s_mul_i32 s40, s40, 28672')
    a('s_lshl_b32 s41, s41, 13')
    a('s_add_u32 s40, s40, s41')
    a('s_cmp_ge_u32 s23, 12')
    a('s_cselect_b32 s41, 7, 1')
    a('s_lshl_b32 s41, s41, 12')
    a(f's_mul_i32 s26, s20, {4*28672}')
    a('s_add_u32 s40, s40, s26')
    a('s_lshr_b32 s42, s3, 1')
    a('s_mul_i32 s42, s42, s41')
    a('s_and_b32 s43, s3, 1')
    a('s_lshl_b32 s43, s43, 11')
    a('s_add_u32 s42, s42, s43')
    a('s_add_u32 s42, s42, s40')
    a(f's_add_u32 s42, s42, {WS_TP:#x}')
    a('s_lshl_b32 s43, s3, 11')
    a(f's_add_u32 m0, s43, {JT}')
    a('s_lshl_b32 s43, s3, 10')
    a('s_add_u32 s43, s43, s40')
    a(f's_add_u32 s43, s43, {WS_XF:#x}')
    a('s_add_u32 s44, s43, s41')
    a('s_mul_i32 s25, s3, 28672')
    a('s_add_u32 s26, s26, s25')
    a(f's_add_u32 s24, s26, {WS_TP:#x}')
    a(f's_add_u32 s26, s26, {WS_XF:#x}')
    a('s_waitcnt lgkmcnt(0)')
    srd(a, 8, 4, WS_SIZE)
    XA = 200
    st(0)
    for q in range(2): vm.op(f'buffer_load_dwordx4 v1, s[8:11], s42 offen offset:{1024*q} lds', 'J')
    vm.op('buffer_load_dwordx4 a[248:251], v1, s[8:11], s43 offen', 'JX')
    vm.op('buffer_load_dwordx4 a[252:255], v1, s[8:11], s44 offen', 'JX')
    TL = (0, 1, 6) if P['R'] == 12 else (6,)
    def load_tile(ti):
        t = TL[ti]
        out = X_([f's_add_u32 m0, s25, {4096*t}', f's_add_u32 s46, s24, {4096*t}', f's_add_u32 s47, s26, {4096*t}'])
        for q in range(4):
            out.append(('v', f'buffer_load_dwordx4 v1, s[8:11], s46 offen offset:{1024*q} lds', f't{ti}'))
        for n in range(4):
            out.append(('v', f'buffer_load_dwordx4 a[{XA+16*ti+4*n}:{XA+16*ti+4*n+3}], v1, s[8:11], s47 offen offset:{1024*n}', f'x{ti}'))
        return out
    a('v_and_b32 v2, 15, v0')
    a('v_lshrrev_b32 v3, 4, v0')
    a('s_lshl_b32 s28, s23, 2')
    a('s_add_u32 s28, s28, s3')
    a(f's_mul_i32 s27, s28, {58*1024}')
    a(f's_add_u32 s27, s27, {WS_WF:#x}')
    RED = [7 * q + z for z in TL for q in range(4)]
    CH = [[2, 3], [4, 5]] if P['R'] == 12 else [[0], [1], [2, 3], [4, 5]]
    SPL = [7 * q + z for ch in CH for z in ch for q in range(4)]
    KORD = RED + SPL + [28]
    wreg = lambda k: 8 * KORD.index(k)
    def load_w(k):
        out = X_([f's_add_u32 s37, s27, {2048*k}'])
        for m in range(2):
            r = wreg(k) + 4 * m
            out.append(('v', f'buffer_load_dwordx4 a[{r}:{r+3}], v1, s[8:11], s37 offen offset:{1024*m}', f'w{k}'))
        return out
    LW = lambda i0, i1: sum([load_w(k) for k in KORD[i0:i1]], [])
    SEL = 8
    a('v_lshrrev_b32 v5, 2, v2')
    a('v_cmp_eq_u32 vcc, v5, v3')
    a('v_and_b32 v5, 1, v0')
    a('v_lshlrev_b32 v5, 4, v5')
    a('v_mov_b32 v6, 0x3f00')
    a('v_lshlrev_b32 v6, v5, v6')
    a('v_mov_b32 v7, 0')
    a('v_cndmask_b32 v6, v7, v6, vcc')
    a(f'v_mov_b32 v26, {OOB:#x}')
    a('v_lshlrev_b32 v5, 3, v2')
    a('v_cndmask_b32 v26, v26, v5, vcc')
    a('v_and_b32 v5, 2, v0')
    a('v_cmp_eq_u32 vcc, 0, v5')
    a(f'v_cndmask_b32 v{SEL}, v7, v6, vcc')
    a(f'v_cndmask_b32 v{SEL+1}, v6, v7, vcc')
    a(f'v_mov_b32 v{SEL+2}, v{SEL}')
    a(f'v_mov_b32 v{SEL+3}, v{SEL+1}')
    for q in range(2):
        a(f'v_lshlrev_b32 v5, 2, v{SEL+q}')
        a('v_and_b32 v5, 0x80008000, v5')
        a(f'v_or_b32 v{SEL+4+q}, v5, v{SEL+q}')
    a('v_lshrrev_b32 v33, 3, v0')
    a('v_lshlrev_b32 v33, 6, v33')
    a('v_and_b32 v5, 3, v0')
    a('v_lshl_add_u32 v33, v5, 4, v33')
    a('v_bfe_u32 v5, v0, 2, 1')
    a('v_lshl_add_u32 v33, v5, 3, v33')
    a('v_add_u32 v4, s25, v33')
    a(f'v_add_u32 v23, {RT}, v1')
    a('v_add_u32 v24, s17, v1')
    a('v_lshlrev_b32 v5, 4, v2')
    a('v_lshl_add_u32 v25, v3, 11, v5')
    a('v_add_u32 v14, s25, v25')
    a('v_lshrrev_b32 v6, 1, v3')
    a('v_lshl_add_u32 v15, v6, 11, v5')
    a('v_and_b32 v6, 1, v3')
    a('v_lshl_add_u32 v15, v6, 3, v15')
    a('v_add_u32 v15, s25, v15')
    for q in range(4): a(f'v_mov_b32 v{28+q}, 0x3f803f80')
    a('s_lshl_b32 s45, s20, 4')
    a('s_add_u32 s45, s45, s23')
    a('s_lshl_b32 s48, s45, 10')
    a('s_lshl_b32 s45, s45, 13')
    a('s_lshl_b32 s29, s3, 8')
    a('s_add_u32 s45, s45, s29')
    a(f's_add_u32 s45, s45, {WS_X1:#x}')
    a('s_lshl_b32 s29, s3, 7')
    a('s_add_u32 s48, s48, s29')
    a(f's_add_u32 s48, s48, {WS_ST:#x}')
    a('s_mov_b32 s52, 0xaaaaaaaa')
    a('s_mov_b32 s53, 0xaaaaaaaa')
    a('s_mov_b32 s54, 0xcccccccc')
    a('s_mov_b32 s55, 0xcccccccc')
    for ti in range(len(TL)): emit(load_tile(ti))
    vm.wait('J')
    a('s_barrier')
    if 'FF' not in exp and 'GG' not in exp: st(1)
    R1 = 64
    ACC, PK, TT, TAB = 128, 160, 176, 192
    RJ = ACC + 16
    def rdT(buf, addr, off, tag):
        b = TAB + 16 * buf
        return [('l', f'ds_read_b64_tr_b16 v[{b+4*ks+2*h}:{b+4*ks+2*h+1}], {addr} offset:{off+1024*ks+512*h}', tag) for ks in range(4) for h in range(2)]
    def unit(e, X, tb, rr):
        E = f'v[{e}:{e+3}]'; O = f'v[{e+4}:{e+7}]'
        TA = lambda ks: f'v[{tb+4*ks}:{tb+4*ks+3}]'
        RR = lambda ks: f'v[{rr+4*ks}:{rr+4*ks+3}]'
        return [f'v_mfma_f32_16x16x32_bf16 {E}, v[{SEL}:{SEL+3}], {X}, 0',
                f'v_mfma_f32_16x16x32_bf16 {O}, v[{SEL+2}:{SEL+5}], {X}, 0',
                f'v_mfma_f32_16x16x32_bf16 {E}, {TA(0)}, {RR(0)}, {E}',
                f'v_mfma_f32_16x16x32_bf16 {O}, {TA(2)}, {RR(2)}, {O}',
                f'v_mfma_f32_16x16x32_bf16 {E}, {TA(1)}, {RR(1)}, {E}',
                f'v_mfma_f32_16x16x32_bf16 {O}, {TA(3)}, {RR(3)}, {O}']
    def bfly(e, T, pk):
        ops = []
        for q in range(4):
            ops += [f'v_add_f32 v{T+q}, v{e+q}, v{e+4+q}', f'v_sub_f32 v{T+4+q}, v{e+q}, v{e+4+q}']
        for q in range(2):
            ops += [f'v_cvt_pk_bf16_f32 v{pk+q}, v{T+2*q}, v{T+2*q+1}', f'v_cvt_pk_bf16_f32 v{pk+4+q}, v{T+4+2*q}, v{T+5+2*q}']
        return X_(ops)
    for q in range(4): lg.op(f'ds_read_b128 v[{RJ+4*q}:{RJ+4*q+3}], v24 offset:{1024*q}', 'RJ')
    emit(rdT(2, 'v33', JT, 'JA') + rdT(3, 'v33', JT + 4096, 'JB'))
    a('v_and_b32 v5, 31, v0')
    a('v_lshlrev_b32 v20, 4, v5')
    a('v_lshrrev_b32 v6, 5, v0')
    a('v_lshl_add_u32 v16, v6, 11, v20')
    a('v_add_u32 v17, 57344, v16')
    a(f'v_add_u32 v20, {56*2048}, v20')
    a('s_lshl_b32 s29, s3, 9')
    a('v_add_u32 v21, s29, v20')
    a('s_lshl_b32 s29, s3, 7')
    a(f's_add_u32 s29, s29, {R2O}')
    a('v_lshl_add_u32 v22, v5, 2, s29')
    a('v_mul_u32_u24 v27, 7168, v6')
    a('v_lshl_add_u32 v27, v5, 3, v27')
    uA = unit(ACC, 'a[248:251]', TAB + 32, RJ); uB = unit(ACC + 8, 'a[252:255]', TAB + 48, RJ)
    job = [('wv', None, 'JX')] + X_(uA[:2] + uB[:2]) + [('wl', None, 'JA')] + X_(uA[2:]) + [('wl', None, 'JB')]
    r1 = [('l', f'ds_read_b128 v[{R1+4*q}:{R1+4*q+3}], v23 offset:{1024*q}', 'R') for q in range(16)]
    for i, m in enumerate(uB[2:]): job += X_([m]) + r1[2*i:2*i+2]
    job += bfly(ACC, TT, PK) + bfly(ACC + 8, TT + 8, PK + 2)
    w0 = LW(0, P['n0'])
    for i, x in enumerate(job): emit([x] + w0[i * len(w0) // len(job):(i + 1) * len(w0) // len(job)])
    SJ = TAB + 48
    for hi in range(2):
        P_ = f'v[{PK+4*hi}:{PK+4*hi+3}]'
        vm.op(f'buffer_store_dwordx4 {P_}, v25, s[8:11], s45 offen offset:{1024*hi} sc1', 'js')
        a(f'v_mfma_f32_16x16x32_bf16 v[{SJ+8*hi}:{SJ+8*hi+3}], {P_}, {P_}, 0')
        a(f'v_mfma_f32_16x16x32_bf16 v[{SJ+8*hi+4}:{SJ+8*hi+7}], v[28:31], {P_}, 0')
    emit(r1[8:])
    for hi in range(2):
        q = SJ + 8 * hi
        a(f'v_cndmask_b32 v{q}, v{q}, v{q+1}, s[52:53]')
        a(f'v_cndmask_b32 v{q+2}, v{q+2}, v{q+3}, s[52:53]')
        a(f'v_cndmask_b32 v{q+5}, v{q}, v{q+2}, s[54:55]')
        vm.op(f'buffer_store_dwordx2 v[{q+4}:{q+5}], v26, s[8:11], s48 offen offset:{512*hi} sc1', 'js')
    st(2)
    flg = X_(['s_mul_i32 s29, s28, 37', 's_lshr_b32 s29, s29, 9', 's_mul_i32 s29, s29, 72', 's_lshl_b32 s30, s28, 2', 's_add_u32 s29, s29, s30',
              'v_mov_b32 v35, 1', f'v_mov_b32 v36, {OOB:#x}', 'v_writelane_b32 v36, s29, 0',
              'v_min_u32 v32, 55, v0', 'v_mul_u32_u24 v34, 37, v32', 'v_lshrrev_b32 v34, 9, v34', 'v_mul_u32_u24 v34, 72, v34', 'v_lshl_add_u32 v32, v32, 2, v34',
              'v_min_u32 v34, 13, v0', 's_lshl_b32 s29, s3, 7', 'v_lshl_add_u32 v34, v34, 2, s29',
              's_lshl_b32 s35, s20, 9', f's_add_u32 s35, s35, {WS_FLAGS:#x}', 's_add_u32 s56, s35, 8192', 's_add_u32 s57, s35, 16384'])
    setflag = lambda so, tag: [('wv', None, tag), ('v', f'buffer_store_dword v35, v36, s[8:11], {so} offen sc1', 'fl')]
    tb = {0: 0, 1: 1, 6: 2}
    units = ([(tt, n) for n in range(4) for tt in range(2)] if P['R'] == 12 else []) + [(len(TL) - 1, n) for n in range(4)]
    side = {}
    def spread(lst, u0, u1):
        k = len(lst); m = u1 - u0
        for i, x in enumerate(lst): side.setdefault(u0 + i * m // k, []).append(x)
    NPRE = P['n0'] + P['n1']
    spread(flg, 0, 2)
    spread(LW(P['n0'], NPRE), 0, len(units))
    rdO = lambda ti: rdT(tb[TL[ti]], 'v4', 4096 * TL[ti], f'T{ti}')
    if P['R'] == 12: spread([('wv', None, 'x2')] + rdO(2), 5, 8)
    if P['f1'] < 0: spread(setflag('s35', 'js'), len(units) + P['f1'], len(units) + P['f1'] + 1)
    def post(ui):
        ti, n = units[ui]; t = TL[ti]
        e = ACC + 8 * (ui % 4)
        grp = (ui // 2) % 2 if t < 6 else ui % 2
        b = PK + 8 * grp
        ops = bfly(e, TT + 8 * (ui % 2), b + (2 * t if t < 6 else 0))
        if t == 1:
            ops.append(('l', f'ds_write_b128 v14, v[{b}:{b+3}] offset:{256*n}', 'aw'))
            ops.append(('l', f'ds_write_b128 v14, v[{b+4}:{b+7}] offset:{256*n+1024}', 'aw'))
        elif t == 6:
            ops.append(('l', f'ds_write_b64 v15, v[{b}:{b+1}] offset:{24576+256*n}', 'aw'))
            ops.append(('l', f'ds_write_b64 v15, v[{b+4}:{b+5}] offset:{24576+256*n+1024}', 'aw'))
        return ops
    LAG = 2
    l0 = min(1, len(TL) - 1)
    vm.wait(f't{l0}')
    for ti in range(l0 + 1): emit(rdO(ti))
    vm.wait(f'x{l0}')
    for ui, (ti, n) in enumerate(units):
        if n == 0: lg.wait(f'T{ti}')
        mf = unit(ACC + 8 * (ui % 4), f'a[{XA+16*ti+4*n}:{XA+16*ti+4*n+3}]', TAB + 16 * tb[TL[ti]], R1 + 16 * n)
        fill = (post(ui - LAG) if ui >= LAG else []) + side.get(ui, [])
        k = len(fill)
        for i, m in enumerate(mf):
            a(m)
            emit(fill[i * k // 6:(i + 1) * k // 6])
    for ui in range(len(units) - LAG, len(units)): emit(post(ui))
    a('s_waitcnt lgkmcnt(0)'); lg.all()
    a('s_barrier')
    st(3)
    GT = {0: 128, 2: 160, 1: 192, 3: 224}
    BF = 64
    SA = 112
    nB1 = P['nB1']
    def two(ks, r0, r1, skew):
        o = [(k, r) for k in ks[:len(ks) - skew] for r in (r0, r1)]
        return o + [(k, r0) for k in ks[len(ks) - skew:]] + [(k, r1) for k in ks[len(ks) - skew:]]
    nK = P['nK']
    seq = two(RED, 0, 2, 0) + two(RED[:nB1], 1, 3, 0) + [(k, r) for k in SPL[:nK] for r in (0, 2, 1, 3)]
    seq += two(SPL[nK:] + [28], 0, 2, 2) + two(RED[nB1:] + [28] + SPL[nK:], 1, 3, 4)
    assert len(seq) == 116
    last_use = {k: max(i for i, f in enumerate(seq) if f[0] == k) for k in KORD}
    first_use = {k: min(i for i, f in enumerate(seq) if f[0] == k) for k in KORD}
    done = {r: max(i for i, f in enumerate(seq) if f[1] == r) for r in range(4)}
    def baddr(k, rt):
        if k < 28: return f'v{16 + k // 14} offset:{4096*(k%14)+512*rt}'
        return f'v20 offset:{512*rt}'
    breg = lambda i: BF + 4 * (i % 12)
    rdB = lambda i: ('l', f'ds_read_b128 v[{breg(i)}:{breg(i)+3}], {baddr(*seq[i])}', f'b{i}')
    NS = 232
    fill = [[] for _ in range(NS + 1)]
    def put(lst, s0, s1):
        k = len(lst); m = s1 - s0
        for i, x in enumerate(lst): fill[min(s0 + i * m // k, NS)].append(x)
    AHEAD = 8
    released = set(RED)
    rel = lambda ks: ('f', lambda: released.update(ks), None)
    fx = first_use[SPL[0]]; fa = first_use[28]
    GAP = P['R'] == 4
    if P['f1'] >= 0: put(setflag('s35', 'js') + ([('st', None, 1)] if 'FF' in exp else []), P['f1'], P['f1'] + 1)
    poll1 = [('v', 'buffer_load_dword v37, v32, s[8:11], s35 offen sc1', 'p1')]
    chk1 = [('f', lambda: check('p1', 'v32', 's35', 'K2_P1'), None), ('st', None, 4)]
    x1s = X_(['s_lshl_b32 s29, s20, 14', 's_lshl_b32 s30, s3, 8', 's_add_u32 s30, s30, s29', f's_add_u32 s30, s30, {WS_ST:#x}', 's_add_u32 s31, s30, 4096',
              's_lshl_b32 s29, s20, 17', 's_lshl_b32 s49, s3, 13', 's_add_u32 s49, s49, s29', f's_add_u32 s49, s49, {WS_X1:#x}'])
    def load_x1(z, c):
        return X_([f's_add_u32 m0, s25, {4096*z}', f's_add_u32 s46, s49, {32768*(z>>1)+4096*(z&1)}']) + \
               [('v', f'buffer_load_dwordx4 v1, s[8:11], s46 offen offset:{1024*q} sc1 lds', f'c{c}') for q in range(4)]
    load_sd = [('v', f'buffer_load_dwordx2 v[{SA+2*j}:{SA+2*j+1}], v27, s[8:11], s{30+j//4} offen offset:{1024*(j%4)} sc1', 'sd') for j in range(7)]
    bar = {}
    for c, ch in enumerate(CH):
        bar[c] = 2 * (first_use[ch[0]] - P['ba']) - 1 if (c or not GAP) else 2 * fx - 1
    bx = bar[len(CH) - 1] + 1
    inv = 0x3b124925
    fin = [('wv', None, 'sd')]
    for (d, s_) in ((0, 2), (4, 6), (8, 10), (0, 4), (8, 12), (0, 8)):
        fin += X_([f'v_add_f32 v{SA+d}, v{SA+d}, v{SA+s_}', f'v_add_f32 v{SA+d+1}, v{SA+d+1}, v{SA+s_+1}'])
    fin += X_([f'v_mov_b32 v{SA+2}, v{SA}', f'v_mov_b32 v{SA+3}, v{SA+1}', 'v_mov_b32 v31, 0',
               f'v_permlane32_swap_b32 v{SA}, v{SA+2}', f'v_permlane32_swap_b32 v{SA+1}, v{SA+3}',
               f'v_add_f32 v{SA}, v{SA}, v{SA+2}', f'v_add_f32 v{SA+2}, v{SA+1}, v{SA+3}',
               f'v_mul_f32 v{SA}, {inv:#x}, v{SA}', f'v_mul_f32 v{SA+2}, {inv:#x}, v{SA+2}',
               f'v_fma_f32 v{SA+2}, -v{SA}, v{SA}, v{SA+2}', f'v_max_f32 v{SA+2}, 0, v{SA+2}',
               f'v_cvt_pk_bf16_f32 v28, -v{SA}, -v{SA}', f'v_cvt_pk_bf16_f32 v{SA+2}, v{SA+2}, v{SA+2}',
               f'v_lshlrev_b32 v{SA+2}, 16, v{SA+2}', f'v_add_f32 v{SA+2}, 0x3727c5ac, v{SA+2}',
               f'v_cvt_pk_bf16_f32 v{SA+2}, v{SA+2}, v{SA+2}', f'v_lshlrev_b32 v{SA+2}, 16, v{SA+2}',
               f'v_sqrt_f32 v{SA+2}, v{SA+2}', 's_nop 0',
               f'v_cvt_pk_bf16_f32 v30, v{SA+2}, v{SA+2}', f'v_cvt_pk_bf16_f32 v29, -v{SA}, v{SA+2}',
               f'v_lshlrev_b32 v{SA+2}, 16, v30', f'v_rcp_f32 v{SA+2}, v{SA+2}'])
    fin += [('l', 'ds_write_b128 v21, v[28:31]', 'st')] + X_([f'v_mul_f32 v{SA+2}, v{SA+2}, v{SA+2}']) + [('l', f'ds_write_b32 v22, v{SA+2}', 'st')]
    fs = bx - 19
    put(fin + [('wl', None, 'st')], fs, fs + 17)
    wd_setup = X_(['s_mul_i32 s38, s21, 112', 's_mul_i32 s31, s3, 28', 's_add_u32 s38, s38, s31', 's_lshl_b32 s38, s38, 11',
                   f's_add_u32 s38, s38, {WS_WDF:#x}', 's_and_b32 s32, s3, 1', 's_lshl_b32 s32, s32, 10', 's_lshr_b32 s31, s3, 1', 's_lshl_b32 s31, s31, 8',
                   's_or_b32 s32, s32, s31', 'v_xor_b32 v2, s32, v1', 'v_xor_b32 v3, 0x400, v2',
                   's_mul_i32 s29, s20, 448', 's_lshl_b32 s31, s28, 1', 's_add_u32 s29, s29, s31', 's_lshl_b32 s29, s29, 10', f's_add_u32 s58, s29, {WS_HF:#x}'])
    free = [(0, 232), (0, 240), (0, 248)] + sorted((2 * last_use[k] + 2, wreg(k)) for k in KORD)
    dreg = lambda j: free[j][1]
    def load_wd(j):
        r = dreg(j); out = []
        if j % 2 == 0: out += X_([f's_add_u32 s39, s38, {2048*j}'])
        out += [('v', f'buffer_load_dwordx4 a[{r}:{r+3}], v2, s[8:11], s39 offen offset:{2048*(j%2)}', f'd{j}'),
                ('v', f'buffer_load_dwordx4 a[{r+4}:{r+7}], v3, s[8:11], s39 offen offset:{2048*(j%2)}', f'd{j}')]
        return out
    res = X_(['s_lshl_b32 s33, s22, 1',
              's_lshl_b32 s34, s21, 4', 's_and_b32 s59, s3, 1', 's_lshl_b32 s59, s59, 3', 's_add_u32 s34, s34, s59',
              's_and_b32 s59, s3, 2', 's_lshl_b32 s59, s59, 1', 's_add_u32 s34, s34, s59',
              'v_lshrrev_b32 v10, 5, v0', 'v_and_b32 v11, 31, v0', 's_lshl_b32 s59, s33, 9', 'v_lshl_add_u32 v12, v11, 4, s59',
              's_lshl_b32 s59, s33, 7', f's_add_u32 s59, s59, {R2O}', 'v_lshl_add_u32 v18, v11, 2, s59',
              'v_add_u32 v11, s34, v10'])
    for q in range(2):
        res += X_(['v_mul_u32_u24 v13, 147, v11', 'v_lshrrev_b32 v13, 10, v13',
                   'v_mul_u32_u24 v14, 7, v13', 'v_sub_u32 v14, v11, v14',
                   'v_and_b32 v15, 3, v13', 'v_lshrrev_b32 v13, 2, v13',
                   'v_cmp_eq_u32 vcc, 6, v14',
                   'v_lshl_add_u32 v8, v15, 1, v14', 'v_and_b32 v14, 6, v14', 'v_lshl_add_u32 v8, v14, 2, v8', 'v_sub_u32 v8, v8, v14',
                   'v_add_u32 v15, 24, v15', 'v_cndmask_b32 v8, v8, v15, vcc',
                   'v_mul_u32_u24 v13, 28672, v13', 'v_lshrrev_b32 v14, 1, v8', 'v_lshl_add_u32 v13, v14, 11, v13',
                   'v_and_b32 v8, 1, v8', 'v_lshl_add_u32 v13, v8, 3, v13', f'v_add_u32 v{38+q}, v13, v12', 'v_add_u32 v11, 2, v11'])
    res += X_(['v_lshlrev_b32 v4, 4, v10', 's_lshl_b32 s59, s34, 4', f's_add_u32 s59, s59, {WS_MOD + 5*1792}'])
    for q in range(2):
        res.append(('v', f'buffer_load_dwordx4 v[{40+4*q}:{43+4*q}], v4, s[8:11], s59 offen offset:{32*q}', 'gb'))
    for q in range(2):
        res.append(('l', f'ds_read_b64 v[{56+2*q}:{57+2*q}], v{38+q}', 'res'))
        res.append(('l', f'ds_read_b64 v[{8+2*q}:{9+2*q}], v{38+q} offset:512', 'res'))
    res += [('l', 'ds_read_b32 v12, v18', 'res'), ('l', 'ds_read_b32 v13, v18 offset:128', 'res')]
    res += X_(['v_and_b32 v19, 15, v0', 'v_lshlrev_b32 v19, 1, v19', 'v_bfe_u32 v14, v0, 4, 1', 'v_add_u32 v19, v19, v14',
               f'v_mul_u32_u24 v19, {16*896}, v19', 'v_add_u32 v19, v19, v4',
               f's_mul_i32 s60, s33, {32*16*896}', 's_mul_i32 s59, s20, 896', 's_add_u32 s60, s60, s59', 's_lshl_b32 s59, s34, 3', 's_add_u32 s60, s60, s59',
               f's_add_u32 s61, s60, {32*16*896}',
               's_lshl_b32 s62, s20, 2', 's_add_u32 s62, s62, s33', 's_mul_i32 s62, s62, 112', 's_mul_i32 s59, s3, 28', 's_add_u32 s62, s62, s59',
               's_lshl_b32 s62, s62, 10', f's_add_u32 s62, s62, {WS_HF:#x}', f's_add_u32 s63, s62, {112*1024}',
               's_mov_b32 s12, s50', 's_mov_b32 s13, s51', f's_mov_b32 s14, {NB_X:#x}', 's_mov_b32 s15, 0x00020000'])
    for lam in range(1, 4):
        res += X_([f's_xor_b32 s59, s3, {lam}', 's_mul_i32 s59, s59, 6144', f'v_add_u32 v{4+lam}, s59, v1'])
    res += X_(['s_mul_i32 s59, s3, 6144', 'v_add_u32 v14, s59, v1'])
    res2 = [('wl', None, 'res'), ('wv', None, 'gb')]
    res2 += X_([f'v_mul_f32 v{48+i}, v13, v{40+i}' for i in range(8)] + [f'v_mul_f32 v{40+i}, v12, v{40+i}' for i in range(8)])
    put(res, bx, bx + 32)
    def epi(rt, packed, tag):
        g = GT[rt]; u = g + 16; o = X_([f's_add_u32 s29, s58, {rt*112*1024}'])
        for hh in range(2):
            o += X_([f'v_max_f32 v{g+i}, 0, v{g+i}' for i in range(8 * hh, 8 * hh + 8)])
            if packed: o += X_([f'v_pk_mul_f32 v[{g+2*i}:{g+2*i+1}], v[{g+2*i}:{g+2*i+1}], v[{u+2*i}:{u+2*i+1}]' for i in range(4 * hh, 4 * hh + 4)])
            else: o += X_([f'v_mul_f32 v{g+i}, v{g+i}, v{u+i}' for i in range(8 * hh, 8 * hh + 8)])
            o += X_([f'v_cvt_pk_bf16_f32 v{u+i}, v{g+2*i}, v{g+2*i+1}' for i in range(4 * hh, 4 * hh + 4)])
            o.append(('v', f'buffer_store_dwordx4 v[{u+4*hh}:{u+4*hh+3}], v1, s[8:11], s29 offen offset:{1024*hh} sc1', tag))
        return o
    e0 = 2 * done[0] + 2
    put(epi(0, False, 'hA'), e0, e0 + 9)
    put(epi(2, False, 'hA') + ([('st', None, 6)] if 'FF' not in exp else []), e0 + 9, e0 + 18)
    assert 2 * done[2] + 2 <= e0 + 9
    put(res2, e0 + 18, e0 + 24)
    put(setflag('s56', 'hA') + ([('st', None, 1)] if 'GG' in exp else []), e0 + 18 + 8 * P['fa'], e0 + 19 + 8 * P['fa'])
    put(epi(1, False, 'hB'), 2 * done[1] + 2, NS)
    put([('v', 'buffer_load_dword v37, v34, s[8:11], s56 offen sc1', 'pA')], NS - P['pa'], NS - P['pa'] + 1)
    hreg = lambda s: 128 + 4 * (s % 32) if s % 32 < 16 else 64 + 4 * (s % 32 - 16)
    def loadh(s):
        ph, k = divmod(s, 28); b = hreg(s); o = []
        if k % 4 == 0: o += X_([f's_add_u32 s47, s{62+ph}, {1024*k}'])
        return o + [('v', f'buffer_load_dwordx4 v[{b}:{b+3}], v1, s[8:11], s47 offen offset:{1024*(k%4)} sc1', f'h{s}')]
    dt = 8 / P['rate']
    nld = lambda item: sum(0.5 if 'x2' in x[1] else 1 for x in item if x[0] == 'v')
    wq = list(KORD[NPRE:]); t = 0.0
    c1 = 2 * fx if GAP else P['c1']
    d0 = 8 / P['r0']
    while wq and t + d0 < c1:
        put(load_w(wq.pop(0)), int(t), int(t + d0) + 1); t += 2 * d0
    gap = []
    if GAP:
        def paced(n):
            o = []
            for _ in range(n):
                if wq: o += [('f', lambda: a(f"s_waitcnt vmcnt({P['gw']})"), None)] + load_w(wq.pop(0))
            return o
        pl = ([('st', None, 6)] if 'FF' in exp else []) + poll1
        if P['p1'] >= 0: put(pl, P['p1'], P['p1'] + 1); pl = []
        gap = paced(P['g1']) + pl + paced(P['g2']) + chk1
    else:
        put(poll1, P['p1'], P['p1'] + 1); put(chk1, c1 - 1, c1)
    q_ = [(bar[c] - 24, 0, load_x1(z, c)) for c, ch in enumerate(CH) for z in ch] + [(fs - 16, 0, load_sd)]
    q_ += [(2 * first_use[k] - 8, 0, load_w(k)) for k in wq]
    q_.sort(key=lambda x: x[0])
    q_ += [(1000 + j, free[j][0], load_wd(j)) for j in range(28)]
    t = float(c1); late = []; burst = P['b0']
    stores = [i for i, f in enumerate(fill) for x in f if x[0] == 'v' and 'store_dwordx4' in x[1]]
    ca = NS - P['ca']; nh = 0
    if P['ca']: put([('f', lambda: check('pA', 'v34', 's56', 'K2_PA'), None), ('st', None, 8)], ca - 1, ca)
    while q_:
        dl, earl, item = q_[0]
        if GAP and burst > 0: gap += item; burst -= nld(item); q_.pop(0); continue
        while stores and stores[0] <= t: t += P['sc'] * dt; stores.pop(0)
        if P['ca'] and ca <= max(t, min(earl, ca)) and t < NS - P['qa'] and nh < 16:
            t = max(t, ca); item = loadh(nh); nh += 1
        else:
            q_.pop(0); t = max(t, earl)
            if t >= NS - P['qd']: late.append(dl - 1000); continue
        put(item, int(t), int(t + dt * (nld(item) - 1)) + 1)
        if 'dbg' in exp and dl < 1000: print(item[-1][2], 'issue', int(t), 'need', dl)
        t += dt * nld(item)
    for c, ch in enumerate(CH):
        b_ = [('wv', None, f'c{c}'), ('x', 's_barrier', None), rel([k for k in SPL if k % 7 in ch] + ([28] if c == len(CH) - 1 else []))] + ([('st', None, 5)] if c == 0 else [])
        if GAP and c == 0: fill[bar[0]] += gap + b_
        else: fill[bar[c]] += b_
    if 'dbg' in exp: print('late Wd', late, 'nh', nh, 'bar', bar, 'e0', e0, 'max fill', sorted(len(f) for f in fill)[-3:])
    for z, sl in enumerate(P['sx'].split(':') if P['sx'] else []): fill[int(sl)].append(('f', lambda z=z: st(8 + z, True), None))
    if 'noW!' in exp: fill = [[f for f in fl if not (f[0] == 'v' and f[2][0] in 'wd')] for fl in fill]; late = []
    if 'noD!' in exp: fill = [[f for f in fl if not (f[0] == 'v' and f[2][0] in 'd')] for fl in fill]; late = []
    if 'noX!' in exp: fill = [[f for f in fl if not (f[0] in ('v', 'wv') and f[2] in ('x1d', 'sd'))] for fl in fill]
    if 'noA!' in exp: fill = [[f for f in fl if not (f[0] == 'x' and f[1].startswith(('v_max', 'v_mul_f32', 'v_cvt', 'v_add_f32')))] for fl in fill]
    if 'noB!' in exp: fill = [[f for f in fl if not (f[0] == 'x' and f[1].startswith('s_barrier'))] for fl in fill]
    if 'noS!' in exp: fill = [[f for f in fl if not (f[0] in ('v', 'wv') and f[2] in ('hA',))] for fl in fill]
    emit([rdB(i) for i in range(AHEAD)] + wd_setup + x1s)
    started = set(); nb = AHEAD
    for i, (k, rt) in enumerate(seq):
        while nb <= i + 2 and nb < 116 and seq[nb][0] in released: emit([rdB(nb)]); nb += 1
        if 'noW!' not in exp: vm.wait(f'w{k}')
        lg.wait(f'b{i}')
        for m in range(2):
            d = GT[rt] + 16 * m; w = wreg(k) + 4 * m; b = breg(i)
            c = f'v[{d}:{d+15}]' if rt in started else '0'
            a(f'v_mfma_f32_32x32x16_bf16 v[{d}:{d+15}], a[{w}:{w+3}], v[{b}:{b+3}], {c}')
            if nb <= i + AHEAD and nb < 116 and seq[nb][0] in released: emit([rdB(nb)]); nb += 1
            emit(fill[2 * i + m])
        started.add(rt)
    st(7)
    emit(fill[NS] + epi(3, True, 'hB'))
    flB = 'buffer_store_dword v35, v36, s[8:11], s57 offen sc1'
    if not P['ca']:
        check('pA', 'v34', 's56', 'K2_PA', ['s_waitcnt vmcnt(0)', flB])
        st(8)
    stream = []
    for k in range(28):
        if k in late: stream.append((0, load_wd(k)))
        if k >= nh: stream.append((0, loadh(k)))
    stream.insert(max(len(stream) - P['pb'], P['w0']), (0, [('v', 'buffer_load_dword v37, v34, s[8:11], s57 offen sc1', 'pB')]))
    stream.append((P['cb'], [('f', lambda: check('pB', 'v34', 's57', 'K2_PB'), None), ('st', None, 11)]))
    stream += [(k - 3, loadh(28 + k)) for k in range(28)]
    def topup(win, s):
        while stream and stream[0][0] <= s and len(vm.tags) - 1 - vm.done < win: emit(stream.pop(0)[1])
    for _ in range(P['w0']): emit(stream.pop(0)[1])
    def reduce(ph):
        G2 = 192 + 32 * ph; gb = 40 + 8 * ph; xs = 56 if ph == 0 else 8; T = 20; ad = (5, 6, 7, 14) if ph else (32, 33, 38, 39)
        blk = lambda lam: G2 + 16 * (lam & 1) + 8 * (lam >> 1)
        def fma(r):
            if ph: return X_([f'v_pk_fma_f32 v[{T+2*i}:{T+1+2*i}], v[{r+2*i}:{r+2*i+1}], v[{gb+2*i}:{gb+2*i+1}], v[{T+2*i}:{T+1+2*i}]' for i in range(4)])
            return X_([f'v_fma_f32 v{T+i}, v{r+i}, v{gb+i}, v{T+i}' for i in range(8)])
        o1 = [('l', f'ds_write_b128 v{ad[lam-1]}, v[{blk(lam)+4*q}:{blk(lam)+4*q+3}] offset:{2048*(lam-1)+1024*q}', f'rw{ph}') for lam in (2, 1, 3) for q in range(2)]
        o0 = []
        for i in range(4): o0 += X_([f'v_lshlrev_b32 v{T+2*i}, 16, v{xs+i}', f'v_and_b32 v{T+1+2*i}, 0xffff0000, v{xs+i}'])
        o1 += fma(G2)
        o2 = [('wl', None, f'rw{ph}'), ('x', 's_barrier', None)]
        o2 += [('l', f'ds_read_b128 v[{G2+8+4*z}:{G2+11+4*z}], v{ad[3]} offset:{1024*z}', f'rr{ph}{z//2}') for z in range(6)]
        o3 = []
        for lam in range(3): o3 += [('wl', None, f'rr{ph}{lam}')] + fma(G2 + 8 + 8 * lam)
        o3 += X_([f'v_cvt_pk_bf16_f32 v{28+i}, v{T+2*i}, v{T+1+2*i}' for i in range(4)] + ['v_permlane32_swap_b32 v28, v30', 'v_permlane32_swap_b32 v29, v31'])
        o3 += [('v', f'buffer_store_dwordx4 v[28:31], v19, s[12:15], s{60+ph} offen', 'out')]
        return o0, o1, o2, o3
    f2 = [[] for _ in range(113)]
    def put2(lst, s0, s1):
        k = len(lst); m = s1 - s0
        for i, x in enumerate(lst): f2[s0 + i * m // k].append(x)
    rA = reduce(0); rB = reduce(1)
    put2(setflag('s57', 'hB') + [('st', None, 9)], P['fb'], P['fb'] + 1)
    put2(X_([f'v_add_u32 v{d}, {RA}, v{r}' for d, r in zip((32, 33, 38, 39), (5, 6, 7, 14))]) + rA[0], 40, 50)
    put2(rA[1], 58, 64); put2(rA[2], 68, 72); put2(rA[3], 76, 88); put2(rB[0], 90, 96)
    emit(f2[0])
    for s in range(56):
        ph, k = divmod(s, 28)
        while f'h{s}' not in vm.tags: emit(stream.pop(0)[1])
        vm.wait(f'h{s}')
        if ph == 0 and '!' not in exp: vm.wait(f'd{k}')
        if k == 0: st(10 + 3 * ph)
        b = hreg(s); dr = dreg(k)
        for c in (1, 0):
            d = 192 + 32 * ph + 16 * c
            cc = '0' if k == 0 else f'v[{d}:{d+15}]'
            a(f'v_mfma_f32_32x32x16_bf16 v[{d}:{d+15}], a[{dr+4*c}:{dr+4*c+3}], v[{b}:{b+3}], {cc}')
            if c == 1 and 2 * s + 1 >= P['fb']: topup(P['win'], s)
            emit(f2[2 * s + 2 - c])
        if k == 27: st(12 + 2 * ph)
    emit(rB[1] + rB[2] + rB[3])
    if stamps:
        a('s_waitcnt vmcnt(0)')
        st(15)
    a.label('K2_END')
    a('s_endpgm')
    for t_ in tail:
        if t_.endswith(':'): a.label(t_[:-1])
        else: a(t_)
    return a
```

```python
from asmlib import *
from layout import *
import struct

XS = 912
RO = 64 * XS
MO = RO + 256
K0_LDS = 57344 + 2048 + 512

def srd(a, d, base, nbytes):
    a(f's_mov_b32 s{d}, s{base}')
    a(f's_mov_b32 s{d+1}, s{base+1}')
    a(f's_mov_b32 s{d+2}, {nbytes:#x}' if isinstance(nbytes, int) else f's_mov_b32 s{d+2}, {nbytes}')
    a(f's_mov_b32 s{d+3}, 0x00020000')

def rb16(a, dst, src):
    a(f'v_cvt_pk_bf16_f32 v{dst}, v{src}, v{src}')
    a(f'v_lshlrev_b32 v{dst}, 16, v{dst}')

def stamp(a, kidx, slot, ws_srd, enable, wgreg='s2', tmp_s=96, tmp_v=(250, 251, 252)):
    if not enable: return
    v0_, v1_, v2_ = tmp_v
    a(f's_memrealtime s[{tmp_s}:{tmp_s+1}]')
    a(f's_memtime s[{tmp_s+2}:{tmp_s+3}]')
    a('s_waitcnt lgkmcnt(0)')
    a(f'v_mov_b32 v{v0_}, s{tmp_s}')
    a(f'v_mov_b32 v{v1_}, s{tmp_s+2}')
    a(f's_lshl_b32 s{tmp_s+2}, {wgreg}, 7')
    a(f's_add_u32 s{tmp_s+2}, s{tmp_s+2}, {WS_STAMP + kidx * 0x10000 + slot * 8:#x}')
    a(f'v_mov_b32 v{v2_}, s{tmp_s+2}')
    a(f'buffer_store_dwordx2 v[{v0_}:{v1_}], v{v2_}, s[{ws_srd}:{ws_srd+3}], 0 offen')

def w_rows(a, kp, wave, vdst, vt0, vt1, st):
    a(f'v_and_b32 v{vt0}, 31, v0')
    a(f'v_lshlrev_b32 v{vt0}, 4, v{vt0}')
    a('v_cmp_gt_u32 vcc, 32, v0')
    for kk in range(2):
        s0, s1 = st + 2 * kk, st + 2 * kk + 1
        a(f's_lshl_b32 s{s0}, {wave}, 8')
        a(f's_add_u32 s{s0}, s{s0}, {kp}')
        if kk: a(f's_add_u32 s{s0}, s{s0}, 128')
        a(f's_sub_u32 s{s1}, 2048, s{s0}')
        a(f's_and_b32 s{s1}, s{s1}, 2047')
        a(f's_mul_i32 s{s0}, s{s0}, 450')
        a(f's_mul_i32 s{s1}, s{s1}, 450')
        a(f'v_mov_b32 v{vdst+kk}, s{s1}')
        a(f'v_mov_b32 v{vt1}, s{s0}')
        a(f'v_cndmask_b32 v{vdst+kk}, v{vdst+kk}, v{vt1}, vcc')
        a(f'v_and_b32 v{vdst+kk}, -16, v{vdst+kk}')
        a(f'v_add_u32 v{vdst+kk}, v{vdst+kk}, v{vt0}')

def gen_k0(stamps=False, exp=''):
    a = Asm()
    TV = (120, 121, 122)
    nst = (3 if 'KA' in exp else 1) if stamps else 0
    a.label('k0_kernel')
    if 'KA' in exp: a('s_memrealtime s[92:93]')
    a(f's_cmp_ge_u32 s2, {K0_GRID}')
    a('s_cbranch_scc1 K0_END')
    a('s_load_dwordx2 s[4:5], s[0:1], 0')
    a('s_load_dwordx2 s[6:7], s[0:1], 88')
    a('s_load_dwordx4 s[16:19], s[0:1], 56')
    a('s_load_dwordx4 s[32:35], s[0:1], 8')
    a('s_getpc_b64 s[36:37]')
    a.label('K0_PC')
    a('s_sub_u32 s36, s36, K0_PC-k0_kernel')
    a('s_subb_u32 s37, s37, 0')
    a('s_mov_b32 s38, k1_kernel-k0_kernel')
    a('s_mov_b32 s39, 0x00020000')
    a('v_lshlrev_b32 v1, 4, v0')
    a('buffer_load_dwordx4 v[112:115], v1, s[36:39], 0 offen')
    a('v_lshrrev_b32 v1, 6, v0')
    a('v_and_b32 v0, 63, v0')
    a('v_readfirstlane_b32 s3, v1')
    a('v_lshlrev_b32 v1, 4, v0')
    a('v_and_b32 v2, 15, v0')
    a('v_lshrrev_b32 v3, 4, v0')
    a(f's_cmp_ge_u32 s2, {K0_NA}')
    a('s_cbranch_scc1 K0_B')
    a('s_lshr_b32 s21, s2, 5')
    a('s_lshl_b32 s21, s21, 3')
    a('s_and_b32 s20, s2, 7')
    a('s_add_u32 s21, s21, s20')
    a('s_mul_i32 s23, s21, 896')
    a(f's_mul_i32 s24, s3, {8*28672}')
    a('s_add_u32 s23, s23, s24')
    a(f's_mul_i32 s24, s3, {8*XS}')
    a('s_mov_b32 m0, s24')
    a('s_waitcnt lgkmcnt(0)')
    if 'KA' in exp: a('s_memrealtime s[94:95]')
    srd(a, 8, 4, NB_X)
    a('s_mov_b32 exec_hi, 0x00ffffff')
    for r in range(8):
        a('buffer_load_dwordx4 v1, s[8:11], s23 offen lds')
        if r < 7:
            a(f's_add_u32 m0, m0, {XS}')
            a('s_add_u32 s23, s23, 28672')
    a('s_mov_b32 exec_hi, -1')
    srd(a, 12, 6, WS_SIZE)
    stamp(a, 0, 0, 12, stamps, tmp_v=TV)
    if 'KA' in exp:
        a('v_mov_b32 v120, s92'); a('v_mov_b32 v121, s94')
        a('buffer_store_dword v120, v122, s[12:15], 0 offen offset:24')
        a('buffer_store_dword v121, v122, s[12:15], 0 offen offset:32')
    a('s_lshr_b32 s22, s2, 2')
    a('s_and_b32 s22, s22, 6')
    a('s_lshr_b32 s20, s3, 2')
    a('s_add_u32 s22, s22, s20')
    a('s_and_b32 s29, s3, 3')
    CT = 80
    a('s_lshl_b32 s24, s29, 4')
    a('v_add_u32 v4, s24, v2')
    a('v_lshrrev_b32 v5, 1, v4')
    a('v_and_b32 v6, 1, v4')
    a('v_cmp_eq_u32 vcc, 1, v4')
    a('v_mov_b32 v7, 32')
    a('v_cndmask_b32 v5, v5, v7, vcc')
    a('v_mov_b32 v7, 0')
    a('v_cndmask_b32 v6, v6, v7, vcc')
    a('v_cvt_f32_u32 v5, v5')
    a('v_cvt_f32_u32 v6, v6')
    a('v_mul_f32 v5, 0x3c800000, v5')
    a('v_mul_f32 v6, 0x3e800000, v6')
    a('v_lshlrev_b32 v7, 3, v3')
    a('v_cvt_f32_u32 v7, v7')
    a('v_fma_f32 v6, v5, v7, v6')
    a('v_mul_f32 v7, 0x42000000, v5')
    a('v_add_f32 v7, v7, v6')
    for j in range(8):
        a(f'v_cos_f32 v{CT+j}, v6')
        a(f'v_cos_f32 v{CT+8+j}, v7')
        if j < 7:
            a('v_add_f32 v6, v6, v5')
            a('v_add_f32 v7, v7, v5')
    a('s_lshl_b32 s24, s3, 3')
    a('v_lshrrev_b32 v4, 3, v0')
    a('v_add_u32 v4, s24, v4')
    a(f'v_mul_u32_u24 v5, {XS}, v4')
    a('v_and_b32 v6, 7, v0')
    a('v_lshl_add_u32 v5, v6, 4, v5')
    a('v_and_b32 v6, 3, v0')
    a('v_lshrrev_b32 v7, 2, v2')
    a('v_lshl_add_u32 v7, v3, 3, v7')
    a(f'v_mul_u32_u24 v8, {XS}, v7')
    a('v_mul_u32_u24 v7, 224, v6')
    a('s_lshl_b32 s25, s22, 3')
    a('v_add3_u32 v8, v8, v7, s25')
    a(f'v_mul_u32_u24 v11, {2*57344}, v3')
    a('s_and_b32 s27, s21, 3')
    a('v_xor_b32 v7, s27, v2')
    a('v_lshl_add_u32 v11, v7, 4, v11')
    a(f's_mul_i32 s26, s29, {8*57344}')
    a('s_lshl_b32 s27, s21, 8')
    a('s_add_u32 s26, s26, s27')
    a('s_lshl_b32 s27, s22, 13')
    a('s_add_u32 s26, s26, s27')
    a(f's_add_u32 s26, s26, {WS_U:#x}')
    a('s_add_u32 s27, s26, 57344')
    a('v_lshlrev_b32 v12, 2, v4')
    a('v_lshlrev_b32 v13, 1, v4')
    a('v_lshlrev_b32 v14, 5, v3')
    a('v_lshlrev_b32 v15, 4, v3')
    a('s_mov_b32 s28, 0x3f803f80')
    for i in range(4): a(f'v_mov_b32 v{16+i}, 0')
    a(f's_waitcnt vmcnt({nst})')
    stamp(a, 0, 1, 12, stamps, tmp_v=TV)
    XB = 20
    for i in range(7):
        a(f'ds_read_b128 v[{XB+4*i}:{XB+4*i+3}], v5 offset:{128*i}')
    for i in range(7):
        a(f's_waitcnt lgkmcnt({6-i})')
        for j in range(4):
            r = XB + 4 * i + j
            a(f'v_dot2c_f32_bf16 v{16+(j&1)}, s28, v{r}')
            a(f'v_dot2c_f32_bf16 v{18+(j&1)}, v{r}, v{r}')
    a('v_add_f32 v16, v16, v17')
    a('v_add_f32 v18, v18, v19')
    for qp in ('quad_perm:[1,0,3,2]', 'quad_perm:[2,3,0,1]', 'row_half_mirror'):
        a(f'v_add_f32_dpp v16, v16, v16 {qp} row_mask:0xf bank_mask:0xf')
        a(f'v_add_f32_dpp v18, v18, v18 {qp} row_mask:0xf bank_mask:0xf')
    inv = 0x3b124925
    a(f'v_mul_f32 v16, {inv:#x}, v16')
    a(f'v_mul_f32 v18, {inv:#x}, v18')
    a('v_fma_f32 v18, -v16, v16, v18')
    a('v_max_f32 v18, 0, v18')
    a('v_cvt_pk_bf16_f32 v17, -v16, -v16')
    rb16(a, 18, 18)
    a(f'ds_write_b16 v13, v17 offset:{MO}')
    a('v_add_f32 v18, 0x3727c5ac, v18')
    rb16(a, 18, 18)
    a('v_sqrt_f32 v18, v18')
    rb16(a, 18, 18)
    a('v_rcp_f32 v18, v18')
    a(f'ds_write_b32 v12, v18 offset:{RO}')
    a('s_waitcnt lgkmcnt(0)')
    a('s_barrier')
    a('s_cmp_eq_u32 s22, 7')
    a('s_cbranch_scc1 K0_END')
    for ks in range(2):
        for h in range(2):
            a(f'ds_read_b128 v[{20+8*ks+4*h}:{23+8*ks+4*h}], v14 offset:{RO+128*ks+16*h}')
    for ks in range(2):
        a(f'ds_read_b128 v[{36+4*ks}:{39+4*ks}], v15 offset:{MO+64*ks}')
    for ks in range(2):
        for t in range(4):
            for h in range(2):
                b = 44 + 8 * t + 4 * ks + 2 * h
                a(f'ds_read_b64_tr_b16 v[{b}:{b+1}], v8 offset:{ks*32*XS + h*4*XS + t*56}')
        if ks == 0:
            a('s_waitcnt lgkmcnt(10)')
            for p in range(8):
                a(f'v_pk_mul_f32 v[{CT+2*p}:{CT+2*p+1}], v[{CT+2*p}:{CT+2*p+1}], v[{20+2*p}:{21+2*p}]')
    for p in range(8):
        a(f'v_cvt_pk_bf16_f32 v{20+p}, v{CT+2*p}, v{CT+2*p+1}')
    a('s_waitcnt lgkmcnt(8)')
    a('v_mfma_f32_16x16x32_bf16 v[28:31], v[20:23], v[36:39], 0')
    a('v_mfma_f32_16x16x32_bf16 v[28:31], v[24:27], v[40:43], v[28:31]')
    DT = 80
    for t in range(4):
        a(f'v_mfma_f32_16x16x32_bf16 v[{DT+4*t}:{DT+4*t+3}], v[20:23], v[{44+8*t}:{47+8*t}], v[28:31]')
    a('s_waitcnt lgkmcnt(0)')
    for t in range(4):
        a(f'v_mfma_f32_16x16x32_bf16 v[{DT+4*t}:{DT+4*t+3}], v[24:27], v[{48+8*t}:{51+8*t}], v[{DT+4*t}:{DT+4*t+3}]')
    for i in range(4):
        a(f'v_cvt_pk_bf16_f32 v{104+2*i}, v{DT+i}, v{DT+4+i}')
        a(f'v_cvt_pk_bf16_f32 v{105+2*i}, v{DT+8+i}, v{DT+12+i}')
    a('buffer_store_dwordx4 v[104:107], v11, s[12:15], s26 offen')
    a('buffer_store_dwordx4 v[108:111], v11, s[12:15], s27 offen')
    if stamps:
        a('s_waitcnt vmcnt(0)')
        stamp(a, 0, 2, 12, stamps, tmp_v=TV)
    a('s_endpgm')
    a.label('K0_B')
    a(f's_cmp_ge_u32 s2, {K0_B0 + K0_NB}')
    a('s_cbranch_scc1 K0_C')
    a(f's_sub_u32 s20, s2, {K0_B0}')
    a('v_lshrrev_b32 v4, 3, v0')
    a('v_lshlrev_b32 v5, 1, v3')
    a('v_and_b32 v6, 7, v0')
    a('v_xor_b32 v6, v6, v5')
    a('v_mul_u32_u24 v4, 5376, v4')
    a('v_lshl_add_u32 v4, v6, 4, v4')
    a('s_lshl_b32 s22, s20, 7')
    a(f's_mul_i32 s23, s3, {56*5376}')
    a('s_add_u32 s23, s23, s22')
    a(f's_mul_i32 s24, s3, {7*1024}')
    a('s_mov_b32 m0, s24')
    a('s_lshl_b32 s25, s3, 8')
    a('v_lshl_add_u32 v7, v0, 2, s25')
    a('s_waitcnt lgkmcnt(0)')
    if 'KA' in exp: a('s_memrealtime s[94:95]')
    srd(a, 8, 18, NB_WMOD)
    srd(a, 28, 16, 896)
    a('buffer_load_dword v8, v7, s[28:31], 0 offen')
    for r in range(7):
        a('buffer_load_dwordx4 v4, s[8:11], s23 offen nt lds')
        if r < 6:
            a('s_add_u32 m0, m0, 1024')
            a(f's_add_u32 s23, s23, {8*5376}')
    srd(a, 12, 6, WS_SIZE)
    stamp(a, 0, 0, 12, stamps, tmp_v=TV)
    if 'KA' in exp:
        a('v_mov_b32 v120, s92'); a('v_mov_b32 v121, s94')
        a('buffer_store_dword v120, v122, s[12:15], 0 offen offset:24')
        a('buffer_store_dword v121, v122, s[12:15], 0 offen offset:32')
    a('s_mul_i32 s21, s20, 37')
    a('s_lshr_b32 s21, s21, 8')
    SO = 57344
    a('v_lshrrev_b32 v10, 2, v0')
    a('v_lshrrev_b32 v11, 3, v0')
    a('v_xor_b32 v11, s3, v11')
    a('v_and_b32 v11, 3, v11')
    a('v_lshlrev_b32 v10, 7, v10')
    a('v_lshl_add_u32 v10, v11, 5, v10')
    a('v_and_b32 v11, 3, v0')
    a('v_lshl_add_u32 v10, v11, 3, v10')
    a('v_lshlrev_b32 v11, 3, v3')
    a('s_mul_i32 s24, s21, 448')
    a('s_lshl_b32 s25, s20, 6')
    a('s_sub_u32 s25, s25, s24')
    a('s_lshl_b32 s26, s3, 4')
    a('s_add_u32 s25, s25, s26')
    a('v_add_u32 v12, s25, v2')
    a('v_mul_u32_u24 v13, 2341, v12')
    a('v_lshrrev_b32 v13, 16, v13')
    a('v_mul_u32_u24 v14, 28, v13')
    a('v_sub_u32 v14, v12, v14')
    a('v_lshl_add_u32 v13, v14, 4, v13')
    a('s_cmp_lt_u32 s21, 3')
    a('s_cselect_b64 vcc, -1, 0')
    a('v_cndmask_b32 v12, v12, v13, vcc')
    a('v_add_u32 v12, s24, v12')
    a('v_lshlrev_b32 v12, 2, v12')
    a(f'v_mov_b32 v13, {OOB:#x}')
    a('v_cmp_gt_u32 vcc, 16, v0')
    a('v_cndmask_b32 v12, v13, v12, vcc')
    a('s_mov_b32 s26, 0')
    a('s_mov_b32 s27, 1.0')
    a('s_cmp_eq_u32 s21, 1')
    a('s_cselect_b32 s26, 1.0, s26')
    a('s_cmp_eq_u32 s21, 4')
    a('s_cselect_b32 s26, 1.0, s26')
    a('s_cmp_eq_u32 s21, 0')
    a('s_cselect_b32 s27, 0x45000000, s27')
    a('s_cmp_eq_u32 s21, 2')
    sc = struct.unpack('<I', struct.pack('<f', 2.0 / (S * D)))[0]
    a(f's_cselect_b32 s27, {sc:#x}, s27')
    a(f's_waitcnt vmcnt({7+nst})')
    a('v_lshlrev_b32 v9, 16, v8')
    a('v_and_b32 v8, 0xffff0000, v8')
    for r in (8, 9):
        a(f'v_mul_f32 v{r+6}, 0xbfb8aa3b, v{r}')
        a(f'v_exp_f32 v{r+6}, v{r+6}')
        a(f'v_add_f32 v{r+6}, 1.0, v{r+6}')
        a(f'v_rcp_f32 v{r+6}, v{r+6}')
        a(f'v_mul_f32 v{r}, v{r}, v{r+6}')
    a('v_cvt_pk_bf16_f32 v9, v9, v8')
    a(f'ds_write_b32 v7, v9 offset:{SO}')
    a('s_waitcnt vmcnt(0) lgkmcnt(0)')
    a('s_barrier')
    a('s_cmp_ge_u32 s3, 4')
    a('s_cbranch_scc1 K0_END')
    stamp(a, 0, 1, 12, stamps, tmp_v=TV)
    def rd(ks, base):
        a(f'ds_read_b64 v[{base}:{base+1}], v11 offset:{SO + 64*ks}')
        a(f'ds_read_b64 v[{base+2}:{base+3}], v11 offset:{SO + 64*ks + 32}')
        a(f'ds_read_b64_tr_b16 v[{base+4}:{base+5}], v10 offset:{4096*ks}')
        a(f'ds_read_b64_tr_b16 v[{base+6}:{base+7}], v10 offset:{4096*ks + 2048}')
    base = lambda ks: 20 + 8 * (ks % 8)
    for ks in range(3): rd(ks, base(ks))
    for ks in range(14):
        if ks + 3 < 14:
            rd(ks + 3, base(ks + 3))
            a('s_waitcnt lgkmcnt(12)')
        else:
            a(f's_waitcnt lgkmcnt({4*(13-ks)})')
        b = base(ks)
        c = '0' if ks == 0 else 'v[16:19]'
        a(f'v_mfma_f32_16x16x32_bf16 v[16:19], v[{b}:{b+3}], v[{b+4}:{b+7}], {c}')
    rb16(a, 16, 16)
    a('v_add_f32 v16, s26, v16')
    rb16(a, 16, 16)
    a('v_mul_f32 v16, s27, v16')
    a('buffer_store_dword v16, v12, s[12:15], 0 offen')
    if stamps:
        a('s_waitcnt vmcnt(0)')
        stamp(a, 0, 2, 12, stamps, tmp_v=TV)
    a('s_endpgm')
    a.label('K0_C')
    a(f's_cmp_lt_u32 s2, {K0_C0}')
    a('s_cbranch_scc1 K0_Z')
    a(f's_sub_u32 s20, s2, {K0_C0}')
    a('s_lshr_b32 s21, s20, 3')
    a('s_lshl_b32 s21, s21, 13')
    a('s_lshl_b32 s22, s3, 10')
    a('s_add_u32 s21, s21, s22')
    a('s_add_u32 s21, s21, k1_kernel-k0_kernel')
    a('s_mov_b32 s38, CODE_END-k0_kernel')
    a('buffer_load_dwordx4 v[116:119], v1, s[36:39], s21 offen')
    w_rows(a, 's20', 's3', 4, 6, 7, 24)
    a('s_lshl_b32 s28, s3, 12')
    a('s_mov_b32 m0, s28')
    a('s_waitcnt lgkmcnt(0)')
    if 'KA' in exp: a('s_memrealtime s[94:95]')
    srd(a, 40, 32, NB_W)
    srd(a, 44, 34, NB_W)
    for kk in range(2):
        for arr in range(2):
            a(f'buffer_load_dwordx4 v{4+kk}, s[{40+4*arr}:{43+4*arr}], 0 offen nt lds')
            if not (kk and arr): a('s_add_u32 m0, m0, 1024')
    srd(a, 12, 6, WS_SIZE)
    stamp(a, 0, 0, 12, stamps, tmp_v=TV)
    if 'KA' in exp:
        a('v_mov_b32 v120, s92'); a('v_mov_b32 v121, s94')
        a('buffer_store_dword v120, v122, s[12:15], 0 offen offset:24')
        a('buffer_store_dword v121, v122, s[12:15], 0 offen offset:32')
    WA, WW, PK = 24, 40, 80
    a('v_lshlrev_b32 v8, 7, v3')
    a('v_lshl_add_u32 v8, v2, 1, v8')
    a('v_sub_u32 v9, 288, v8')
    a('v_max_i32 v9, 0, v9')
    a('v_cmp_eq_u32 vcc, 3, v3')
    a('v_add_u32 v11, 64, v8')
    a('v_sub_u32 v12, 832, v8')
    a('v_cndmask_b32 v11, v11, v12, vcc')
    a('v_add_u32 v12, 96, v8')
    a('v_sub_u32 v13, 800, v8')
    a('v_cndmask_b32 v12, v12, v13, vcc')
    a('v_mov_b32 v13, 0')
    a('v_bfrev_b32 v14, 1')
    a('v_cndmask_b32 v20, v13, v14, vcc')
    a('v_cmp_eq_u32 s[48:49], 0, v0')
    a('v_cmp_eq_u32 s[50:51], 48, v0')
    a('v_cndmask_b32 v21, v13, v14, s[48:49]')
    for kk in range(2):
        w = WA + 5 * kk
        a(f's_and_b32 s29, s{24+2*kk}, 15')
        a('s_add_u32 s29, s29, s28')
        a(f's_and_b32 s30, s{25+2*kk}, 15')
        a('s_add_u32 s30, s30, s28')
        a('s_add_u32 s30, s30, 512')
        a('v_mov_b32 v15, s29')
        a('v_mov_b32 v16, s30')
        a('v_cndmask_b32 v17, v15, v16, vcc')
        a(f'v_add_u32 v{w+1}, v17, v11')
        a(f'v_add_u32 v{w+2}, v17, v12')
        a('v_add_u32 v15, 448, v15')
        a(f'v_cndmask_b32 v{w+4}, v15, v16, s[48:49]')
        a(f'v_add_u32 v{w}, s29, v8')
        a(f'v_add_u32 v{w+3}, s30, v9')
    a('s_lshl_b32 s29, s20, 15')
    a('s_add_u32 s29, s29, s28')
    a(f's_add_u32 s29, s29, {WS_WEFF:#x}')
    a(f's_waitcnt vmcnt({nst})')
    for kk in range(2):
        w = WA + 5 * kk
        for arr in range(2):
            b = WW + 18 * kk + 9 * arr; of = 2048 * kk + 1024 * arr
            a(f'ds_read_u16 v{b+0}, v{w} offset:{of}')
            a(f'ds_read_u16 v{b+1}, v{w} offset:{of+32}')
            a(f'ds_read_u16 v{b+2}, v{w+1} offset:{of}')
            a(f'ds_read_u16 v{b+3}, v{w+2} offset:{of}')
            for i in range(4):
                a(f'ds_read_u16 v{b+4+i}, v{w+3} offset:{of+32*(3-i)}')
            a(f'ds_read_u16 v{b+8}, v{w+4} offset:{of}')
    for kk in range(2):
        a(f's_waitcnt lgkmcnt({15 if kk == 0 else 0})')
        b = WW + 18 * kk; o = PK + 8 * kk
        for i in range(8): a(f'v_lshl_or_b32 v{o+i}, v{b+9+i}, 16, v{b+i}')
        a(f'v_lshl_or_b32 v15, v{b+17}, 16, v{b+8}')
        for i in range(4, 8): a(f'v_xor_b32 v{o+i}, v14, v{o+i}')
        a(f'buffer_store_dwordx4 v[{o+4}:{o+7}], v1, s[12:15], s29 offen offset:{2048*kk+1024} sc1')
        for i in (2, 3): a(f'v_xor_b32 v{o+i}, v20, v{o+i}')
        a('v_xor_b32 v15, v21, v15')
        a('v_lshlrev_b32 v16, 16, v15')
        a('v_and_b32 v17, 0xffff0000, v15')
        for i, m in ((0, 's[48:49]'), (2, 's[50:51]')):
            a(f'v_lshlrev_b32 v18, 16, v{o+i}')
            a(f'v_and_b32 v19, 0xffff0000, v{o+i}')
            a('v_pk_add_f32 v[18:19], v[18:19], v[16:17]')
            a('v_pk_mul_f32 v[18:19], v[18:19], 0.5 op_sel_hi:[1,0]')
            a('v_cvt_pk_bf16_f32 v18, v18, v19')
            a(f'v_cndmask_b32 v{o+i}, v{o+i}, v18, {m}')
        a(f'buffer_store_dwordx4 v[{o}:{o+3}], v1, s[12:15], s29 offen offset:{2048*kk} sc1')
    if stamps:
        a('s_waitcnt vmcnt(0)')
        stamp(a, 0, 2, 12, stamps, tmp_v=TV)
    a('s_endpgm')
    a.label('K0_Z')
    a(f's_cmp_lg_u32 s2, {K0_B0 + K0_NB}')
    a('s_cbranch_scc1 K0_END')
    a('s_waitcnt lgkmcnt(0)')
    srd(a, 12, 6, WS_SIZE)
    for q in range(4): a(f'v_mov_b32 v{4+q}, 0')
    a('s_mul_i32 s20, s3, 3072')
    a(f's_add_u32 s20, s20, {WS_FLAGS:#x}')
    for q in range(3): a(f'buffer_store_dwordx4 v[4:7], v1, s[12:15], s20 offen offset:{1024*q} sc1')
    a.label('K0_END')
    a('s_endpgm')
    return a
```

```python
from asmlib import *
from layout import *
from k0 import srd, rb16, stamp, w_rows
from tables import TB_FB, TB_FA, TB_TWI, TB_TWF

MODL = 16384
X1 = MODL + 8192
M2L = X1 + 256 * 144
UL = M2L + 4096
X2 = UL
K1_LDS = UL + 57344
ZERO = TB_TWF + 7 * 512

def inter(a, mf, va):
    n, k = len(mf), len(va)
    for i, m in enumerate(mf):
        a(m)
        for x in va[i * k // n:(i + 1) * k // n]: a(x)

def gen_k1(stamps=False, exp=''):
    if 'K1=' not in exp: exp += ',HU,HW,H2'
    EARLY = 4 if 'k1e' in exp else 0
    a = Asm()
    TV = (250, 251, 252)
    nst = 1 if stamps else 0
    a.label('k1_kernel')
    a(f's_cmp_ge_u32 s2, {K1_GRID}')
    a('s_cbranch_scc1 K1_END')
    a('s_load_dwordx2 s[16:17], s[0:1], 88')
    a('s_load_dwordx4 s[36:39], s[0:1], 32')
    a('s_load_dwordx2 s[40:41], s[0:1], 48')
    a('s_load_dwordx2 s[4:5], s[0:1], 0')
    a('v_lshrrev_b32 v1, 6, v0')
    a('v_and_b32 v0, 63, v0')
    a('v_readfirstlane_b32 s3, v1')
    a('v_lshlrev_b32 v1, 4, v0')
    a('v_and_b32 v2, 15, v0')
    a('v_lshrrev_b32 v3, 4, v0')
    a(f's_cmp_ge_u32 s2, {K1_NF}')
    a('s_cbranch_scc1 K1_PREP')
    if 'noF' in exp: a('s_endpgm')
    a('s_getpc_b64 s[42:43]')
    a.label('K1_PC')
    a('s_add_u32 s42, s42, k1_tbl-K1_PC')
    a('s_addc_u32 s43, s43, 0')
    srd(a, 44, 42, 16384)
    a('s_lshl_b32 s18, s3, 11')
    a('s_mov_b32 m0, s18')
    a('s_and_b32 s19, s2, 7')
    a('s_lshr_b32 s21, s2, 4')
    a('buffer_load_dwordx4 v1, s[44:47], s18 offen lds')
    a('buffer_load_dwordx4 v1, s[44:47], s18 offen offset:1024 lds')
    a('s_lshl_b32 s21, s21, 3')
    a('s_add_u32 s19, s19, s21')
    a('s_bfe_u32 s48, s2, 0x10003')
    a('s_sub_u32 s21, 64, s19')
    a('s_cmp_eq_u32 s19, 0')
    a('s_cselect_b32 s21, 32, s21')
    a('s_cmp_eq_u32 s48, 0')
    a('s_cselect_b32 s21, s19, s21')
    a('s_cmp_eq_u32 s2, 64')
    a('s_cselect_b32 s2, 64, s21')
    a('s_and_b32 s19, s19, 31')
    a('s_and_b32 s25, s2, 63')
    a('s_cmp_gt_u32 s25, 32')
    a('s_cselect_b32 s20, -1.0, 1.0')
    a('s_cmp_eq_u32 s19, 0')
    a('s_cselect_b32 s20, 0, s20')
    a('s_mul_i32 s19, s19, 57344')
    a('s_lshl_b32 s21, s3, 13')
    a('s_add_u32 s19, s19, s21')
    a(f's_add_u32 s19, s19, {WS_U:#x}')
    a(f's_add_u32 s23, s21, {UL}')
    a('s_lshl_b32 s48, s48, 12')
    a('s_xor_b32 s49, s48, 4096')
    a('s_add_u32 s22, s19, s49')
    a('s_add_u32 s19, s19, s48')
    a('s_add_u32 m0, s23, s48')
    a('s_waitcnt lgkmcnt(0)')
    srd(a, 28, 16, WS_SIZE)
    stamp(a, 1, 0, 28, stamps, tmp_v=TV)
    a('s_cmp_eq_u32 s3, 7')
    a('s_cbranch_scc1 K1_NOU')
    for q in range(4): a(f'buffer_load_dwordx4 v1, s[28:31], s19 offen offset:{1024*q} lds')
    a('s_add_u32 m0, s23, s49')
    for q in range(4): a(f'buffer_load_dwordx4 v1, s[28:31], s22 offen offset:{1024*q} lds')
    a('s_branch K1_U1')
    a.label('K1_NOU')
    a(f's_mov_b32 m0, {MODL}')
    a('s_mov_b32 s24, 4096')
    for q in range(4): a(f'buffer_load_dwordx4 v1, s[28:31], 0 offen offset:{1024*q} lds')
    a(f's_mov_b32 m0, {MODL+4096}')
    for q in range(2): a(f'buffer_load_dwordx4 v1, s[28:31], s24 offen offset:{1024*q} lds')
    a.label('K1_U1')
    UA, M2, CA, SA, GA, M2I, FA, TWF, FB, TWI, WW, DD, WP = 32, 64, 80, 96, 112, 116, 124, 132, 140, 164, 180, 216, 8
    a('v_lshlrev_b32 v13, 7, v2')
    a('v_add_u32 v13, s2, v13')
    a('s_lshr_b32 s27, s3, 1')
    a('s_lshl_b32 s27, s27, 3')
    a('s_and_b32 s21, s3, 1')
    a('s_add_u32 s27, s27, s21')
    a('v_lshl_add_u32 v14, v3, 1, s27')
    a('v_mul_u32_u24 v13, v13, v14')
    a('v_cvt_f32_u32 v13, v13')
    a('v_mul_f32 v13, 0x3a000000, v13')
    a('v_sin_f32 v17, v13')
    a('v_cos_f32 v18, v13')
    a('s_lshr_b32 s27, s3, 2')
    a('s_lshl_b32 s27, s27, 10')
    a('s_and_b32 s21, s3, 3')
    a('s_lshl_b32 s21, s21, 2')
    a('s_add_u32 s27, s27, s21')
    a('v_add_u32 v14, s27, v1')
    a('v_mul_f32 v19, s20, v17')
    a('v_mul_f32 v21, s20, v18')
    a('v_cvt_pk_bf16_f32 v15, v18, v19')
    a('v_cvt_pk_bf16_f32 v16, -v17, v21')
    a(f'ds_write_b32 v14, v15 offset:{M2L}')
    a(f'ds_write_b32 v14, v16 offset:{M2L+2048}')
    a('v_lshrrev_b32 v8, 3, v0')
    a('v_lshlrev_b32 v9, 8, v8')
    a('v_and_b32 v10, 3, v0')
    a('v_lshl_add_u32 v9, v10, 6, v9')
    a('v_bfe_u32 v10, v0, 2, 1')
    a('s_cmp_eq_u32 s25, 32')
    a('s_cselect_b32 s27, 1, 0')
    a('v_xor_b32 v10, s27, v10')
    a('v_lshl_add_u32 v9, v10, 3, v9')
    a('v_add_u32 v9, s23, v9')
    a('v_and_b32 v8, 3, v8')
    a('v_lshl_add_u32 v4, v8, 4, v9')
    for e in range(1, 4): a(f'v_xor_b32 v{4+e}, {16*e}, v4')
    a('s_lshl_b32 s27, s2, 15')
    a('s_lshl_b32 s21, s3, 12')
    a('s_add_u32 s27, s27, s21')
    a(f's_add_u32 s50, s27, {WS_WEFF:#x}')
    late = []
    late += [f'buffer_load_dwordx4 v[{WP+4*q}:{WP+4*q+3}], v1, s[28:31], s50 offen offset:{1024*q}' for q in range(4)]
    a('s_lshl_b32 s27, s3, 9')
    a('v_lshl_add_u32 v26, v2, 5, s27')
    a('s_lshl_b32 s27, s3, 8')
    a(f's_add_u32 s27, s27, {MODL}')
    a('v_lshl_add_u32 v28, v3, 4, s27')
    a('v_lshl_add_u32 v30, v2, 2, s27')
    a('s_cmp_eq_u32 s2, 0')
    a('s_cselect_b32 s27, 0, 99')
    a('v_cmp_eq_u32 vcc, s27, v2')
    a(f'v_mov_b32 v29, {ZERO}')
    a('v_lshl_add_u32 v24, v3, 6, v2')
    a('v_cndmask_b32 v29, v29, v28, vcc')
    a('v_mul_u32_u24 v24, 144, v24')
    a('s_lshl_b32 s27, s3, 4')
    a(f's_add_u32 s27, s27, {X1}')
    a('v_add_u32 v24, s27, v24')
    a('v_mul_u32_u24 v25, 144, v2')
    a('v_lshl_add_u32 v25, v3, 4, v25')
    a(f's_mul_i32 s27, s3, {32*144}')
    a(f's_add_u32 s27, s27, {X1}')
    a('v_add_u32 v25, s27, v25')
    if EARLY:
        a(f's_waitcnt vmcnt({EARLY})')
        for x in late: a(x)
        a('s_waitcnt vmcnt(4)')
    else:
        a('s_waitcnt vmcnt(0)')
        for x in late: a(x)
    a('s_cmp_eq_u32 s3, 7')
    a('s_cbranch_scc1 K1_W7')
    for d2l in range(4):
        for ks in range(2):
            for h in range(2):
                b = UA + 8 * d2l + 4 * ks + 2 * h
                a(f'ds_read_b64_tr_b16 v[{b}:{b+1}], v{4+d2l} offset:{4096*ks+2048*h}')
    a('s_waitcnt lgkmcnt(15)')
    a('s_barrier')
    stamp(a, 1, 1, 28, stamps, tmp_v=TV)
    def phase1(d2l):
        o = []
        for ks in range(2):
            for c in range(2):
                d = DD + 8 * d2l + 4 * c
                cc = '0' if ks == 0 else f'v[{d}:{d+3}]'
                o.append(f'v_mfma_f32_16x16x32_bf16 v[{d}:{d+3}], v[{UA+8*d2l+4*ks}:{UA+8*d2l+4*ks+3}], v[{M2+8*c+4*ks}:{M2+8*c+4*ks+3}], {cc}')
        return o
    VA = UA
    def modul(d2l):
        o = []; d = DD + 8 * d2l
        for p in range(2):
            o.append(f'v_pk_fma_f32 v[{d+2*p}:{d+2*p+1}], v[{d+2*p}:{d+2*p+1}], v[{CA+4*d2l+2*p}:{CA+4*d2l+2*p+1}], v[{SA+4*d2l+2*p}:{SA+4*d2l+2*p+1}]')
            o.append(f'v_pk_mul_f32 v[{d+4+2*p}:{d+5+2*p}], v[{d+4+2*p}:{d+5+2*p}], v[{CA+4*d2l+2*p}:{CA+4*d2l+2*p+1}]')
        return o
    def cvt4(dst, src):
        return [f'v_cvt_pk_bf16_f32 v{dst+p}, v{src+2*p}, v{src+2*p+1}' for p in range(4)]
    def dft16(src, d):
        return [f'v_mfma_f32_16x16x32_bf16 v[{d}:{d+3}], v[{src}:{src+3}], v[{FA+2}:{FA+5}], 0',
                f'v_mfma_f32_16x16x32_bf16 v[{d+4}:{d+7}], v[{src}:{src+3}], v[{FA}:{FA+3}], 0']
    def cmulc(d, e, c_, s_, selc, sels):
        o = []
        for p in range(2):
            re = f'v[{d+2*p}:{d+2*p+1}]'; im = f'v[{d+4+2*p}:{d+5+2*p}]'
            ore = f'v[{e+2*p}:{e+2*p+1}]'; oim = f'v[{e+4+2*p}:{e+5+2*p}]'
            o.append(f'v_pk_mul_f32 {ore}, {im}, {s_(p)} {sels}')
            o.append(f'v_pk_mul_f32 {oim}, {re}, {s_(p)} {sels}')
            o.append(f'v_pk_fma_f32 {ore}, {re}, {c_(p)}, {ore} {selc}')
            o.append(f'v_pk_fma_f32 {oim}, {im}, {c_(p)}, {oim} {selc} neg_lo:[0,0,1] neg_hi:[0,0,1]')
        return o
    E = 64
    P = 96
    fbread = [f'ds_read_b128 v[{FB+4*q}:{FB+4*q+3}], v1 offset:{TB_FB+1024*q}' for q in range(6)]
    for q in range(4): a(f'ds_read_b128 v[{M2+4*q}:{M2+4*q+3}], v1 offset:{M2L+1024*q}')
    rd = []
    for d2l in range(4):
        rd.append(f'ds_read_b128 v[{CA+4*d2l}:{CA+4*d2l+3}], v28 offset:{1792+64*d2l}')
        rd.append(f'ds_read_b128 v[{SA+4*d2l}:{SA+4*d2l+3}], v29 offset:{64*d2l}')
    for q in range(2): rd.append(f'ds_read_b128 v[{FA+4*q}:{FA+4*q+3}], v1 offset:{TB_FA+1024*q}')
    for q in range(2): rd.append(f'ds_read_b128 v[{TWF+4*q}:{TWF+4*q+3}], v26 offset:{TB_TWF+16*q}')
    for d2l in range(4): rd.append(f'ds_read_b32 v{GA+d2l}, v30 offset:{3584+64*d2l}')
    rd += fbread
    rd += ['v_lshrrev_b32 v27, 2, v2', 'v_mul_u32_u24 v27, 28672, v27', 'v_and_b32 v31, 3, v2', 'v_lshl_add_u32 v27, v31, 4, v27',
           f'v_mul_u32_u24 v31, {4*114688}, v3', 'v_add_u32 v27, v27, v31',
           'v_lshlrev_b32 v28, 6, v2', 'v_lshl_add_u32 v28, v3, 4, v28', 's_mul_i32 s27, s3, 4160', f's_add_u32 s27, s27, {X2}', 'v_add_u32 v28, s27, v28']
    a('s_waitcnt lgkmcnt(0)')
    inter(a, phase1(0) + phase1(1) + phase1(2) + phase1(3), rd)
    a('s_waitcnt lgkmcnt(14)')
    for d2l in range(4):
        for x in modul(d2l): a(x)
    a('s_waitcnt lgkmcnt(10)')
    for x in cvt4(VA, DD): a(x)
    for d2l in range(4):
        inter(a, dft16(VA + 8 * d2l, DD + 8 * d2l), cvt4(VA + 8 * d2l + 8, DD + 8 * d2l + 8) if d2l < 3 else
              ['s_lshr_b32 s24, s2, 1', 's_and_b32 s24, s24, 31', 's_and_b32 s27, s2, 1', 's_lshl_b32 s27, s27, 5', 's_add_u32 s24, s24, s27',
               's_lshl_b32 s24, s24, 6', 's_lshl_b32 s27, s3, 12', 's_add_u32 s24, s24, s27'])
    for d2l in range(4):
        tw = f'v[{TWF+2*d2l}:{TWF+2*d2l+1}]'
        for x in cmulc(DD + 8 * d2l, E + 8 * d2l, lambda p: tw, lambda p: tw, 'op_sel_hi:[1,0,1]', 'op_sel:[0,1] op_sel_hi:[1,1]'): a(x)
    for i in range(4):
        a(f'v_cvt_pk_bf16_f32 v{P+4*i+0}, v{E+i}, v{E+8+i}')
        a(f'v_cvt_pk_bf16_f32 v{P+4*i+1}, v{E+16+i}, v{E+24+i}')
        a(f'v_cvt_pk_bf16_f32 v{P+4*i+2}, v{E+4+i}, v{E+12+i}')
        a(f'v_cvt_pk_bf16_f32 v{P+4*i+3}, v{E+20+i}, v{E+28+i}')
        a(f'ds_write_b128 v24, v[{P+4*i}:{P+4*i+3}] offset:{2304*i}')
    a('s_branch K1_J1')
    a.label('K1_W7')
    a('s_waitcnt lgkmcnt(0)')
    a('s_barrier')
    for q in range(4): a(f'v_mov_b32 v{P+q}, 0')
    a(f'v_mov_b32 v27, {OOB:#x}')
    for i in range(4): a(f'ds_write_b128 v24, v[{P}:{P+3}] offset:{2304*i}')
    for x in fbread: a(x)
    a.label('K1_J1')
    a('s_waitcnt lgkmcnt(0)')
    a('s_barrier')
    stamp(a, 1, 2, 28, stamps, tmp_v=TV)
    BX = 32
    for kk in range(2):
        for ks in range(2):
            b = BX + 8 * kk + 4 * ks
            a(f'ds_read_b128 v[{b}:{b+3}], v25 offset:{2304*kk+64*ks}')
    for q in range(4): a(f'ds_read_b128 v[{TWI+4*q}:{TWI+4*q+3}], v1 offset:{TB_TWI+1024*q}')
    def dft28(kk, data, data_is_a):
        o = []
        for ks in range(2):
            for t in range(2):
                for c in range(2):
                    d = DD + 16 * kk + 8 * t + 4 * c
                    f = FB + 6 * (2 * t + ks) + (2 if c == 0 else 0)
                    b = data + 8 * kk + 4 * ks
                    cc = '0' if ks == 0 else f'v[{d}:{d+3}]'
                    A, B = (b, f) if data_is_a else (f, b)
                    o.append(f'v_mfma_f32_16x16x32_bf16 v[{d}:{d+3}], v[{A}:{A+3}], v[{B}:{B+3}], {cc}')
        return o
    def wunp(kk):
        o = []
        for t in range(2):
            for i in range(4):
                src = WP + 8 * kk + 4 * t + i; w = WW + 16 * kk + 8 * t
                o.append(f'v_lshlrev_b32 v{w+i}, 16, v{src}')
                o.append(f'v_and_b32 v{w+4+i}, s21, v{src}')
        return o
    YA = 48
    def wmul(kk):
        o = []
        for t in range(2):
            d = DD + 16 * kk + 8 * t; e = E + 16 * kk + 8 * t; wr = WW + 16 * kk + 8 * t; wi = wr + 4
            for p in range(2):
                xr = f'v[{d+2*p}:{d+2*p+1}]'; xi = f'v[{d+4+2*p}:{d+5+2*p}]'
                Wr = f'v[{wr+2*p}:{wr+2*p+1}]'; Wi = f'v[{wi+2*p}:{wi+2*p+1}]'
                ore = f'v[{e+2*p}:{e+2*p+1}]'; oim = f'v[{e+4+2*p}:{e+5+2*p}]'
                o.append(f'v_pk_mul_f32 {ore}, {xi}, {Wi}')
                o.append(f'v_pk_mul_f32 {oim}, {xr}, {Wi}')
                o.append(f'v_pk_fma_f32 {ore}, {xr}, {Wr}, {ore} neg_lo:[0,0,1] neg_hi:[0,0,1]')
                o.append(f'v_pk_fma_f32 {oim}, {xi}, {Wr}, {oim} neg_lo:[1,0,1] neg_hi:[1,0,1]')
        return o
    m2i = ['v_lshlrev_b32 v12, 9, v3', 'v_add_u32 v12, s2, v12', 'v_mul_u32_u24 v12, v12, v2', 'v_cvt_f32_u32 v12, v12',
           'v_mul_f32 v12, 0x3a000000, v12', 'v_cvt_f32_u32 v31, v2', 'v_mul_f32 v31, 0x3d800000, v31']
    for j in range(4):
        m2i += [f'v_sin_f32 v{4+j}, v12', f'v_cos_f32 v{8+j}, v12']
        if j < 3: m2i.append('v_add_f32 v12, v12, v31')
    m2i2 = [f'v_cvt_pk_bf16_f32 v{M2I+0}, -v4, -v5', f'v_cvt_pk_bf16_f32 v{M2I+1}, -v6, -v7', f'v_cvt_pk_bf16_f32 v{M2I+2}, v8, v9',
            f'v_cvt_pk_bf16_f32 v{M2I+3}, v10, v11', f'v_cvt_pk_bf16_f32 v{M2I+4}, v4, v5', f'v_cvt_pk_bf16_f32 v{M2I+5}, v6, v7']
    a('s_mov_b32 s21, 0xffff0000')
    a('v_mul_u32_u24 v26, 1040, v2')
    a('v_lshl_add_u32 v26, v3, 4, v26')
    a('s_lshl_b32 s27, s3, 7')
    a(f's_add_u32 s27, s27, {X2}')
    a('v_add_u32 v26, s27, v26')
    a(f's_waitcnt vmcnt({nst}) lgkmcnt(6)')
    inter(a, dft28(0, BX, False), wunp(0))
    a('s_waitcnt lgkmcnt(4)')
    inter(a, dft28(1, BX, False), wunp(1))
    for x in wmul(0) + wmul(1): a(x)
    for x in cvt4(YA, E) + cvt4(YA + 4, E + 8): a(x)
    inter(a, dft28(0, YA, True), cvt4(YA + 8, E + 16) + cvt4(YA + 12, E + 24) + m2i[:7])
    inter(a, dft28(1, YA, True), m2i[7:])
    a('s_waitcnt lgkmcnt(0)')
    P2 = 32
    for kk in range(2):
        for t in range(2):
            c_ = lambda p: f'v[{TWI+8*t+2*p}:{TWI+8*t+2*p+1}]'
            s_ = lambda p: f'v[{TWI+8*t+4+2*p}:{TWI+8*t+5+2*p}]'
            e = E + 16 * kk + 8 * t; q = P2 + 8 * kk + 4 * t
            for x in cmulc(DD + 16 * kk + 8 * t, e, c_, s_, '', '') + cvt4(q, e): a(x)
            a(f'ds_write_b128 v26, v[{q}:{q+3}] offset:{16640*t+64*kk}')
    for x in m2i2: a(x)
    for i in range(4): a(f's_add_u32 s{60+i}, s24, {WS_TP + i*114688:#x}')
    a('s_waitcnt lgkmcnt(0)')
    a('s_barrier')
    a('s_cmp_eq_u32 s3, 7')
    a('s_cbranch_scc1 K1_END')
    stamp(a, 1, 3, 28, stamps, tmp_v=TV)
    ZA = 48
    for d2l in range(4):
        a(f'ds_read_b128 v[{ZA+4*d2l}:{ZA+4*d2l+3}], v28 offset:{1040*d2l}')
    ZB = 32
    def ph3(d2l):
        e = E + 8 * d2l
        return [f'v_mfma_f32_16x16x32_bf16 v[{e}:{e+3}], v[{M2I+2}:{M2I+5}], v[{ZB+4*d2l}:{ZB+4*d2l+3}], 0',
                f'v_mfma_f32_16x16x32_bf16 v[{e+4}:{e+7}], v[{M2I}:{M2I+3}], v[{ZB+4*d2l}:{ZB+4*d2l+3}], 0']
    def scl(d2l):
        e = E + 8 * d2l; gp = GA + (d2l & ~1)
        sel = 'op_sel_hi:[1,0]' if d2l % 2 == 0 else 'op_sel:[0,1] op_sel_hi:[1,1]'
        return [f'v_pk_mul_f32 v[{e+2*p}:{e+2*p+1}], v[{e+2*p}:{e+2*p+1}], v[{gp}:{gp+1}] {sel}' for p in range(4)]
    O = 48
    for d2l in range(4):
        a(f's_waitcnt lgkmcnt({3-d2l})')
        for x in dft16(ZA + 4 * d2l, DD + 8 * d2l): a(x)
    for x in cvt4(ZB, DD): a(x)
    for d2l in range(4):
        inter(a, ph3(d2l), cvt4(ZB + 4 * d2l + 4, DD + 8 * d2l + 8) if d2l < 3 else [])
    for d2l in range(4):
        for x in scl(d2l): a(x)
    a('s_cmp_eq_u32 s25, 0')
    a('s_cbranch_scc1 K1_SHORT')
    for i in range(4):
        a(f'v_cvt_pk_bf16_f32 v{O+4*i+0}, v{E+i}, v{E+8+i}')
        a(f'v_cvt_pk_bf16_f32 v{O+4*i+1}, v{E+16+i}, v{E+24+i}')
        a(f'v_cvt_pk_bf16_f32 v{O+4*i+2}, v{E+4+i}, v{E+12+i}')
        a(f'v_cvt_pk_bf16_f32 v{O+4*i+3}, v{E+20+i}, v{E+28+i}')
        a(f'buffer_store_dwordx4 v[{O+4*i}:{O+4*i+3}], v27, s[28:31], s{60+i} offen')
    if stamps:
        a('s_waitcnt vmcnt(0)')
        stamp(a, 1, 4, 28, stamps, tmp_v=TV)
    a('s_endpgm')
    a.label('K1_SHORT')
    a('s_lshr_b32 s24, s2, 3')
    a('v_add_u32 v27, s24, v27')
    for i in range(4):
        a(f'v_cvt_pk_bf16_f32 v{O+4*i+0}, v{E+i}, v{E+8+i}')
        a(f'v_cvt_pk_bf16_f32 v{O+4*i+1}, v{E+16+i}, v{E+24+i}')
        a(f'buffer_store_dwordx2 v[{O+4*i}:{O+4*i+1}], v27, s[28:31], s{60+i} offen')
    if stamps:
        a('s_waitcnt vmcnt(0)')
        stamp(a, 1, 4, 28, stamps, tmp_v=TV)
    a('s_endpgm')
    a.label('K1_PREP')
    if 'noP' in exp: a('s_endpgm')
    a(f's_cmp_lt_u32 s2, {K1_W0}')
    a('s_cbranch_scc1 K1_END')
    a('s_lshl_b32 s18, s3, 12')
    a('s_mov_b32 m0, s18')
    a('v_and_b32 v4, 3, v0')
    a('v_lshrrev_b32 v5, 2, v2')
    a('v_and_b32 v6, 1, v3')
    a('v_lshrrev_b32 v7, 5, v0')
    a('s_waitcnt lgkmcnt(0)')
    srd(a, 28, 16, WS_SIZE)
    a(f's_cmp_ge_u32 s2, {K1_D0}')
    a('s_cbranch_scc1 K1_WD')
    a(f's_sub_u32 s19, s2, {K1_W0}')
    if 'HU' in exp:
        a('s_and_b32 s20, s19, -8')
        a('s_add_u32 s20, s20, s3')
        a('s_mul_i32 s21, s20, 147')
        a('s_lshr_b32 s21, s21, 12')
        a(f's_mul_i32 s21, s21, {8*57344 - 28*2048}')
        a('s_lshl_b32 s20, s20, 11')
        a('s_add_u32 s21, s21, s20')
        a('s_and_b32 s20, s19, 7')
        a('s_mul_i32 s20, s20, 57344')
        a('s_add_u32 s21, s21, s20')
        a(f's_add_u32 s21, s21, {WS_U:#x}')
        a('buffer_load_dwordx4 v[200:203], v1, s[28:31], s21 offen offset:1024')
        a('buffer_load_dwordx4 v[204:207], v1, s[28:31], s21 offen')
    XS, XB = 912, 40960
    srd(a, 12, 4, NB_X)
    a('s_lshr_b32 s50, s19, 2')
    a('s_and_b32 s51, s19, 3')
    a('s_lshr_b32 s20, s51, 1')
    a('s_lshl_b32 s20, s20, 5')
    a('s_and_b32 s21, s51, 1')
    a('s_add_u32 s20, s20, s21')
    a('s_lshr_b32 s21, s3, 2')
    a('s_lshl_b32 s21, s21, 6')
    a('s_add_u32 s20, s20, s21')
    a('s_and_b32 s21, s3, 3')
    a('s_lshl_b32 s21, s21, 3')
    a('s_add_u32 s20, s20, s21')
    a('s_lshl_b32 s20, s20, 4')
    a('s_add_u32 s20, s20, s50')
    a('s_mul_i32 s52, s20, 896')
    a('s_cmp_lt_u32 s19, 64')
    a('s_cselect_b32 s52, s52, 0')
    a('s_cselect_b32 s14, s14, 0')
    a('s_cselect_b32 s54, 1, 0')
    a(f's_mul_i32 s53, s3, {4*XS}')
    def xload():
        a(f's_add_u32 m0, s53, {XB}')
        a('s_mov_b32 exec_hi, 0x00ffffff')
        for r in range(4):
            a('buffer_load_dwordx4 v1, s[12:15], s52 offen nt lds')
            if r < 3:
                a(f's_add_u32 m0, m0, {XS}')
                a('s_add_u32 s52, s52, 28672')
        a('s_mov_b32 exec_hi, -1')
    a('s_cmp_ge_u32 s19, 56')
    a('s_cselect_b32 s20, 1, 0')
    a('s_cselect_b32 s8, s38, s36')
    a('s_cselect_b32 s9, s39, s37')
    a(f's_mov_b32 s10, {NB_WG:#x}')
    a('s_mov_b32 s11, 0x00020000')
    a('s_mul_i32 s21, s20, 56')
    a('s_sub_u32 s19, s19, s21')
    a('s_and_b32 s21, s19, 1')
    a('s_lshr_b32 s19, s19, 1')
    a('s_mul_i32 s22, s19, 116')
    a('s_add_u32 s22, s22, s20')
    a('s_lshl_b32 s22, s22, 10')
    a(f's_add_u32 s22, s22, {WS_WF:#x}')
    a('s_cmp_eq_u32 s3, 7')
    a('s_cbranch_scc1 K1_WF_FIN')
    a('v_lshrrev_b32 v8, 3, v0')
    a('v_mul_u32_u24 v8, 3584, v8')
    a('v_and_b32 v9, 7, v0')
    a('v_lshl_add_u32 v8, v9, 4, v8')
    a('s_mul_i32 s23, s21, 7')
    a('s_add_u32 s23, s23, s3')
    a(f's_mul_i32 s23, s23, {32*3584}')
    a('s_lshl_b32 s24, s19, 7')
    a('s_add_u32 s23, s23, s24')
    if 'HU' in exp: a('s_waitcnt vmcnt(0)')
    if 'HB' in exp: a('s_barrier')
    for i in range(4):
        a('buffer_load_dwordx4 v8, s[8:11], s23 offen nt lds')
        if i < 3:
            a('s_add_u32 m0, m0, 1024')
            a(f's_add_u32 s23, s23, {8*3584}')
    stamp(a, 1, 0, 28, stamps, tmp_v=TV)
    a('s_and_b32 s23, s3, 1')
    a('s_mul_i32 s23, s23, 56')
    a('s_lshr_b32 s24, s3, 1')
    a('s_lshl_b32 s24, s24, 3')
    a('s_add_u32 s23, s23, s24')
    a('s_cmp_eq_u32 s3, 6')
    a('s_cselect_b32 s24, 56, 28')
    a('s_cselect_b32 s25, 28, 4')
    a('v_mul_u32_u24 v9, s24, v7')
    a('v_add_u32 v9, s23, v9')
    a('v_add_u32 v10, v9, v5')
    a('v_lshlrev_b32 v10, 7, v10')
    a('v_lshl_add_u32 v10, v6, 5, v10')
    a('v_lshl_add_u32 v10, v4, 3, v10')
    a('s_lshl_b32 s26, s25, 7')
    a('v_add_u32 v11, s26, v10')
    a('s_mul_i32 s26, s21, 896')
    a('v_lshl_add_u32 v9, v9, 2, s26')
    a('s_lshl_b32 s26, s25, 2')
    a('v_add_u32 v8, s26, v9')
    for q in range(4): a(f'v_mov_b32 v{12+q}, 0x3f803f80')
    a('s_mul_i32 s24, s21, 14')
    a('s_add_u32 s24, s24, s3')
    a('s_lshl_b32 s24, s24, 11')
    a('s_add_u32 s24, s24, s22')
    for z in range(1, 4): a(f's_add_u32 s{31+z}, s24, {7*2048*(z>>1) + 58*1024*(z&1)}')
    a('v_cmp_gt_u32 vcc, 32, v0')
    a('s_waitcnt vmcnt(0)')
    if 'XE' in exp: xload()
    a('s_barrier')
    stamp(a, 1, 1, 28, stamps, tmp_v=TV)
    ML = 28672
    CB, SBF, RW, SBP, AB, AC, SC = 32, 48, 64, 16, 96, 128, 80
    for wq in range(2):
        a(f'ds_read_b128 v[{CB+8*wq}:{CB+8*wq+3}], v9 offset:{ML+1792+448*wq}')
        a(f'ds_read_b128 v[{CB+8*wq+4}:{CB+8*wq+7}], v8 offset:{ML+1792+448*wq}')
        for j in range(2):
            z = 2 * wq + j
            a(f'ds_read_b64_tr_b16 v[{RW+4*z}:{RW+4*z+1}], v10 offset:{14336*wq+64*j}')
            a(f'ds_read_b64_tr_b16 v[{RW+4*z+2}:{RW+4*z+3}], v11 offset:{14336*wq+64*j}')
    for wq in range(2):
        a(f'ds_read_b128 v[{SBF+8*wq}:{SBF+8*wq+3}], v9 offset:{ML+448*wq}')
        a(f'ds_read_b128 v[{SBF+8*wq+4}:{SBF+8*wq+7}], v8 offset:{ML+448*wq}')
    UP = 160
    if 'XE' not in exp: xload()
    for z in range(4):
        wq, j = z >> 1, z & 1
        a(f's_waitcnt lgkmcnt({(12, 10, 6, 4)[z]})')
        for p in range(4):
            u = UP + 2 * p
            a(f'v_lshlrev_b32 v{u}, 16, v{RW+4*z+p}')
            a(f'v_and_b32 v{u+1}, 0xffff0000, v{RW+4*z+p}')
            a(f'v_pk_mul_f32 v[{u}:{u+1}], v[{u}:{u+1}], v[{CB+8*wq+2*p}:{CB+8*wq+2*p+1}]')
            a(f'v_cvt_pk_bf16_f32 v{SC+4*z+p}, v{u}, v{u+1}')
        a(f'buffer_store_dwordx4 v[{SC+4*z}:{SC+4*z+3}], v1, s[28:31], s{31+z if z else 24} offen sc1')
        d = AC + 16 * j
        a(f'v_mfma_f32_32x32x16_bf16 v[{d}:{d+15}], v[12:15], v[{SC+4*z}:{SC+4*z+3}], {"0" if wq == 0 else f"v[{d}:{d+15}]"}')
    a('s_waitcnt lgkmcnt(0)')
    for p in range(8): a(f'v_cvt_pk_bf16_f32 v{SBP+p}, v{SBF+2*p}, v{SBF+2*p+1}')
    for z in range(4):
        wq, j = z >> 1, z & 1; d = AB + 16 * j
        a(f'v_mfma_f32_32x32x16_bf16 v[{d}:{d+15}], v[{SBP+4*wq}:{SBP+4*wq+3}], v[{RW+4*z}:{RW+4*z+3}], {"0" if wq == 0 else f"v[{d}:{d+15}]"}')
    RED = 32768
    a('s_lshl_b32 s24, s3, 9')
    a('v_lshl_add_u32 v11, v0, 3, s24')
    a(f'v_cndmask_b32 v12, v{AC+16}, v{AC}, vcc')
    a(f'v_cndmask_b32 v13, v{AB+16}, v{AB}, vcc')
    a(f'ds_write_b64 v11, v[12:13] offset:{RED}')
    a(f'v_mul_u32_u24 v11, {XS}, v2')
    a('v_mul_u32_u24 v14, 56, v3')
    a('s_lshl_b32 s25, s3, 3')
    a('v_add3_u32 v11, v11, v14, s25')
    a(f's_mul_i32 s26, s50, {4*28672}')
    a('s_lshl_b32 s25, s3, 12')
    a('s_add_u32 s26, s26, s25')
    a('s_lshl_b32 s25, s51, 10')
    a('s_add_u32 s26, s26, s25')
    a(f's_add_u32 s26, s26, {WS_XF:#x}')
    a('s_waitcnt vmcnt(4) lgkmcnt(0)')
    a('s_barrier')
    a('s_cmp_eq_u32 s54, 0')
    a('s_cbranch_scc1 K1_END')
    for w in range(4):
        for hi in range(2):
            a(f'ds_read_b64 v[{32+4*w+2*hi}:{33+4*w+2*hi}], v11 offset:{XB + 224*w + 16*XS*hi}')
    for w in range(4):
        a(f's_waitcnt lgkmcnt({2*(3-w)})')
        a(f'buffer_store_dwordx4 v[{32+4*w}:{35+4*w}], v1, s[28:31], s26 offen sc1')
        if w < 3: a('s_add_u32 s26, s26, 28672')
    if stamps:
        a('s_waitcnt vmcnt(0)')
        stamp(a, 1, 5, 28, stamps, tmp_v=TV)
    a('s_endpgm')
    a.label('K1_WF_FIN')
    a(f's_mov_b32 s23, {WS_MOD + 3*1792}')
    for q in range(4): a(f'buffer_load_dwordx4 v1, s[28:31], s23 offen offset:{1024*q} lds')
    a('v_lshlrev_b32 v11, 3, v0')
    a('v_and_b32 v12, 31, v0')
    a('v_lshlrev_b32 v12, 4, v12')
    a(f'v_mul_u32_u24 v13, {58*1024}, v7')
    a('v_add_u32 v12, v12, v13')
    a('s_lshl_b32 s21, s21, 9')
    a('s_add_u32 s22, s22, s21')
    a(f's_add_u32 s22, s22, {28*2048}')
    a('v_mov_b32 v31, 0')
    a('s_waitcnt vmcnt(0)')
    if 'HB' in exp: a('s_barrier')
    a('s_barrier')
    xload()
    a('s_waitcnt vmcnt(0)')
    a('s_barrier')
    for w in range(7):
        a(f'ds_read_b64 v[{16+2*w}:{17+2*w}], v11 offset:{RED+512*w}')
    a('s_waitcnt lgkmcnt(0)')
    for d_, s_ in ((16, 18), (20, 22), (24, 26), (16, 20), (24, 28), (16, 24)):
        a(f'v_pk_add_f32 v[{d_}:{d_+1}], v[{d_}:{d_+1}], v[{s_}:{s_+1}]')
    a('v_cvt_pk_bf16_f32 v20, v16, v17')
    a('v_lshlrev_b32 v22, 16, v20')
    a('v_and_b32 v23, 0xffff0000, v20')
    a('v_pk_add_f32 v[16:17], v[16:17], v[22:23] neg_lo:[0,1] neg_hi:[0,1]')
    a('v_cvt_pk_bf16_f32 v21, v16, v17')
    a('v_lshlrev_b32 v24, 16, v21')
    a('v_and_b32 v25, 0xffff0000, v21')
    a('v_pk_add_f32 v[16:17], v[16:17], v[24:25] neg_lo:[0,1] neg_hi:[0,1]')
    a('v_cvt_pk_bf16_f32 v28, v22, v24')
    a('v_cvt_pk_bf16_f32 v29, v16, v23')
    a('v_cvt_pk_bf16_f32 v30, v25, v17')
    a('buffer_store_dwordx4 v[28:31], v12, s[28:31], s22 offen sc1')
    if stamps:
        a('s_waitcnt vmcnt(0)')
        stamp(a, 1, 4, 28, stamps, tmp_v=TV)
    a('s_endpgm')
    a.label('K1_WD')
    a(f's_sub_u32 s19, s2, {K1_D0}')
    if 'HW' in exp:
        a('s_and_b32 s20, s19, 7')
        a('s_lshr_b32 s21, s3, 1')
        a('s_lshl_b32 s21, s21, 3')
        a('s_add_u32 s20, s20, s21')
        a('s_sub_u32 s21, 64, s20')
        a('s_cmp_eq_u32 s20, 0')
        a('s_cselect_b32 s21, 32, s21')
        a('s_bitcmp0_b32 s3, 0')
        a('s_cselect_b32 s21, s20, s21')
        a('s_lshl_b32 s21, s21, 15')
        a('s_lshr_b32 s22, s19, 3')
        a('s_lshl_b32 s22, s22, 12')
        a('s_add_u32 s21, s21, s22')
        a(f's_add_u32 s21, s21, {WS_WEFF:#x}')
        for q in range(4): a(f'buffer_load_dwordx4 v[{64+4*q}:{67+4*q}], v1, s[28:31], s21 offen offset:{1024*q}')
    srd(a, 8, 40, NB_WG)
    a('s_mul_i32 s20, s19, 37')
    a('s_lshr_b32 s20, s20, 8')
    a('s_mul_i32 s21, s20, 7')
    a('s_add_u32 s22, s21, s3')
    a('s_sub_u32 s21, s19, s21')
    a(f's_mul_i32 s23, s22, {32*896}')
    a('s_lshl_b32 s24, s21, 7')
    a('s_add_u32 s23, s23, s24')
    a('v_lshrrev_b32 v8, 3, v0')
    a('v_mul_u32_u24 v8, 896, v8')
    a('v_and_b32 v9, 7, v0')
    a('v_lshl_add_u32 v8, v9, 4, v8')
    a('v_lshl_add_u32 v10, v7, 2, v5')
    a('v_lshlrev_b32 v10, 7, v10')
    a('v_lshl_add_u32 v10, v6, 5, v10')
    a('v_lshl_add_u32 v10, v4, 3, v10')
    a('v_add_u32 v10, s18, v10')
    a('s_mul_i32 s24, s21, 112')
    a('s_lshl_b32 s25, s22, 1')
    a('s_add_u32 s24, s24, s25')
    a('s_lshl_b32 s24, s24, 11')
    a(f's_add_u32 s24, s24, {WS_WDF:#x}')
    a('s_waitcnt vmcnt(0)')
    if 'H2' in exp: a('s_barrier')
    a('s_cmp_eq_u32 s3, 7')
    a('s_cbranch_scc1 K1_END')
    a(f's_cmp_ge_u32 s19, {K1_ND}')
    a('s_cbranch_scc1 K1_END')
    for i in range(4):
        a('buffer_load_dwordx4 v8, s[8:11], s23 offen nt lds')
        if i < 3:
            a('s_add_u32 m0, m0, 1024')
            a(f's_add_u32 s23, s23, {8*896}')
    stamp(a, 1, 0, 28, stamps, tmp_v=TV)
    a('s_waitcnt vmcnt(0)')
    for ks2 in range(2):
        for ct in range(2):
            for q in range(2):
                b = 16 + 8 * ks2 + 4 * ct + 2 * q
                a(f'ds_read_b64_tr_b16 v[{b}:{b+1}], v10 offset:{2048*ks2+1024*q+64*ct}')
    for z in range(4):
        a(f's_waitcnt lgkmcnt({2*(3-z)})')
        a(f'buffer_store_dwordx4 v[{16+4*z}:{19+4*z}], v1, s[28:31], s24 offen offset:{1024*z} sc1')
    if stamps:
        a('s_waitcnt vmcnt(0)')
        stamp(a, 1, 4, 28, stamps, tmp_v=TV)
    a.label('K1_END')
    a('s_endpgm')
    return a
```

```python
from asmlib import *
from layout import *
from k0 import srd, rb16, stamp

K2_N = 224
AT_BYTES = 57 * 2048
R2O = AT_BYTES
RT = R2O + 512
RA = RT + 16384
K2_LDS = RA + 24576
JT = 8192

class Trk:
    def __init__(self, a, name, mx): self.a = a; self.tags = []; self.name = name; self.mx = mx; self.done = -1; self.waited = set()
    def op(self, text, tag=None):
        assert tag not in self.waited, tag
        self.a(text); self.tags.append(tag)
    def wait(self, *tags):
        idx = [i for i, t in enumerate(self.tags) if t in tags]
        assert idx, tags
        self.waited.update(tags)
        last = max(idx)
        if last <= self.done: return
        n = min(len(self.tags) - 1 - last, self.mx)
        self.done = len(self.tags) - 1 - n
        self.a(f's_waitcnt {self.name}({n})')
    def all(self):
        self.done = len(self.tags) - 1

def ids(a):
    a('s_and_b32 s18, s2, 7')
    a('s_lshr_b32 s19, s2, 3')
    a('s_mul_i32 s20, s19, 37')
    a('s_lshr_b32 s20, s20, 8')
    a('s_mul_i32 s21, s20, 7')
    a('s_sub_u32 s21, s19, s21')
    a('s_lshr_b32 s22, s18, 1')
    a('s_lshl_b32 s22, s22, 2')
    a('s_add_u32 s20, s20, s22')
    a('s_and_b32 s22, s18, 1')
    a('s_mul_i32 s23, s22, 7')
    a('s_add_u32 s23, s23, s21')

DEF = dict(R=4, nB1=4, nK=4, n0=3, n1=5, f1=-1, g1=0, g2=3, b0=12, rate=3.5, fa=3, win=14, pb=6, w0=10, fb=0, cb=0, ca=0, qa=8, qd=4, sc=1.0, st='0123456789abcdef', p1=26, c1=24, gw=8, pa=8, ba=3, r0=3.5, sx='', sen=0, ps=60, ord=0, oe=2)

def gen_k2(stamps=False, exp=''):
    P = dict(DEF)
    for kv in exp.split(','):
        if '=' in kv and not kv.startswith('K1='):
            k_, v_ = kv.split('='); P[k_] = v_ if k_ in ('st', 'sx') else float(v_) if '.' in v_ else int(v_)
    a = Asm(); vm = Trk(a, 'vmcnt', 63); lg = Trk(a, 'lgkmcnt', 15)
    TV = (60, 61, 62)
    tail = []
    def st(slot, force=False):
        if stamps and (force or f'{slot:x}' in P['st']):
            stamp(a, 2, slot, 8, True, tmp_v=TV); vm.tags.append('stamp'); lg.all()
    def check(tag, voff, soff, name, pre=()):
        vm.wait(tag)
        a('v_cmp_ne_u32 vcc, 1, v37')
        a('s_nop 1')
        a(f's_cbranch_vccnz {name}_S')
        a.label(f'{name}_OK')
        tail.extend([f'{name}_S:'] + list(pre) + ['s_mov_b32 s36, 0', f'{name}_L:',
            f'buffer_load_dword v37, {voff}, s[8:11], {soff} offen sc1', 's_add_u32 s36, s36, 1', 's_waitcnt vmcnt(0)',
            'v_cmp_ne_u32 vcc, 1, v37', 's_cmp_gt_u32 s36, 400000', f's_cbranch_scc1 {name}_OK', 's_nop 1',
            f's_cbranch_vccnz {name}_L', f's_branch {name}_OK'])
    def emit(lst):
        for kind, text, tag in lst:
            if kind == 'x': a(text)
            elif kind == 'v': vm.op(text, tag)
            elif kind == 'l': lg.op(text, tag)
            elif kind == 'wv': vm.wait(tag)
            elif kind == 'wl': lg.wait(tag)
            elif kind == 'st': st(tag)
            elif kind == 'f': text()
    X_ = lambda lst: [('x', t, None) for t in lst]
    a.label('k2_kernel')
    if 'KA' in exp: a('s_memrealtime s[92:93]')
    a(f's_cmp_ge_u32 s2, {K2_N}')
    a('s_cbranch_scc1 K2_END')
    a('s_load_dwordx2 s[4:5], s[0:1], 88')
    a('s_load_dwordx2 s[50:51], s[0:1], 72')
    a('v_lshrrev_b32 v1, 6, v0')
    a('v_and_b32 v0, 63, v0')
    a('v_readfirstlane_b32 s3, v1')
    a('v_lshlrev_b32 v1, 4, v0')
    a('s_getpc_b64 s[6:7]')
    a.label('K2_PC')
    a('s_add_u32 s6, s6, k2_tbl-K2_PC')
    a('s_addc_u32 s7, s7, 0')
    srd(a, 12, 6, 16384)
    a('s_lshl_b32 s16, s3, 12')
    a(f's_add_u32 s17, s16, {RT}')
    a('s_mov_b32 m0, s17')
    ids(a)
    for q in range(4):
        vm.op(f'buffer_load_dwordx4 v1, s[12:15], s16 offen offset:{1024*q} lds', 'R')
    a('s_and_b32 s40, s23, 3')
    a('s_lshr_b32 s41, s23, 2')
    a('s_cmp_eq_u32 s41, 3')
    a('s_cselect_b32 s42, 1, 0')
    a('s_lshl_b32 s40, s40, s42')
    a('s_mul_i32 s40, s40, 28672')
    a('s_lshl_b32 s41, s41, 13')
    a('s_add_u32 s40, s40, s41')
    a('s_cmp_ge_u32 s23, 12')
    a('s_cselect_b32 s41, 7, 1')
    a('s_lshl_b32 s41, s41, 12')
    a(f's_mul_i32 s26, s20, {4*28672}')
    a('s_add_u32 s40, s40, s26')
    a('s_lshr_b32 s42, s3, 1')
    a('s_mul_i32 s42, s42, s41')
    a('s_and_b32 s43, s3, 1')
    a('s_lshl_b32 s43, s43, 11')
    a('s_add_u32 s42, s42, s43')
    a('s_add_u32 s42, s42, s40')
    a(f's_add_u32 s42, s42, {WS_TP:#x}')
    a('s_lshl_b32 s43, s3, 11')
    a(f's_add_u32 m0, s43, {JT}')
    a('s_lshl_b32 s43, s3, 10')
    a('s_add_u32 s43, s43, s40')
    a(f's_add_u32 s43, s43, {WS_XF:#x}')
    a('s_add_u32 s44, s43, s41')
    a('s_mul_i32 s25, s3, 28672')
    a('s_add_u32 s26, s26, s25')
    a(f's_add_u32 s24, s26, {WS_TP:#x}')
    a(f's_add_u32 s26, s26, {WS_XF:#x}')
    a('s_waitcnt lgkmcnt(0)')
    srd(a, 8, 4, WS_SIZE)
    XA = 200
    st(0)
    if stamps: a('s_mov_b32 s95, 0')
    if 'KA' in exp:
        a('v_mov_b32 v60, s92'); a('v_add_u32 v62, 8, v62')
        vm.op('buffer_store_dwordx2 v[60:61], v62, s[8:11], 0 offen', 'ka')
    for q in range(2): vm.op(f'buffer_load_dwordx4 v1, s[8:11], s42 offen offset:{1024*q} lds', 'J')
    vm.op('buffer_load_dwordx4 a[248:251], v1, s[8:11], s43 offen', 'JX')
    vm.op('buffer_load_dwordx4 a[252:255], v1, s[8:11], s44 offen', 'JX')
    TL = (0, 1, 6) if P['R'] == 12 else (6,)
    def load_tile(ti):
        t = TL[ti]
        out = X_([f's_add_u32 m0, s25, {4096*t}', f's_add_u32 s46, s24, {4096*t}', f's_add_u32 s47, s26, {4096*t}'])
        for q in range(4):
            out.append(('v', f'buffer_load_dwordx4 v1, s[8:11], s46 offen offset:{1024*q} lds', f't{ti}'))
        for n in range(4):
            out.append(('v', f'buffer_load_dwordx4 a[{XA+16*ti+4*n}:{XA+16*ti+4*n+3}], v1, s[8:11], s47 offen offset:{1024*n}', f'x{ti}'))
        return out
    a('v_and_b32 v2, 15, v0')
    a('v_lshrrev_b32 v3, 4, v0')
    a('s_lshl_b32 s28, s23, 2')
    a('s_add_u32 s28, s28, s3')
    a(f's_mul_i32 s27, s28, {58*1024}')
    a(f's_add_u32 s27, s27, {WS_WF:#x}')
    RED = [7 * q + z for z in TL for q in range(4)]
    CH = [[2, 3], [4, 5]] if P['R'] == 12 else [[0], [1], [2, 3], [4, 5]]
    SPL = [7 * q + z for ch in CH for z in ch for q in range(4)]
    KORD = RED + SPL + [28]
    wreg = lambda k: 8 * KORD.index(k)
    def load_w(k):
        out = X_([f's_add_u32 s37, s27, {2048*k}'])
        for m in range(2):
            r = wreg(k) + 4 * m
            out.append(('v', f'buffer_load_dwordx4 a[{r}:{r+3}], v1, s[8:11], s37 offen offset:{1024*m}', f'w{k}'))
        return out
    LW = lambda i0, i1: sum([load_w(k) for k in KORD[i0:i1]], [])
    SEL = 8
    a('v_lshrrev_b32 v5, 2, v2')
    a('v_cmp_eq_u32 vcc, v5, v3')
    a('v_and_b32 v5, 1, v0')
    a('v_lshlrev_b32 v5, 4, v5')
    a('v_mov_b32 v6, 0x3f00')
    a('v_lshlrev_b32 v6, v5, v6')
    a('v_mov_b32 v7, 0')
    a('v_cndmask_b32 v6, v7, v6, vcc')
    a(f'v_mov_b32 v26, {OOB:#x}')
    a('v_lshlrev_b32 v5, 3, v2')
    a('v_cndmask_b32 v26, v26, v5, vcc')
    a('v_and_b32 v5, 2, v0')
    a('v_cmp_eq_u32 vcc, 0, v5')
    a(f'v_cndmask_b32 v{SEL}, v7, v6, vcc')
    a(f'v_cndmask_b32 v{SEL+1}, v6, v7, vcc')
    a(f'v_mov_b32 v{SEL+2}, v{SEL}')
    a(f'v_mov_b32 v{SEL+3}, v{SEL+1}')
    for q in range(2):
        a(f'v_lshlrev_b32 v5, 2, v{SEL+q}')
        a('v_and_b32 v5, 0x80008000, v5')
        a(f'v_or_b32 v{SEL+4+q}, v5, v{SEL+q}')
    a('v_lshrrev_b32 v33, 3, v0')
    a('v_lshlrev_b32 v33, 6, v33')
    a('v_and_b32 v5, 3, v0')
    a('v_lshl_add_u32 v33, v5, 4, v33')
    a('v_bfe_u32 v5, v0, 2, 1')
    a('v_lshl_add_u32 v33, v5, 3, v33')
    a('v_add_u32 v4, s25, v33')
    a(f'v_add_u32 v23, {RT}, v1')
    a('v_add_u32 v24, s17, v1')
    a('v_lshlrev_b32 v5, 4, v2')
    a('v_lshl_add_u32 v25, v3, 11, v5')
    a('v_add_u32 v14, s25, v25')
    a('v_lshrrev_b32 v6, 1, v3')
    a('v_lshl_add_u32 v15, v6, 11, v5')
    a('v_and_b32 v6, 1, v3')
    a('v_lshl_add_u32 v15, v6, 3, v15')
    a('v_add_u32 v15, s25, v15')
    for q in range(4): a(f'v_mov_b32 v{28+q}, 0x3f803f80')
    a('s_lshl_b32 s45, s20, 4')
    a('s_add_u32 s45, s45, s23')
    a('s_lshl_b32 s48, s45, 10')
    a('s_lshl_b32 s45, s45, 13')
    a('s_lshl_b32 s29, s3, 8')
    a('s_add_u32 s45, s45, s29')
    a(f's_add_u32 s45, s45, {WS_X1:#x}')
    a('s_lshl_b32 s29, s3, 7')
    a('s_add_u32 s48, s48, s29')
    a(f's_add_u32 s48, s48, {WS_ST:#x}')
    a('s_mov_b32 s52, 0xaaaaaaaa')
    a('s_mov_b32 s53, 0xaaaaaaaa')
    a('s_mov_b32 s54, 0xcccccccc')
    a('s_mov_b32 s55, 0xcccccccc')
    for ti in range(len(TL)): emit(load_tile(ti))
    vm.wait('J')
    a('s_barrier')
    if 'FF' not in exp and 'GG' not in exp: st(1)
    R1 = 64
    ACC, PK, TT, TAB = 128, 160, 176, 192
    RJ = ACC + 16
    def rdT(buf, addr, off, tag):
        b = TAB + 16 * buf
        return [('l', f'ds_read_b64_tr_b16 v[{b+4*ks+2*h}:{b+4*ks+2*h+1}], {addr} offset:{off+1024*ks+512*h}', tag) for ks in range(4) for h in range(2)]
    def unit(e, X, tb, rr):
        E = f'v[{e}:{e+3}]'; O = f'v[{e+4}:{e+7}]'
        TA = lambda ks: f'v[{tb+4*ks}:{tb+4*ks+3}]'
        RR = lambda ks: f'v[{rr+4*ks}:{rr+4*ks+3}]'
        return [f'v_mfma_f32_16x16x32_bf16 {E}, v[{SEL}:{SEL+3}], {X}, 0',
                f'v_mfma_f32_16x16x32_bf16 {O}, v[{SEL+2}:{SEL+5}], {X}, 0',
                f'v_mfma_f32_16x16x32_bf16 {E}, {TA(0)}, {RR(0)}, {E}',
                f'v_mfma_f32_16x16x32_bf16 {O}, {TA(2)}, {RR(2)}, {O}',
                f'v_mfma_f32_16x16x32_bf16 {E}, {TA(1)}, {RR(1)}, {E}',
                f'v_mfma_f32_16x16x32_bf16 {O}, {TA(3)}, {RR(3)}, {O}']
    def bfly(e, T, pk):
        ops = []
        for q in range(4):
            ops += [f'v_add_f32 v{T+q}, v{e+q}, v{e+4+q}', f'v_sub_f32 v{T+4+q}, v{e+q}, v{e+4+q}']
        for q in range(2):
            ops += [f'v_cvt_pk_bf16_f32 v{pk+q}, v{T+2*q}, v{T+2*q+1}', f'v_cvt_pk_bf16_f32 v{pk+4+q}, v{T+4+2*q}, v{T+5+2*q}']
        return X_(ops)
    for q in range(4): lg.op(f'ds_read_b128 v[{RJ+4*q}:{RJ+4*q+3}], v24 offset:{1024*q}', 'RJ')
    emit(rdT(2, 'v33', JT, 'JA') + rdT(3, 'v33', JT + 4096, 'JB'))
    a('v_and_b32 v5, 31, v0')
    a('v_lshlrev_b32 v20, 4, v5')
    a('v_lshrrev_b32 v6, 5, v0')
    a('v_lshl_add_u32 v16, v6, 11, v20')
    a('v_add_u32 v17, 57344, v16')
    a(f'v_add_u32 v20, {56*2048}, v20')
    a('s_lshl_b32 s29, s3, 9')
    a('v_add_u32 v21, s29, v20')
    a('s_lshl_b32 s29, s3, 7')
    a(f's_add_u32 s29, s29, {R2O}')
    a('v_lshl_add_u32 v22, v5, 2, s29')
    a('v_mul_u32_u24 v27, 7168, v6')
    a('v_lshl_add_u32 v27, v5, 3, v27')
    uA = unit(ACC, 'a[248:251]', TAB + 32, RJ); uB = unit(ACC + 8, 'a[252:255]', TAB + 48, RJ)
    job = [('wv', None, 'JX')] + X_(uA[:2] + uB[:2]) + [('wl', None, 'JA')] + X_(uA[2:]) + [('wl', None, 'JB')]
    r1 = [('l', f'ds_read_b128 v[{R1+4*q}:{R1+4*q+3}], v23 offset:{1024*q}', 'R') for q in range(16)]
    for i, m in enumerate(uB[2:]): job += X_([m]) + r1[2*i:2*i+2]
    job += bfly(ACC, TT, PK) + bfly(ACC + 8, TT + 8, PK + 2)
    w0 = LW(0, P['n0'])
    for i, x in enumerate(job): emit([x] + w0[i * len(w0) // len(job):(i + 1) * len(w0) // len(job)])
    SJ = TAB + 48
    for hi in range(2):
        P_ = f'v[{PK+4*hi}:{PK+4*hi+3}]'
        vm.op(f'buffer_store_dwordx4 {P_}, v25, s[8:11], s45 offen offset:{1024*hi} sc1', 'js')
        a(f'v_mfma_f32_16x16x32_bf16 v[{SJ+8*hi}:{SJ+8*hi+3}], {P_}, {P_}, 0')
        a(f'v_mfma_f32_16x16x32_bf16 v[{SJ+8*hi+4}:{SJ+8*hi+7}], v[28:31], {P_}, 0')
    emit(r1[8:])
    for hi in range(2):
        q = SJ + 8 * hi
        a(f'v_cndmask_b32 v{q}, v{q}, v{q+1}, s[52:53]')
        a(f'v_cndmask_b32 v{q+2}, v{q+2}, v{q+3}, s[52:53]')
        a(f'v_cndmask_b32 v{q+5}, v{q}, v{q+2}, s[54:55]')
        vm.op(f'buffer_store_dwordx2 v[{q+4}:{q+5}], v26, s[8:11], s48 offen offset:{512*hi} sc1', 'js')
    st(2)
    flg = X_(['s_mul_i32 s29, s28, 37', 's_lshr_b32 s29, s29, 9', 's_mul_i32 s29, s29, 72', 's_lshl_b32 s30, s28, 2', 's_add_u32 s29, s29, s30',
              'v_mov_b32 v35, 1', f'v_mov_b32 v36, {OOB:#x}', 'v_writelane_b32 v36, s29, 0',
              'v_min_u32 v32, 55, v0', 'v_mul_u32_u24 v34, 37, v32', 'v_lshrrev_b32 v34, 9, v34', 'v_mul_u32_u24 v34, 72, v34', 'v_lshl_add_u32 v32, v32, 2, v34',
              'v_min_u32 v34, 13, v0', 's_lshl_b32 s29, s3, 7', 'v_lshl_add_u32 v34, v34, 2, s29',
              's_lshl_b32 s35, s20, 9', f's_add_u32 s35, s35, {WS_FLAGS:#x}', 's_add_u32 s56, s35, 8192', 's_add_u32 s57, s35, 16384'])
    setflag = lambda so, tag: [('wv', None, tag), ('v', f'buffer_store_dword v35, v36, s[8:11], {so} offen sc1', 'fl')]
    tb = {0: 0, 1: 1, 6: 2}
    units = ([(tt, n) for n in range(4) for tt in range(2)] if P['R'] == 12 else []) + [(len(TL) - 1, n) for n in range(4)]
    side = {}
    def spread(lst, u0, u1):
        k = len(lst); m = u1 - u0
        for i, x in enumerate(lst): side.setdefault(u0 + i * m // k, []).append(x)
    NPRE = P['n0'] + P['n1']
    spread(flg, 0, 2)
    spread(LW(P['n0'], NPRE), 0, len(units))
    rdO = lambda ti: rdT(tb[TL[ti]], 'v4', 4096 * TL[ti], f'T{ti}')
    if P['R'] == 12: spread([('wv', None, 'x2')] + rdO(2), 5, 8)
    if P['f1'] < 0: spread(setflag('s35', 'js'), len(units) + P['f1'], len(units) + P['f1'] + 1)
    def post(ui):
        ti, n = units[ui]; t = TL[ti]
        e = ACC + 8 * (ui % 4)
        grp = (ui // 2) % 2 if t < 6 else ui % 2
        b = PK + 8 * grp
        ops = bfly(e, TT + 8 * (ui % 2), b + (2 * t if t < 6 else 0))
        if t == 1:
            ops.append(('l', f'ds_write_b128 v14, v[{b}:{b+3}] offset:{256*n}', 'aw'))
            ops.append(('l', f'ds_write_b128 v14, v[{b+4}:{b+7}] offset:{256*n+1024}', 'aw'))
        elif t == 6:
            ops.append(('l', f'ds_write_b64 v15, v[{b}:{b+1}] offset:{24576+256*n}', 'aw'))
            ops.append(('l', f'ds_write_b64 v15, v[{b+4}:{b+5}] offset:{24576+256*n+1024}', 'aw'))
        return ops
    LAG = 2
    l0 = min(1, len(TL) - 1)
    vm.wait(f't{l0}')
    for ti in range(l0 + 1): emit(rdO(ti))
    vm.wait(f'x{l0}')
    for ui, (ti, n) in enumerate(units):
        if n == 0: lg.wait(f'T{ti}')
        mf = unit(ACC + 8 * (ui % 4), f'a[{XA+16*ti+4*n}:{XA+16*ti+4*n+3}]', TAB + 16 * tb[TL[ti]], R1 + 16 * n)
        fill = (post(ui - LAG) if ui >= LAG else []) + side.get(ui, [])
        k = len(fill)
        for i, m in enumerate(mf):
            a(m)
            emit(fill[i * k // 6:(i + 1) * k // 6])
    for ui in range(len(units) - LAG, len(units)): emit(post(ui))
    a('s_waitcnt lgkmcnt(0)'); lg.all()
    a('s_barrier')
    st(3)
    GT = {0: 128, 2: 160, 1: 192, 3: 224}
    BF = 64
    SA = 112
    nB1 = P['nB1']
    def two(ks, r0, r1, skew):
        o = [(k, r) for k in ks[:len(ks) - skew] for r in (r0, r1)]
        return o + [(k, r0) for k in ks[len(ks) - skew:]] + [(k, r1) for k in ks[len(ks) - skew:]]
    nK = P['nK']
    seq = two(RED, 0, 2, 0) + two(RED[:nB1], 1, 3, 0) + [(k, r) for k in SPL[:nK] for r in (0, 2, 1, 3)]
    seq += two(SPL[nK:] + [28], 0, 2, 2) + two(RED[nB1:] + [28] + SPL[nK:], 1, 3, 4)
    assert len(seq) == 116
    last_use = {k: max(i for i, f in enumerate(seq) if f[0] == k) for k in KORD}
    first_use = {k: min(i for i, f in enumerate(seq) if f[0] == k) for k in KORD}
    done = {r: max(i for i, f in enumerate(seq) if f[1] == r) for r in range(4)}
    def baddr(k, rt):
        if k < 28: return f'v{16 + k // 14} offset:{4096*(k%14)+512*rt}'
        return f'v20 offset:{512*rt}'
    breg = lambda i: BF + 4 * (i % 12)
    rdB = lambda i: ('l', f'ds_read_b128 v[{breg(i)}:{breg(i)+3}], {baddr(*seq[i])}', f'b{i}')
    NS = 232
    fill = [[] for _ in range(NS + 1)]
    def put(lst, s0, s1):
        k = len(lst); m = s1 - s0
        for i, x in enumerate(lst): fill[min(s0 + i * m // k, NS)].append(x)
    AHEAD = 8
    released = set(RED)
    rel = lambda ks: ('f', lambda: released.update(ks), None)
    fx = first_use[SPL[0]]; fa = first_use[28]
    GAP = P['R'] == 4
    if P['f1'] >= 0: put(setflag('s35', 'js') + ([('st', None, 1)] if 'FF' in exp else []), P['f1'], P['f1'] + 1)
    poll1 = [('v', 'buffer_load_dword v37, v32, s[8:11], s35 offen sc1', 'p1')]
    chk1 = [('f', lambda: check('p1', 'v32', 's35', 'K2_P1'), None), ('st', None, 4)]
    x1s = X_(['s_lshl_b32 s29, s20, 14', 's_lshl_b32 s30, s3, 8', 's_add_u32 s30, s30, s29', f's_add_u32 s30, s30, {WS_ST:#x}', 's_add_u32 s31, s30, 4096',
              's_lshl_b32 s29, s20, 17', 's_lshl_b32 s49, s3, 13', 's_add_u32 s49, s49, s29', f's_add_u32 s49, s49, {WS_X1:#x}'])
    def load_x1(z, c):
        return X_([f's_add_u32 m0, s25, {4096*z}', f's_add_u32 s46, s49, {32768*(z>>1)+4096*(z&1)}']) + \
               [('v', f'buffer_load_dwordx4 v1, s[8:11], s46 offen offset:{1024*q} sc1 lds', f'c{c}') for q in range(4)]
    load_sd = [('v', f'buffer_load_dwordx2 v[{SA+2*j}:{SA+2*j+1}], v27, s[8:11], s{30+j//4} offen offset:{1024*(j%4)} sc1', 'sd') for j in range(7)]
    bar = {}
    for c, ch in enumerate(CH):
        bar[c] = 2 * (first_use[ch[0]] - P['ba']) - 1 if (c or not GAP) else 2 * fx - 1
    bx = bar[len(CH) - 1] + 1
    inv = 0x3b124925
    fin = [('wv', None, 'sd')]
    for (d, s_) in ((0, 2), (4, 6), (8, 10), (0, 4), (8, 12), (0, 8)):
        fin += X_([f'v_add_f32 v{SA+d}, v{SA+d}, v{SA+s_}', f'v_add_f32 v{SA+d+1}, v{SA+d+1}, v{SA+s_+1}'])
    fin += X_([f'v_mov_b32 v{SA+2}, v{SA}', f'v_mov_b32 v{SA+3}, v{SA+1}', 'v_mov_b32 v31, 0',
               f'v_permlane32_swap_b32 v{SA}, v{SA+2}', f'v_permlane32_swap_b32 v{SA+1}, v{SA+3}',
               f'v_add_f32 v{SA}, v{SA}, v{SA+2}', f'v_add_f32 v{SA+2}, v{SA+1}, v{SA+3}',
               f'v_mul_f32 v{SA}, {inv:#x}, v{SA}', f'v_mul_f32 v{SA+2}, {inv:#x}, v{SA+2}',
               f'v_fma_f32 v{SA+2}, -v{SA}, v{SA}, v{SA+2}', f'v_max_f32 v{SA+2}, 0, v{SA+2}',
               f'v_cvt_pk_bf16_f32 v28, -v{SA}, -v{SA}', f'v_cvt_pk_bf16_f32 v{SA+2}, v{SA+2}, v{SA+2}',
               f'v_lshlrev_b32 v{SA+2}, 16, v{SA+2}', f'v_add_f32 v{SA+2}, 0x3727c5ac, v{SA+2}',
               f'v_cvt_pk_bf16_f32 v{SA+2}, v{SA+2}, v{SA+2}', f'v_lshlrev_b32 v{SA+2}, 16, v{SA+2}',
               f'v_sqrt_f32 v{SA+2}, v{SA+2}', 's_nop 0',
               f'v_cvt_pk_bf16_f32 v30, v{SA+2}, v{SA+2}', f'v_cvt_pk_bf16_f32 v29, -v{SA}, v{SA+2}',
               f'v_lshlrev_b32 v{SA+2}, 16, v30', f'v_rcp_f32 v{SA+2}, v{SA+2}'])
    fin += [('l', 'ds_write_b128 v21, v[28:31]', 'st')] + X_([f'v_mul_f32 v{SA+2}, v{SA+2}, v{SA+2}']) + [('l', f'ds_write_b32 v22, v{SA+2}', 'st')]
    fs = bx - 19
    put(fin + [('wl', None, 'st')], fs, fs + 17)
    wd_setup = X_(['s_mul_i32 s38, s21, 112', 's_mul_i32 s31, s3, 28', 's_add_u32 s38, s38, s31', 's_lshl_b32 s38, s38, 11',
                   f's_add_u32 s38, s38, {WS_WDF:#x}', 's_and_b32 s32, s3, 1', 's_lshl_b32 s32, s32, 10', 's_lshr_b32 s31, s3, 1', 's_lshl_b32 s31, s31, 8',
                   's_or_b32 s32, s32, s31', 'v_xor_b32 v2, s32, v1', 'v_xor_b32 v3, 0x400, v2',
                   's_mul_i32 s29, s20, 448', 's_lshl_b32 s31, s28, 1', 's_add_u32 s29, s29, s31', 's_lshl_b32 s29, s29, 10', f's_add_u32 s58, s29, {WS_HF:#x}'])
    free = [(0, 232), (0, 240), (0, 248)] + sorted((2 * last_use[k] + 2, wreg(k)) for k in KORD)
    dreg = lambda j: free[j][1]
    def load_wd(j):
        r = dreg(j); out = []
        if j % 2 == 0: out += X_([f's_add_u32 s39, s38, {2048*j}'])
        out += [('v', f'buffer_load_dwordx4 a[{r}:{r+3}], v2, s[8:11], s39 offen offset:{2048*(j%2)}', f'd{j}'),
                ('v', f'buffer_load_dwordx4 a[{r+4}:{r+7}], v3, s[8:11], s39 offen offset:{2048*(j%2)}', f'd{j}')]
        return out
    res = X_(['s_lshl_b32 s33, s22, 1',
              's_lshl_b32 s34, s21, 4', 's_and_b32 s59, s3, 1', 's_lshl_b32 s59, s59, 3', 's_add_u32 s34, s34, s59',
              's_and_b32 s59, s3, 2', 's_lshl_b32 s59, s59, 1', 's_add_u32 s34, s34, s59',
              'v_lshrrev_b32 v10, 5, v0', 'v_and_b32 v11, 31, v0', 's_lshl_b32 s59, s33, 9', 'v_lshl_add_u32 v12, v11, 4, s59',
              's_lshl_b32 s59, s33, 7', f's_add_u32 s59, s59, {R2O}', 'v_lshl_add_u32 v18, v11, 2, s59',
              'v_add_u32 v11, s34, v10'])
    for q in range(2):
        res += X_(['v_mul_u32_u24 v13, 147, v11', 'v_lshrrev_b32 v13, 10, v13',
                   'v_mul_u32_u24 v14, 7, v13', 'v_sub_u32 v14, v11, v14',
                   'v_and_b32 v15, 3, v13', 'v_lshrrev_b32 v13, 2, v13',
                   'v_cmp_eq_u32 vcc, 6, v14',
                   'v_lshl_add_u32 v8, v15, 1, v14', 'v_and_b32 v14, 6, v14', 'v_lshl_add_u32 v8, v14, 2, v8', 'v_sub_u32 v8, v8, v14',
                   'v_add_u32 v15, 24, v15', 'v_cndmask_b32 v8, v8, v15, vcc',
                   'v_mul_u32_u24 v13, 28672, v13', 'v_lshrrev_b32 v14, 1, v8', 'v_lshl_add_u32 v13, v14, 11, v13',
                   'v_and_b32 v8, 1, v8', 'v_lshl_add_u32 v13, v8, 3, v13', f'v_add_u32 v{38+q}, v13, v12', 'v_add_u32 v11, 2, v11'])
    res += X_(['v_lshlrev_b32 v4, 4, v10', 's_lshl_b32 s59, s34, 4', f's_add_u32 s59, s59, {WS_MOD + 5*1792}'])
    for q in range(2):
        res.append(('v', f'buffer_load_dwordx4 v[{40+4*q}:{43+4*q}], v4, s[8:11], s59 offen offset:{32*q}', 'gb'))
    for q in range(2):
        res.append(('l', f'ds_read_b64 v[{56+2*q}:{57+2*q}], v{38+q}', 'res'))
        res.append(('l', f'ds_read_b64 v[{8+2*q}:{9+2*q}], v{38+q} offset:512', 'res'))
    res += [('l', 'ds_read_b32 v12, v18', 'res'), ('l', 'ds_read_b32 v13, v18 offset:128', 'res')]
    res += X_(['v_and_b32 v19, 15, v0', 'v_lshlrev_b32 v19, 1, v19', 'v_bfe_u32 v14, v0, 4, 1', 'v_add_u32 v19, v19, v14',
               f'v_mul_u32_u24 v19, {16*896}, v19', 'v_add_u32 v19, v19, v4',
               f's_mul_i32 s60, s33, {32*16*896}', 's_mul_i32 s59, s20, 896', 's_add_u32 s60, s60, s59', 's_lshl_b32 s59, s34, 3', 's_add_u32 s60, s60, s59',
               f's_add_u32 s61, s60, {32*16*896}',
               's_lshl_b32 s62, s20, 2', 's_add_u32 s62, s62, s33', 's_mul_i32 s62, s62, 112', 's_mul_i32 s59, s3, 28', 's_add_u32 s62, s62, s59',
               's_lshl_b32 s62, s62, 10', f's_add_u32 s62, s62, {WS_HF:#x}', f's_add_u32 s63, s62, {112*1024}',
               's_mov_b32 s12, s50', 's_mov_b32 s13, s51', f's_mov_b32 s14, {NB_X:#x}', 's_mov_b32 s15, 0x00020000'])
    for lam in range(1, 4):
        res += X_([f's_xor_b32 s59, s3, {lam}', 's_mul_i32 s59, s59, 6144', f'v_add_u32 v{4+lam}, s59, v1'])
    res += X_(['s_mul_i32 s59, s3, 6144', 'v_add_u32 v14, s59, v1'])
    res2 = [('wl', None, 'res'), ('wv', None, 'gb')]
    res2 += X_([f'v_mul_f32 v{48+i}, v13, v{40+i}' for i in range(8)] + [f'v_mul_f32 v{40+i}, v12, v{40+i}' for i in range(8)])
    put(res, bx, bx + 32)
    def epi(rt, packed, tag):
        g = GT[rt]; u = g + 16; o = X_([f's_add_u32 s29, s58, {rt*112*1024}'])
        for hh in range(2):
            o += X_([f'v_max_f32 v{g+i}, 0, v{g+i}' for i in range(8 * hh, 8 * hh + 8)])
            if packed: o += X_([f'v_pk_mul_f32 v[{g+2*i}:{g+2*i+1}], v[{g+2*i}:{g+2*i+1}], v[{u+2*i}:{u+2*i+1}]' for i in range(4 * hh, 4 * hh + 4)])
            else: o += X_([f'v_mul_f32 v{g+i}, v{g+i}, v{u+i}' for i in range(8 * hh, 8 * hh + 8)])
            o += X_([f'v_cvt_pk_bf16_f32 v{u+i}, v{g+2*i}, v{g+2*i+1}' for i in range(4 * hh, 4 * hh + 4)])
            o.append(('v', f'buffer_store_dwordx4 v[{u+4*hh}:{u+4*hh+3}], v1, s[8:11], s29 offen offset:{1024*hh} sc1', tag))
        return o
    e0 = 2 * done[0] + 2
    SEN = P['sen']
    if SEN:
        pf = X_([f'v_mov_b32 v{44+q}, -1' for q in range(4)])
        for rt in (1, 3):
            pf += X_([f's_add_u32 s59, s58, {rt*112*1024}'])
            pf += [('v', f'buffer_store_dwordx4 v[44:47], v1, s[8:11], s59 offen offset:{1024*hh} sc1', 'hA') for hh in range(2)]
        put(pf, P['ps'], P['ps'] + 30)
        assert P['ps'] + 30 <= bx
    put(epi(0, False, 'hA'), e0, e0 + 9)
    put(epi(2, False, 'hA') + ([('st', None, 6)] if 'FF' not in exp else []), e0 + 9, e0 + 18)
    assert 2 * done[2] + 2 <= e0 + 9
    put(res2, e0 + 18, e0 + 24)
    put(setflag('s56', 'hA') + ([('st', None, 1)] if 'GG' in exp else []), e0 + 18 + 8 * P['fa'], e0 + 19 + 8 * P['fa'])
    put(epi(1, False, 'hB'), 2 * done[1] + 2, NS)
    put([('v', 'buffer_load_dword v37, v34, s[8:11], s56 offen sc1', 'pA')], NS - P['pa'], NS - P['pa'] + 1)
    hreg = lambda s: 128 + 4 * (s % 32) if s % 32 < 16 else 64 + 4 * (s % 32 - 16)
    def loadh(s):
        ph, k = divmod(s, 28); b = hreg(s); o = []
        if k % 4 == 0: o += X_([f's_add_u32 s47, s{62+ph}, {1024*k}'])
        return o + [('v', f'buffer_load_dwordx4 v[{b}:{b+3}], v1, s[8:11], s47 offen offset:{1024*(k%4)} sc1', f'h{s}')]
    dt = 8 / P['rate']
    nld = lambda item: sum(0.5 if 'x2' in x[1] else 1 for x in item if x[0] == 'v')
    wq = list(KORD[NPRE:]); t = 0.0
    c1 = 2 * fx if GAP else P['c1']
    d0 = 8 / P['r0']
    while wq and t + d0 < c1:
        put(load_w(wq.pop(0)), int(t), int(t + d0) + 1); t += 2 * d0
    gap = []
    if GAP:
        def paced(n):
            o = []
            for _ in range(n):
                if wq: o += [('f', lambda: a(f"s_waitcnt vmcnt({P['gw']})"), None)] + load_w(wq.pop(0))
            return o
        pl = ([('st', None, 6)] if 'FF' in exp else []) + poll1
        if P['p1'] >= 0: put(pl, P['p1'], P['p1'] + 1); pl = []
        gap = paced(P['g1']) + pl + paced(P['g2']) + chk1
    else:
        put(poll1, P['p1'], P['p1'] + 1); put(chk1, c1 - 1, c1)
    q_ = [(bar[c] - 24, 0, load_x1(z, c)) for c, ch in enumerate(CH) for z in ch] + [(fs - 16, 0, load_sd)]
    q_ += [(2 * first_use[k] - 8, 0, load_w(k)) for k in wq]
    q_.sort(key=lambda x: x[0])
    q_ += [(1000 + j, free[j][0], load_wd(j)) for j in range(28)]
    t = float(c1); late = []; burst = P['b0']
    stores = [i for i, f in enumerate(fill) for x in f if x[0] == 'v' and 'store_dwordx4' in x[1]]
    ca = NS - P['ca']; nh = 0
    if P['ca']: put([('f', lambda: check('pA', 'v34', 's56', 'K2_PA'), None), ('st', None, 8)], ca - 1, ca)
    while q_:
        dl, earl, item = q_[0]
        if GAP and burst > 0: gap += item; burst -= nld(item); q_.pop(0); continue
        while stores and stores[0] <= t: t += P['sc'] * dt; stores.pop(0)
        if P['ca'] and ca <= max(t, min(earl, ca)) and t < NS - P['qa'] and nh < 16:
            t = max(t, ca); item = loadh(nh); nh += 1
        else:
            q_.pop(0); t = max(t, earl)
            if t >= NS - P['qd']: late.append(dl - 1000); continue
        put(item, int(t), int(t + dt * (nld(item) - 1)) + 1)
        if 'dbg' in exp and dl < 1000: print(item[-1][2], 'issue', int(t), 'need', dl)
        t += dt * nld(item)
    for c, ch in enumerate(CH):
        b_ = [('wv', None, f'c{c}'), ('x', 's_barrier', None), rel([k for k in SPL if k % 7 in ch] + ([28] if c == len(CH) - 1 else []))] + ([('st', None, 5)] if c == 0 else [])
        if GAP and c == 0: fill[bar[0]] += gap + b_
        else: fill[bar[c]] += b_
    if 'dbg' in exp: print('late Wd', late, 'nh', nh, 'bar', bar, 'e0', e0, 'max fill', sorted(len(f) for f in fill)[-3:])
    for z, sl in enumerate(P['sx'].split(':') if P['sx'] else []): fill[int(sl)].append(('f', lambda z=z: st(8 + z, True), None))
    if 'noW!' in exp: fill = [[f for f in fl if not (f[0] == 'v' and f[2][0] in 'wd')] for fl in fill]; late = []
    if 'noD!' in exp: fill = [[f for f in fl if not (f[0] == 'v' and f[2][0] in 'd')] for fl in fill]; late = []
    if 'noX!' in exp: fill = [[f for f in fl if not (f[0] in ('v', 'wv') and f[2] in ('x1d', 'sd'))] for fl in fill]
    if 'noA!' in exp: fill = [[f for f in fl if not (f[0] == 'x' and f[1].startswith(('v_max', 'v_mul_f32', 'v_cvt', 'v_add_f32')))] for fl in fill]
    if 'noB!' in exp: fill = [[f for f in fl if not (f[0] == 'x' and f[1].startswith('s_barrier'))] for fl in fill]
    if 'noS!' in exp: fill = [[f for f in fl if not (f[0] in ('v', 'wv') and f[2] in ('hA',))] for fl in fill]
    emit([rdB(i) for i in range(AHEAD)] + wd_setup + x1s)
    started = set(); nb = AHEAD
    for i, (k, rt) in enumerate(seq):
        while nb <= i + 2 and nb < 116 and seq[nb][0] in released: emit([rdB(nb)]); nb += 1
        if 'noW!' not in exp: vm.wait(f'w{k}')
        lg.wait(f'b{i}')
        for m in range(2):
            d = GT[rt] + 16 * m; w = wreg(k) + 4 * m; b = breg(i)
            c = f'v[{d}:{d+15}]' if rt in started else '0'
            a(f'v_mfma_f32_32x32x16_bf16 v[{d}:{d+15}], a[{w}:{w+3}], v[{b}:{b+3}], {c}')
            if nb <= i + AHEAD and nb < 116 and seq[nb][0] in released: emit([rdB(nb)]); nb += 1
            emit(fill[2 * i + m])
        started.add(rt)
    st(7)
    flB = 'buffer_store_dword v35, v36, s[8:11], s57 offen sc1'
    e3 = epi(3, True, 'hB')
    if P['ord']:
        lw = sum([load_wd(k) for k in late[:P['oe']]], [])
        emit(fill[NS] + lw + e3)
        for k in late[P['oe']:]: emit(load_wd(k))
        late = []
        if P['ord'] == 1 and not SEN:
            emit(setflag('s57', 'hB')); st(9)
    else: emit(fill[NS] + e3)
    if not P['ca']:
        check('pA', 'v34', 's56', 'K2_PA', ['s_waitcnt vmcnt(0)', flB] if not SEN else [])
        st(8)
    stream = []
    for k in range(28):
        if k in late: stream.append((0, load_wd(k)))
        if k >= nh: stream.append((0, loadh(k)))
    if not SEN:
        stream.insert(max(len(stream) - P['pb'], P['w0']), (0, [('v', 'buffer_load_dword v37, v34, s[8:11], s57 offen sc1', 'pB')]))
        stream.append((P['cb'], [('f', lambda: check('pB', 'v34', 's57', 'K2_PB'), None), ('st', None, 11)]))
    stream += [(max(k - 3, P['cb']), loadh(28 + k)) for k in range(28)]
    def topup(win, s):
        while stream and stream[0][0] <= s and len(vm.tags) - 1 - vm.done < win: emit(stream.pop(0)[1])
    for _ in range(P['w0']): emit(stream.pop(0)[1])
    def reduce(ph):
        G2 = 192 + 32 * ph; gb = 40 + 8 * ph; xs = 56 if ph == 0 else 8; T = 20; ad = (5, 6, 7, 14) if ph else (32, 33, 38, 39)
        blk = lambda lam: G2 + 16 * (lam & 1) + 8 * (lam >> 1)
        def fma(r):
            if ph: return X_([f'v_pk_fma_f32 v[{T+2*i}:{T+1+2*i}], v[{r+2*i}:{r+2*i+1}], v[{gb+2*i}:{gb+2*i+1}], v[{T+2*i}:{T+1+2*i}]' for i in range(4)])
            return X_([f'v_fma_f32 v{T+i}, v{r+i}, v{gb+i}, v{T+i}' for i in range(8)])
        o1 = [('l', f'ds_write_b128 v{ad[lam-1]}, v[{blk(lam)+4*q}:{blk(lam)+4*q+3}] offset:{2048*(lam-1)+1024*q}', f'rw{ph}') for lam in (2, 1, 3) for q in range(2)]
        o0 = []
        for i in range(4): o0 += X_([f'v_lshlrev_b32 v{T+2*i}, 16, v{xs+i}', f'v_and_b32 v{T+1+2*i}, 0xffff0000, v{xs+i}'])
        o1 += fma(G2)
        o2 = [('wl', None, f'rw{ph}'), ('x', 's_barrier', None)]
        o2 += [('l', f'ds_read_b128 v[{G2+8+4*z}:{G2+11+4*z}], v{ad[3]} offset:{1024*z}', f'rr{ph}{z//2}') for z in range(6)]
        o3 = []
        for lam in range(3): o3 += [('wl', None, f'rr{ph}{lam}')] + fma(G2 + 8 + 8 * lam)
        o3 += X_([f'v_cvt_pk_bf16_f32 v{28+i}, v{T+2*i}, v{T+1+2*i}' for i in range(4)] + ['v_permlane32_swap_b32 v28, v30', 'v_permlane32_swap_b32 v29, v31'])
        o3 += [('v', f'buffer_store_dwordx4 v[28:31], v19, s[12:15], s{60+ph} offen{"" if ph else " sc1"}', 'out')]
        return o0, o1, o2, o3
    f2 = [[] for _ in range(113)]
    def put2(lst, s0, s1):
        k = len(lst); m = s1 - s0
        for i, x in enumerate(lst): f2[s0 + i * m // k].append(x)
    rA = reduce(0); rB = reduce(1)
    if not SEN and P['ord'] != 1: put2(setflag('s57', 'hB') + [('st', None, 9)], P['fb'], P['fb'] + 1)
    put2(X_([f'v_add_u32 v{d}, {RA}, v{r}' for d, r in zip((32, 33, 38, 39), (5, 6, 7, 14))]) + rA[0], 40, 50)
    put2(rA[1], 58, 64); put2(rA[2], 68, 72); put2(rA[3], 76, 88); put2(rB[0], 90, 96)
    emit(f2[0])
    grp = {0: 4, 4: 4, 8: 4, 12: 4, 16: 4, 20: 4, 24: 2, 26: 2}
    for s in range(56):
        ph, k = divmod(s, 28)
        if SEN and ph and k in grp:
            n = grp[k]
            while f'h{s+n-1}' not in vm.tags: emit(stream.pop(0)[1])
            vm.wait(f'h{s+n-1}')
            mx = [f'v_max_u32 v37, v{hreg(s)}, v{hreg(s)+2}'] + [f'v_max3_u32 v37, v37, v{hreg(s+z)}, v{hreg(s+z)+2}' for z in range(1, n)] + ['v_cmp_eq_u32 vcc, -1, v37']
            for x in mx: a(x)
            a('s_nop 1')
            a(f's_cbranch_vccnz K2_B{k}_S')
            a.label(f'K2_B{k}_OK')
            tail.extend([f'K2_B{k}_S:', 's_mov_b32 s36, 0', f's_add_u32 s49, s63, {1024*k}', f'K2_B{k}_L:'] +
                [f'buffer_load_dwordx4 v[{hreg(s+z)}:{hreg(s+z)+3}], v1, s[8:11], s49 offen offset:{1024*z} sc1' for z in range(n)] +
                (['s_add_u32 s95, s95, 1'] if stamps else []) +
                ['s_add_u32 s36, s36, 1', 's_waitcnt vmcnt(0)'] + mx + ['s_cmp_gt_u32 s36, 200000', f's_cbranch_scc1 K2_B{k}_OK', 's_nop 1',
                 f's_cbranch_vccnz K2_B{k}_L', f's_branch K2_B{k}_OK'])
        while f'h{s}' not in vm.tags: emit(stream.pop(0)[1])
        vm.wait(f'h{s}')
        if ph == 0 and '!' not in exp: vm.wait(f'd{k}')
        if k == 0: st(10 + 3 * ph)
        b = hreg(s); dr = dreg(k)
        for c in (1, 0):
            d = 192 + 32 * ph + 16 * c
            cc = '0' if k == 0 else f'v[{d}:{d+15}]'
            a(f'v_mfma_f32_32x32x16_bf16 v[{d}:{d+15}], a[{dr+4*c}:{dr+4*c+3}], v[{b}:{b+3}], {cc}')
            if c == 1 and 2 * s + 1 >= P['fb']: topup(P['win'], s)
            emit(f2[2 * s + 2 - c])
        if k == 27: st(12 + 2 * ph)
    emit(rB[1] + rB[2] + rB[3])
    if stamps:
        a('s_waitcnt vmcnt(0)')
        st(15)
        a('s_lshl_b32 s98, s2, 4')
        a('s_lshl_b32 s99, s3, 2')
        a('s_add_u32 s98, s98, s99')
        a(f's_add_u32 s98, s98, {WS_STAMP + 0x30000:#x}')
        a('v_mov_b32 v60, s95')
        a('v_mov_b32 v61, 0')
        a('buffer_store_dword v60, v61, s[8:11], s98 offen')
    if 'DBG' in exp:
        a('s_cmp_lg_u32 s2, 0')
        a('s_cbranch_scc1 K2_END')
        a('s_load_dwordx2 s[12:13], s[0:1], 80')
        a('s_waitcnt vmcnt(0)')
        offs = [180*128, 0, 8, 16, 130*128+16, 0x10000, 0x10008, 0x10020, 0x10000+100*128+32, 0x20000, 0x20000+5*8, 0x20000+7*8, 0x20000+15*8]
        for i, o in enumerate(offs):
            a(f'v_mov_b32 v2, {WS_STAMP + o:#x}')
            a(f'buffer_load_dword v{64+i}, v2, s[8:11], 0 offen sc1')
        a('s_mov_b32 s14, 256')
        a('s_mov_b32 s15, 0x00020000')
        a('v_mov_b32 v2, 0')
        a('s_waitcnt vmcnt(0) lgkmcnt(0)')
        for i in range(1, len(offs)):
            a(f'v_sub_u32 v{64+i}, v{64+i}, v64')
            a(f'buffer_store_dword v{64+i}, v2, s[12:15], 0 offen offset:{4*i}')
    a.label('K2_END')
    a('s_endpgm')
    for t_ in tail:
        if t_.endswith(':'): a.label(t_[:-1])
        else: a(t_)
    return a
```

```python
from asmlib import *
from layout import *
import struct

XS = 912
RO = 64 * XS
MO = RO + 256
K0_LDS = 57344 + 2048 + 512

def srd(a, d, base, nbytes):
    a(f's_mov_b32 s{d}, s{base}')
    a(f's_mov_b32 s{d+1}, s{base+1}')
    a(f's_mov_b32 s{d+2}, {nbytes:#x}' if isinstance(nbytes, int) else f's_mov_b32 s{d+2}, {nbytes}')
    a(f's_mov_b32 s{d+3}, 0x00020000')

def rb16(a, dst, src):
    a(f'v_cvt_pk_bf16_f32 v{dst}, v{src}, v{src}')
    a(f'v_lshlrev_b32 v{dst}, 16, v{dst}')

def stamp(a, kidx, slot, ws_srd, enable, wgreg='s2', tmp_s=96, tmp_v=(250, 251, 252)):
    if not enable: return
    v0_, v1_, v2_ = tmp_v
    a(f's_memrealtime s[{tmp_s}:{tmp_s+1}]')
    a(f's_memtime s[{tmp_s+2}:{tmp_s+3}]')
    a('s_waitcnt lgkmcnt(0)')
    a(f'v_mov_b32 v{v0_}, s{tmp_s}')
    a(f'v_mov_b32 v{v1_}, s{tmp_s+2}')
    a(f's_lshl_b32 s{tmp_s+2}, {wgreg}, 7')
    a(f's_add_u32 s{tmp_s+2}, s{tmp_s+2}, {WS_STAMP + kidx * 0x10000 + slot * 8:#x}')
    a(f'v_mov_b32 v{v2_}, s{tmp_s+2}')
    a(f'buffer_store_dwordx2 v[{v0_}:{v1_}], v{v2_}, s[{ws_srd}:{ws_srd+3}], 0 offen')

def w_rows(a, kp, wave, vdst, vt0, vt1, st):
    a(f'v_and_b32 v{vt0}, 31, v0')
    a(f'v_lshlrev_b32 v{vt0}, 4, v{vt0}')
    a('v_cmp_gt_u32 vcc, 32, v0')
    for kk in range(2):
        s0, s1 = st + 2 * kk, st + 2 * kk + 1
        a(f's_lshl_b32 s{s0}, {wave}, 8')
        a(f's_add_u32 s{s0}, s{s0}, {kp}')
        if kk: a(f's_add_u32 s{s0}, s{s0}, 128')
        a(f's_sub_u32 s{s1}, 2048, s{s0}')
        a(f's_and_b32 s{s1}, s{s1}, 2047')
        a(f's_mul_i32 s{s0}, s{s0}, 450')
        a(f's_mul_i32 s{s1}, s{s1}, 450')
        a(f'v_mov_b32 v{vdst+kk}, s{s1}')
        a(f'v_mov_b32 v{vt1}, s{s0}')
        a(f'v_cndmask_b32 v{vdst+kk}, v{vdst+kk}, v{vt1}, vcc')
        a(f'v_and_b32 v{vdst+kk}, -16, v{vdst+kk}')
        a(f'v_add_u32 v{vdst+kk}, v{vdst+kk}, v{vt0}')

def gen_k0(stamps=False, exp=''):
    a = Asm()
    TV = (120, 121, 122)
    nst = (3 if 'KA' in exp else 1) if stamps else 0
    a.label('k0_kernel')
    if 'KA' in exp: a('s_memrealtime s[92:93]')
    a(f's_cmp_ge_u32 s2, {K0_GRID}')
    a('s_cbranch_scc1 K0_END')
    a('s_load_dwordx2 s[4:5], s[0:1], 0')
    a('s_load_dwordx2 s[6:7], s[0:1], 88')
    a('s_load_dwordx4 s[16:19], s[0:1], 56')
    a('s_load_dwordx4 s[32:35], s[0:1], 8')
    a('s_getpc_b64 s[36:37]')
    a.label('K0_PC')
    a('s_sub_u32 s36, s36, K0_PC-k0_kernel')
    a('s_subb_u32 s37, s37, 0')
    a('s_mov_b32 s38, k1_kernel-k0_kernel')
    a('s_mov_b32 s39, 0x00020000')
    a('v_lshlrev_b32 v1, 4, v0')
    a('buffer_load_dwordx4 v[112:115], v1, s[36:39], 0 offen')
    a('v_lshrrev_b32 v1, 6, v0')
    a('v_and_b32 v0, 63, v0')
    a('v_readfirstlane_b32 s3, v1')
    a('v_lshlrev_b32 v1, 4, v0')
    a('v_and_b32 v2, 15, v0')
    a('v_lshrrev_b32 v3, 4, v0')
    a(f's_cmp_ge_u32 s2, {K0_NA}')
    a('s_cbranch_scc1 K0_B')
    a('s_lshr_b32 s21, s2, 5')
    a('s_lshl_b32 s21, s21, 3')
    a('s_and_b32 s20, s2, 7')
    a('s_add_u32 s21, s21, s20')
    a('s_mul_i32 s23, s21, 896')
    a(f's_mul_i32 s24, s3, {8*28672}')
    a('s_add_u32 s23, s23, s24')
    a(f's_mul_i32 s24, s3, {8*XS}')
    a('s_mov_b32 m0, s24')
    a('s_waitcnt lgkmcnt(0)')
    if 'KA' in exp: a('s_memrealtime s[94:95]')
    srd(a, 8, 4, NB_X)
    a('s_mov_b32 exec_hi, 0x00ffffff')
    for r in range(8):
        a('buffer_load_dwordx4 v1, s[8:11], s23 offen lds')
        if r < 7:
            a(f's_add_u32 m0, m0, {XS}')
            a('s_add_u32 s23, s23, 28672')
    a('s_mov_b32 exec_hi, -1')
    srd(a, 12, 6, WS_SIZE)
    stamp(a, 0, 0, 12, stamps, tmp_v=TV)
    if 'KA' in exp:
        a('v_mov_b32 v120, s92'); a('v_mov_b32 v121, s94')
        a('buffer_store_dword v120, v122, s[12:15], 0 offen offset:24')
        a('buffer_store_dword v121, v122, s[12:15], 0 offen offset:32')
    a('s_lshr_b32 s22, s2, 2')
    a('s_and_b32 s22, s22, 6')
    a('s_lshr_b32 s20, s3, 2')
    a('s_add_u32 s22, s22, s20')
    a('s_and_b32 s29, s3, 3')
    CT = 80
    a('s_lshl_b32 s24, s29, 4')
    a('v_add_u32 v4, s24, v2')
    a('v_lshrrev_b32 v5, 1, v4')
    a('v_and_b32 v6, 1, v4')
    a('v_cmp_eq_u32 vcc, 1, v4')
    a('v_mov_b32 v7, 32')
    a('v_cndmask_b32 v5, v5, v7, vcc')
    a('v_mov_b32 v7, 0')
    a('v_cndmask_b32 v6, v6, v7, vcc')
    a('v_cvt_f32_u32 v5, v5')
    a('v_cvt_f32_u32 v6, v6')
    a('v_mul_f32 v5, 0x3c800000, v5')
    a('v_mul_f32 v6, 0x3e800000, v6')
    a('v_lshlrev_b32 v7, 3, v3')
    a('v_cvt_f32_u32 v7, v7')
    a('v_fma_f32 v6, v5, v7, v6')
    a('v_mul_f32 v7, 0x42000000, v5')
    a('v_add_f32 v7, v7, v6')
    for j in range(8):
        a(f'v_cos_f32 v{CT+j}, v6')
        a(f'v_cos_f32 v{CT+8+j}, v7')
        if j < 7:
            a('v_add_f32 v6, v6, v5')
            a('v_add_f32 v7, v7, v5')
    a('s_lshl_b32 s24, s3, 3')
    a('v_lshrrev_b32 v4, 3, v0')
    a('v_add_u32 v4, s24, v4')
    a(f'v_mul_u32_u24 v5, {XS}, v4')
    a('v_and_b32 v6, 7, v0')
    a('v_lshl_add_u32 v5, v6, 4, v5')
    a('v_and_b32 v6, 3, v0')
    a('v_lshrrev_b32 v7, 2, v2')
    a('v_lshl_add_u32 v7, v3, 3, v7')
    a(f'v_mul_u32_u24 v8, {XS}, v7')
    a('v_mul_u32_u24 v7, 224, v6')
    a('s_lshl_b32 s25, s22, 3')
    a('v_add3_u32 v8, v8, v7, s25')
    a(f'v_mul_u32_u24 v11, {2*57344}, v3')
    a('s_and_b32 s27, s21, 3')
    a('v_xor_b32 v7, s27, v2')
    a('v_lshl_add_u32 v11, v7, 4, v11')
    a(f's_mul_i32 s26, s29, {8*57344}')
    a('s_lshl_b32 s27, s21, 8')
    a('s_add_u32 s26, s26, s27')
    a('s_lshl_b32 s27, s22, 13')
    a('s_add_u32 s26, s26, s27')
    a(f's_add_u32 s26, s26, {WS_U:#x}')
    a('s_add_u32 s27, s26, 57344')
    a('v_lshlrev_b32 v12, 2, v4')
    a('v_lshlrev_b32 v13, 1, v4')
    a('v_lshlrev_b32 v14, 5, v3')
    a('v_lshlrev_b32 v15, 4, v3')
    a('s_mov_b32 s28, 0x3f803f80')
    for i in range(4): a(f'v_mov_b32 v{16+i}, 0')
    a(f's_waitcnt vmcnt({nst})')
    stamp(a, 0, 1, 12, stamps, tmp_v=TV)
    XB = 20
    for i in range(7):
        a(f'ds_read_b128 v[{XB+4*i}:{XB+4*i+3}], v5 offset:{128*i}')
    for i in range(7):
        a(f's_waitcnt lgkmcnt({6-i})')
        for j in range(4):
            r = XB + 4 * i + j
            a(f'v_dot2c_f32_bf16 v{16+(j&1)}, s28, v{r}')
            a(f'v_dot2c_f32_bf16 v{18+(j&1)}, v{r}, v{r}')
    a('v_add_f32 v16, v16, v17')
    a('v_add_f32 v18, v18, v19')
    for qp in ('quad_perm:[1,0,3,2]', 'quad_perm:[2,3,0,1]', 'row_half_mirror'):
        a(f'v_add_f32_dpp v16, v16, v16 {qp} row_mask:0xf bank_mask:0xf')
        a(f'v_add_f32_dpp v18, v18, v18 {qp} row_mask:0xf bank_mask:0xf')
    inv = 0x3b124925
    a(f'v_mul_f32 v16, {inv:#x}, v16')
    a(f'v_mul_f32 v18, {inv:#x}, v18')
    a('v_fma_f32 v18, -v16, v16, v18')
    a('v_max_f32 v18, 0, v18')
    a('v_cvt_pk_bf16_f32 v17, -v16, -v16')
    rb16(a, 18, 18)
    a(f'ds_write_b16 v13, v17 offset:{MO}')
    a('v_add_f32 v18, 0x3727c5ac, v18')
    rb16(a, 18, 18)
    a('v_sqrt_f32 v18, v18')
    rb16(a, 18, 18)
    a('v_rcp_f32 v18, v18')
    a(f'ds_write_b32 v12, v18 offset:{RO}')
    a('s_waitcnt lgkmcnt(0)')
    a('s_barrier')
    a('s_cmp_eq_u32 s22, 7')
    a('s_cbranch_scc1 K0_END')
    for ks in range(2):
        for h in range(2):
            a(f'ds_read_b128 v[{20+8*ks+4*h}:{23+8*ks+4*h}], v14 offset:{RO+128*ks+16*h}')
    for ks in range(2):
        a(f'ds_read_b128 v[{36+4*ks}:{39+4*ks}], v15 offset:{MO+64*ks}')
    for ks in range(2):
        for t in range(4):
            for h in range(2):
                b = 44 + 8 * t + 4 * ks + 2 * h
                a(f'ds_read_b64_tr_b16 v[{b}:{b+1}], v8 offset:{ks*32*XS + h*4*XS + t*56}')
        if ks == 0:
            a('s_waitcnt lgkmcnt(10)')
            for p in range(8):
                a(f'v_pk_mul_f32 v[{CT+2*p}:{CT+2*p+1}], v[{CT+2*p}:{CT+2*p+1}], v[{20+2*p}:{21+2*p}]')
    for p in range(8):
        a(f'v_cvt_pk_bf16_f32 v{20+p}, v{CT+2*p}, v{CT+2*p+1}')
    a('s_waitcnt lgkmcnt(8)')
    a('v_mfma_f32_16x16x32_bf16 v[28:31], v[20:23], v[36:39], 0')
    a('v_mfma_f32_16x16x32_bf16 v[28:31], v[24:27], v[40:43], v[28:31]')
    DT = 80
    for t in range(4):
        a(f'v_mfma_f32_16x16x32_bf16 v[{DT+4*t}:{DT+4*t+3}], v[20:23], v[{44+8*t}:{47+8*t}], v[28:31]')
    a('s_waitcnt lgkmcnt(0)')
    for t in range(4):
        a(f'v_mfma_f32_16x16x32_bf16 v[{DT+4*t}:{DT+4*t+3}], v[24:27], v[{48+8*t}:{51+8*t}], v[{DT+4*t}:{DT+4*t+3}]')
    for i in range(4):
        a(f'v_cvt_pk_bf16_f32 v{104+2*i}, v{DT+i}, v{DT+4+i}')
        a(f'v_cvt_pk_bf16_f32 v{105+2*i}, v{DT+8+i}, v{DT+12+i}')
    a('buffer_store_dwordx4 v[104:107], v11, s[12:15], s26 offen')
    a('buffer_store_dwordx4 v[108:111], v11, s[12:15], s27 offen')
    if stamps:
        a('s_waitcnt vmcnt(0)')
        stamp(a, 0, 2, 12, stamps, tmp_v=TV)
    a('s_endpgm')
    a.label('K0_B')
    a(f's_cmp_ge_u32 s2, {K0_B0 + K0_NB}')
    a('s_cbranch_scc1 K0_C')
    a(f's_sub_u32 s20, s2, {K0_B0}')
    a('v_lshrrev_b32 v4, 3, v0')
    a('v_lshlrev_b32 v5, 1, v3')
    a('v_and_b32 v6, 7, v0')
    a('v_xor_b32 v6, v6, v5')
    a('v_mul_u32_u24 v4, 5376, v4')
    a('v_lshl_add_u32 v4, v6, 4, v4')
    a('s_lshl_b32 s22, s20, 7')
    a(f's_mul_i32 s23, s3, {56*5376}')
    a('s_add_u32 s23, s23, s22')
    a(f's_mul_i32 s24, s3, {7*1024}')
    a('s_mov_b32 m0, s24')
    a('s_lshl_b32 s25, s3, 8')
    a('v_lshl_add_u32 v7, v0, 2, s25')
    a('s_waitcnt lgkmcnt(0)')
    if 'KA' in exp: a('s_memrealtime s[94:95]')
    srd(a, 8, 18, NB_WMOD)
    srd(a, 28, 16, 896)
    a('buffer_load_dword v8, v7, s[28:31], 0 offen')
    for r in range(7):
        a('buffer_load_dwordx4 v4, s[8:11], s23 offen nt lds')
        if r < 6:
            a('s_add_u32 m0, m0, 1024')
            a(f's_add_u32 s23, s23, {8*5376}')
    srd(a, 12, 6, WS_SIZE)
    stamp(a, 0, 0, 12, stamps, tmp_v=TV)
    if 'KA' in exp:
        a('v_mov_b32 v120, s92'); a('v_mov_b32 v121, s94')
        a('buffer_store_dword v120, v122, s[12:15], 0 offen offset:24')
        a('buffer_store_dword v121, v122, s[12:15], 0 offen offset:32')
    a('s_mul_i32 s21, s20, 37')
    a('s_lshr_b32 s21, s21, 8')
    SO = 57344
    a('v_lshrrev_b32 v10, 2, v0')
    a('v_lshrrev_b32 v11, 3, v0')
    a('v_xor_b32 v11, s3, v11')
    a('v_and_b32 v11, 3, v11')
    a('v_lshlrev_b32 v10, 7, v10')
    a('v_lshl_add_u32 v10, v11, 5, v10')
    a('v_and_b32 v11, 3, v0')
    a('v_lshl_add_u32 v10, v11, 3, v10')
    a('v_lshlrev_b32 v11, 3, v3')
    a('s_mul_i32 s24, s21, 448')
    a('s_lshl_b32 s25, s20, 6')
    a('s_sub_u32 s25, s25, s24')
    a('s_lshl_b32 s26, s3, 4')
    a('s_add_u32 s25, s25, s26')
    a('v_add_u32 v12, s25, v2')
    a('v_mul_u32_u24 v13, 2341, v12')
    a('v_lshrrev_b32 v13, 16, v13')
    a('v_mul_u32_u24 v14, 28, v13')
    a('v_sub_u32 v14, v12, v14')
    a('v_lshl_add_u32 v13, v14, 4, v13')
    a('s_cmp_lt_u32 s21, 3')
    a('s_cselect_b64 vcc, -1, 0')
    a('v_cndmask_b32 v12, v12, v13, vcc')
    a('v_add_u32 v12, s24, v12')
    a('v_lshlrev_b32 v12, 2, v12')
    a(f'v_mov_b32 v13, {OOB:#x}')
    a('v_cmp_gt_u32 vcc, 16, v0')
    a('v_cndmask_b32 v12, v13, v12, vcc')
    a('s_mov_b32 s26, 0')
    a('s_mov_b32 s27, 1.0')
    a('s_cmp_eq_u32 s21, 1')
    a('s_cselect_b32 s26, 1.0, s26')
    a('s_cmp_eq_u32 s21, 4')
    a('s_cselect_b32 s26, 1.0, s26')
    a('s_cmp_eq_u32 s21, 0')
    a('s_cselect_b32 s27, 0x45000000, s27')
    a('s_cmp_eq_u32 s21, 2')
    sc = struct.unpack('<I', struct.pack('<f', 2.0 / (S * D)))[0]
    a(f's_cselect_b32 s27, {sc:#x}, s27')
    a(f's_waitcnt vmcnt({7+nst})')
    a('v_lshlrev_b32 v9, 16, v8')
    a('v_and_b32 v8, 0xffff0000, v8')
    for r in (8, 9):
        a(f'v_mul_f32 v{r+6}, 0xbfb8aa3b, v{r}')
        a(f'v_exp_f32 v{r+6}, v{r+6}')
        a(f'v_add_f32 v{r+6}, 1.0, v{r+6}')
        a(f'v_rcp_f32 v{r+6}, v{r+6}')
        a(f'v_mul_f32 v{r}, v{r}, v{r+6}')
    a('v_cvt_pk_bf16_f32 v9, v9, v8')
    a(f'ds_write_b32 v7, v9 offset:{SO}')
    a('s_waitcnt vmcnt(0) lgkmcnt(0)')
    a('s_barrier')
    a('s_cmp_ge_u32 s3, 4')
    a('s_cbranch_scc1 K0_END')
    stamp(a, 0, 1, 12, stamps, tmp_v=TV)
    def rd(ks, base):
        a(f'ds_read_b64 v[{base}:{base+1}], v11 offset:{SO + 64*ks}')
        a(f'ds_read_b64 v[{base+2}:{base+3}], v11 offset:{SO + 64*ks + 32}')
        a(f'ds_read_b64_tr_b16 v[{base+4}:{base+5}], v10 offset:{4096*ks}')
        a(f'ds_read_b64_tr_b16 v[{base+6}:{base+7}], v10 offset:{4096*ks + 2048}')
    base = lambda ks: 20 + 8 * (ks % 8)
    for ks in range(3): rd(ks, base(ks))
    for ks in range(14):
        if ks + 3 < 14:
            rd(ks + 3, base(ks + 3))
            a('s_waitcnt lgkmcnt(12)')
        else:
            a(f's_waitcnt lgkmcnt({4*(13-ks)})')
        b = base(ks)
        c = '0' if ks == 0 else 'v[16:19]'
        a(f'v_mfma_f32_16x16x32_bf16 v[16:19], v[{b}:{b+3}], v[{b+4}:{b+7}], {c}')
    rb16(a, 16, 16)
    a('v_add_f32 v16, s26, v16')
    rb16(a, 16, 16)
    a('v_mul_f32 v16, s27, v16')
    a('buffer_store_dword v16, v12, s[12:15], 0 offen')
    if stamps:
        a('s_waitcnt vmcnt(0)')
        stamp(a, 0, 2, 12, stamps, tmp_v=TV)
    a('s_endpgm')
    a.label('K0_C')
    a(f's_cmp_lt_u32 s2, {K0_C0}')
    a('s_cbranch_scc1 K0_Z')
    a(f's_sub_u32 s20, s2, {K0_C0}')
    a('s_lshr_b32 s21, s20, 3')
    a('s_lshl_b32 s21, s21, 13')
    a('s_lshl_b32 s22, s3, 10')
    a('s_add_u32 s21, s21, s22')
    a('s_add_u32 s21, s21, k1_kernel-k0_kernel')
    a('s_mov_b32 s38, CODE_END-k0_kernel')
    a('buffer_load_dwordx4 v[116:119], v1, s[36:39], s21 offen')
    w_rows(a, 's20', 's3', 4, 6, 7, 24)
    a('s_lshl_b32 s28, s3, 12')
    a('s_mov_b32 m0, s28')
    a('s_waitcnt lgkmcnt(0)')
    if 'KA' in exp: a('s_memrealtime s[94:95]')
    srd(a, 40, 32, NB_W)
    srd(a, 44, 34, NB_W)
    for kk in range(2):
        for arr in range(2):
            a(f'buffer_load_dwordx4 v{4+kk}, s[{40+4*arr}:{43+4*arr}], 0 offen nt lds')
            if not (kk and arr): a('s_add_u32 m0, m0, 1024')
    srd(a, 12, 6, WS_SIZE)
    stamp(a, 0, 0, 12, stamps, tmp_v=TV)
    if 'KA' in exp:
        a('v_mov_b32 v120, s92'); a('v_mov_b32 v121, s94')
        a('buffer_store_dword v120, v122, s[12:15], 0 offen offset:24')
        a('buffer_store_dword v121, v122, s[12:15], 0 offen offset:32')
    WA, WW, PK = 24, 40, 80
    a('v_lshlrev_b32 v8, 7, v3')
    a('v_lshl_add_u32 v8, v2, 1, v8')
    a('v_sub_u32 v9, 288, v8')
    a('v_max_i32 v9, 0, v9')
    a('v_cmp_eq_u32 vcc, 3, v3')
    a('v_add_u32 v11, 64, v8')
    a('v_sub_u32 v12, 832, v8')
    a('v_cndmask_b32 v11, v11, v12, vcc')
    a('v_add_u32 v12, 96, v8')
    a('v_sub_u32 v13, 800, v8')
    a('v_cndmask_b32 v12, v12, v13, vcc')
    a('v_mov_b32 v13, 0')
    a('v_bfrev_b32 v14, 1')
    a('v_cndmask_b32 v20, v13, v14, vcc')
    a('v_cmp_eq_u32 s[48:49], 0, v0')
    a('v_cmp_eq_u32 s[50:51], 48, v0')
    a('v_cndmask_b32 v21, v13, v14, s[48:49]')
    for kk in range(2):
        w = WA + 5 * kk
        a(f's_and_b32 s29, s{24+2*kk}, 15')
        a('s_add_u32 s29, s29, s28')
        a(f's_and_b32 s30, s{25+2*kk}, 15')
        a('s_add_u32 s30, s30, s28')
        a('s_add_u32 s30, s30, 512')
        a('v_mov_b32 v15, s29')
        a('v_mov_b32 v16, s30')
        a('v_cndmask_b32 v17, v15, v16, vcc')
        a(f'v_add_u32 v{w+1}, v17, v11')
        a(f'v_add_u32 v{w+2}, v17, v12')
        a('v_add_u32 v15, 448, v15')
        a(f'v_cndmask_b32 v{w+4}, v15, v16, s[48:49]')
        a(f'v_add_u32 v{w}, s29, v8')
        a(f'v_add_u32 v{w+3}, s30, v9')
    a('s_lshl_b32 s29, s20, 15')
    a('s_add_u32 s29, s29, s28')
    a(f's_add_u32 s29, s29, {WS_WEFF:#x}')
    a(f's_waitcnt vmcnt({nst})')
    for kk in range(2):
        w = WA + 5 * kk
        for arr in range(2):
            b = WW + 18 * kk + 9 * arr; of = 2048 * kk + 1024 * arr
            a(f'ds_read_u16 v{b+0}, v{w} offset:{of}')
            a(f'ds_read_u16 v{b+1}, v{w} offset:{of+32}')
            a(f'ds_read_u16 v{b+2}, v{w+1} offset:{of}')
            a(f'ds_read_u16 v{b+3}, v{w+2} offset:{of}')
            for i in range(4):
                a(f'ds_read_u16 v{b+4+i}, v{w+3} offset:{of+32*(3-i)}')
            a(f'ds_read_u16 v{b+8}, v{w+4} offset:{of}')
    for kk in range(2):
        a(f's_waitcnt lgkmcnt({15 if kk == 0 else 0})')
        b = WW + 18 * kk; o = PK + 8 * kk
        for i in range(8): a(f'v_lshl_or_b32 v{o+i}, v{b+9+i}, 16, v{b+i}')
        a(f'v_lshl_or_b32 v15, v{b+17}, 16, v{b+8}')
        for i in range(4, 8): a(f'v_xor_b32 v{o+i}, v14, v{o+i}')
        a(f'buffer_store_dwordx4 v[{o+4}:{o+7}], v1, s[12:15], s29 offen offset:{2048*kk+1024} sc1')
        for i in (2, 3): a(f'v_xor_b32 v{o+i}, v20, v{o+i}')
        a('v_xor_b32 v15, v21, v15')
        a('v_lshlrev_b32 v16, 16, v15')
        a('v_and_b32 v17, 0xffff0000, v15')
        for i, m in ((0, 's[48:49]'), (2, 's[50:51]')):
            a(f'v_lshlrev_b32 v18, 16, v{o+i}')
            a(f'v_and_b32 v19, 0xffff0000, v{o+i}')
            a('v_pk_add_f32 v[18:19], v[18:19], v[16:17]')
            a('v_pk_mul_f32 v[18:19], v[18:19], 0.5 op_sel_hi:[1,0]')
            a('v_cvt_pk_bf16_f32 v18, v18, v19')
            a(f'v_cndmask_b32 v{o+i}, v{o+i}, v18, {m}')
        a(f'buffer_store_dwordx4 v[{o}:{o+3}], v1, s[12:15], s29 offen offset:{2048*kk} sc1')
    if stamps:
        a('s_waitcnt vmcnt(0)')
        stamp(a, 0, 2, 12, stamps, tmp_v=TV)
    a('s_endpgm')
    a.label('K0_Z')
    a(f's_cmp_lg_u32 s2, {K0_B0 + K0_NB}')
    a('s_cbranch_scc1 K0_END')
    a('s_waitcnt lgkmcnt(0)')
    srd(a, 12, 6, WS_SIZE)
    for q in range(4): a(f'v_mov_b32 v{4+q}, 0')
    a('s_mul_i32 s20, s3, 3072')
    a(f's_add_u32 s20, s20, {WS_FLAGS:#x}')
    for q in range(3): a(f'buffer_store_dwordx4 v[4:7], v1, s[12:15], s20 offen offset:{1024*q} sc1')
    if 'RG' in exp:
        a('s_cmp_lg_u32 s3, 0')
        a('s_cbranch_scc1 K0_END')
        a('s_memrealtime s[20:21]')
        a('s_waitcnt lgkmcnt(0)')
        a('s_bfe_u32 s20, s20, 0x40002')
        a('s_add_u32 s20, s20, 4')
        a('s_lshl_b32 s20, s20, 23')
        a('v_mov_b32 v8, s20')
        a(f'v_mov_b32 v9, {WS_REG:#x}')
        a('buffer_store_dword v8, v9, s[12:15], 0 offen sc1')
    a.label('K0_END')
    a('s_endpgm')
    return a
```

```python
from asmlib import *
from layout import *
from k0 import srd, rb16, stamp, w_rows
from tables import TB_FB, TB_FA, TB_TWI, TB_TWF

MODL = 16384
X1 = MODL + 8192
M2L = X1 + 256 * 144
UL = M2L + 4096
X2 = UL
K1_LDS = UL + 57344
ZERO = TB_TWF + 7 * 512

def inter(a, mf, va):
    n, k = len(mf), len(va)
    for i, m in enumerate(mf):
        a(m)
        for x in va[i * k // n:(i + 1) * k // n]: a(x)

def gen_k1(stamps=False, exp=''):
    if 'K1=' not in exp: exp += ',HU,HW,H2'
    EARLY = 4 if 'k1e' in exp else 0
    a = Asm()
    TV = (250, 251, 252)
    nst = 1 if stamps else 0
    a.label('k1_kernel')
    a(f's_cmp_ge_u32 s2, {K1_GRID}')
    a('s_cbranch_scc1 K1_END')
    a('s_load_dwordx2 s[16:17], s[0:1], 88')
    a('s_load_dwordx4 s[36:39], s[0:1], 32')
    a('s_load_dwordx2 s[40:41], s[0:1], 48')
    a('s_load_dwordx2 s[4:5], s[0:1], 0')
    a('v_lshrrev_b32 v1, 6, v0')
    a('v_and_b32 v0, 63, v0')
    a('v_readfirstlane_b32 s3, v1')
    a('v_lshlrev_b32 v1, 4, v0')
    a('v_and_b32 v2, 15, v0')
    a('v_lshrrev_b32 v3, 4, v0')
    a(f's_cmp_ge_u32 s2, {K1_NF}')
    a('s_cbranch_scc1 K1_PREP')
    if 'noF' in exp: a('s_endpgm')
    a('s_getpc_b64 s[42:43]')
    a.label('K1_PC')
    a('s_add_u32 s42, s42, k1_tbl-K1_PC')
    a('s_addc_u32 s43, s43, 0')
    srd(a, 44, 42, 16384)
    a('s_lshl_b32 s18, s3, 11')
    a('s_mov_b32 m0, s18')
    a('s_and_b32 s19, s2, 7')
    a('s_lshr_b32 s21, s2, 4')
    a('buffer_load_dwordx4 v1, s[44:47], s18 offen lds')
    a('buffer_load_dwordx4 v1, s[44:47], s18 offen offset:1024 lds')
    a('s_lshl_b32 s21, s21, 3')
    a('s_add_u32 s19, s19, s21')
    a('s_bfe_u32 s48, s2, 0x10003')
    a('s_sub_u32 s21, 64, s19')
    a('s_cmp_eq_u32 s19, 0')
    a('s_cselect_b32 s21, 32, s21')
    a('s_cmp_eq_u32 s48, 0')
    a('s_cselect_b32 s21, s19, s21')
    a('s_cmp_eq_u32 s2, 64')
    a('s_cselect_b32 s2, 64, s21')
    a('s_and_b32 s19, s19, 31')
    a('s_and_b32 s25, s2, 63')
    a('s_cmp_gt_u32 s25, 32')
    a('s_cselect_b32 s20, -1.0, 1.0')
    a('s_cmp_eq_u32 s19, 0')
    a('s_cselect_b32 s20, 0, s20')
    a('s_mul_i32 s19, s19, 57344')
    a('s_lshl_b32 s21, s3, 13')
    a('s_add_u32 s19, s19, s21')
    a(f's_add_u32 s19, s19, {WS_U:#x}')
    a(f's_add_u32 s23, s21, {UL}')
    a('s_lshl_b32 s48, s48, 12')
    a('s_xor_b32 s49, s48, 4096')
    a('s_add_u32 s22, s19, s49')
    a('s_add_u32 s19, s19, s48')
    a('s_add_u32 m0, s23, s48')
    a('s_waitcnt lgkmcnt(0)')
    srd(a, 28, 16, WS_SIZE)
    stamp(a, 1, 0, 28, stamps, tmp_v=TV)
    a('s_cmp_eq_u32 s3, 7')
    a('s_cbranch_scc1 K1_NOU')
    for q in range(4): a(f'buffer_load_dwordx4 v1, s[28:31], s19 offen offset:{1024*q} lds')
    a('s_add_u32 m0, s23, s49')
    for q in range(4): a(f'buffer_load_dwordx4 v1, s[28:31], s22 offen offset:{1024*q} lds')
    a('s_branch K1_U1')
    a.label('K1_NOU')
    a(f's_mov_b32 m0, {MODL}')
    a('s_mov_b32 s24, 4096')
    for q in range(4): a(f'buffer_load_dwordx4 v1, s[28:31], 0 offen offset:{1024*q} lds')
    a(f's_mov_b32 m0, {MODL+4096}')
    for q in range(2): a(f'buffer_load_dwordx4 v1, s[28:31], s24 offen offset:{1024*q} lds')
    a.label('K1_U1')
    UA, M2, CA, SA, GA, M2I, FA, TWF, FB, TWI, WW, DD, WP = 32, 64, 80, 96, 112, 116, 124, 132, 140, 164, 180, 216, 8
    a('v_lshlrev_b32 v13, 7, v2')
    a('v_add_u32 v13, s2, v13')
    a('s_lshr_b32 s27, s3, 1')
    a('s_lshl_b32 s27, s27, 3')
    a('s_and_b32 s21, s3, 1')
    a('s_add_u32 s27, s27, s21')
    a('v_lshl_add_u32 v14, v3, 1, s27')
    a('v_mul_u32_u24 v13, v13, v14')
    a('v_cvt_f32_u32 v13, v13')
    a('v_mul_f32 v13, 0x3a000000, v13')
    a('v_sin_f32 v17, v13')
    a('v_cos_f32 v18, v13')
    a('s_lshr_b32 s27, s3, 2')
    a('s_lshl_b32 s27, s27, 10')
    a('s_and_b32 s21, s3, 3')
    a('s_lshl_b32 s21, s21, 2')
    a('s_add_u32 s27, s27, s21')
    a('v_add_u32 v14, s27, v1')
    a('v_mul_f32 v19, s20, v17')
    a('v_mul_f32 v21, s20, v18')
    a('v_cvt_pk_bf16_f32 v15, v18, v19')
    a('v_cvt_pk_bf16_f32 v16, -v17, v21')
    a(f'ds_write_b32 v14, v15 offset:{M2L}')
    a(f'ds_write_b32 v14, v16 offset:{M2L+2048}')
    a('v_lshrrev_b32 v8, 3, v0')
    a('v_lshlrev_b32 v9, 8, v8')
    a('v_and_b32 v10, 3, v0')
    a('v_lshl_add_u32 v9, v10, 6, v9')
    a('v_bfe_u32 v10, v0, 2, 1')
    a('s_cmp_eq_u32 s25, 32')
    a('s_cselect_b32 s27, 1, 0')
    a('v_xor_b32 v10, s27, v10')
    a('v_lshl_add_u32 v9, v10, 3, v9')
    a('v_add_u32 v9, s23, v9')
    a('v_and_b32 v8, 3, v8')
    a('v_lshl_add_u32 v4, v8, 4, v9')
    for e in range(1, 4): a(f'v_xor_b32 v{4+e}, {16*e}, v4')
    a('s_lshl_b32 s27, s2, 15')
    a('s_lshl_b32 s21, s3, 12')
    a('s_add_u32 s27, s27, s21')
    a(f's_add_u32 s50, s27, {WS_WEFF:#x}')
    late = []
    late += [f'buffer_load_dwordx4 v[{WP+4*q}:{WP+4*q+3}], v1, s[28:31], s50 offen offset:{1024*q}' for q in range(4)]
    a('s_lshl_b32 s27, s3, 9')
    a('v_lshl_add_u32 v26, v2, 5, s27')
    a('s_lshl_b32 s27, s3, 8')
    a(f's_add_u32 s27, s27, {MODL}')
    a('v_lshl_add_u32 v28, v3, 4, s27')
    a('v_lshl_add_u32 v30, v2, 2, s27')
    a('s_cmp_eq_u32 s2, 0')
    a('s_cselect_b32 s27, 0, 99')
    a('v_cmp_eq_u32 vcc, s27, v2')
    a(f'v_mov_b32 v29, {ZERO}')
    a('v_lshl_add_u32 v24, v3, 6, v2')
    a('v_cndmask_b32 v29, v29, v28, vcc')
    a('v_mul_u32_u24 v24, 144, v24')
    a('s_lshl_b32 s27, s3, 4')
    a(f's_add_u32 s27, s27, {X1}')
    a('v_add_u32 v24, s27, v24')
    a('v_mul_u32_u24 v25, 144, v2')
    a('v_lshl_add_u32 v25, v3, 4, v25')
    a(f's_mul_i32 s27, s3, {32*144}')
    a(f's_add_u32 s27, s27, {X1}')
    a('v_add_u32 v25, s27, v25')
    if EARLY:
        a(f's_waitcnt vmcnt({EARLY})')
        for x in late: a(x)
        a('s_waitcnt vmcnt(4)')
    else:
        a('s_waitcnt vmcnt(0)')
        for x in late: a(x)
    a('s_cmp_eq_u32 s3, 7')
    a('s_cbranch_scc1 K1_W7')
    for d2l in range(4):
        for ks in range(2):
            for h in range(2):
                b = UA + 8 * d2l + 4 * ks + 2 * h
                a(f'ds_read_b64_tr_b16 v[{b}:{b+1}], v{4+d2l} offset:{4096*ks+2048*h}')
    a('s_waitcnt lgkmcnt(15)')
    a('s_barrier')
    stamp(a, 1, 1, 28, stamps, tmp_v=TV)
    def phase1(d2l):
        o = []
        for ks in range(2):
            for c in range(2):
                d = DD + 8 * d2l + 4 * c
                cc = '0' if ks == 0 else f'v[{d}:{d+3}]'
                o.append(f'v_mfma_f32_16x16x32_bf16 v[{d}:{d+3}], v[{UA+8*d2l+4*ks}:{UA+8*d2l+4*ks+3}], v[{M2+8*c+4*ks}:{M2+8*c+4*ks+3}], {cc}')
        return o
    VA = UA
    def modul(d2l):
        o = []; d = DD + 8 * d2l
        for p in range(2):
            o.append(f'v_pk_fma_f32 v[{d+2*p}:{d+2*p+1}], v[{d+2*p}:{d+2*p+1}], v[{CA+4*d2l+2*p}:{CA+4*d2l+2*p+1}], v[{SA+4*d2l+2*p}:{SA+4*d2l+2*p+1}]')
            o.append(f'v_pk_mul_f32 v[{d+4+2*p}:{d+5+2*p}], v[{d+4+2*p}:{d+5+2*p}], v[{CA+4*d2l+2*p}:{CA+4*d2l+2*p+1}]')
        return o
    def cvt4(dst, src):
        return [f'v_cvt_pk_bf16_f32 v{dst+p}, v{src+2*p}, v{src+2*p+1}' for p in range(4)]
    def dft16(src, d):
        return [f'v_mfma_f32_16x16x32_bf16 v[{d}:{d+3}], v[{src}:{src+3}], v[{FA+2}:{FA+5}], 0',
                f'v_mfma_f32_16x16x32_bf16 v[{d+4}:{d+7}], v[{src}:{src+3}], v[{FA}:{FA+3}], 0']
    def cmulc(d, e, c_, s_, selc, sels):
        o = []
        for p in range(2):
            re = f'v[{d+2*p}:{d+2*p+1}]'; im = f'v[{d+4+2*p}:{d+5+2*p}]'
            ore = f'v[{e+2*p}:{e+2*p+1}]'; oim = f'v[{e+4+2*p}:{e+5+2*p}]'
            o.append(f'v_pk_mul_f32 {ore}, {im}, {s_(p)} {sels}')
            o.append(f'v_pk_mul_f32 {oim}, {re}, {s_(p)} {sels}')
            o.append(f'v_pk_fma_f32 {ore}, {re}, {c_(p)}, {ore} {selc}')
            o.append(f'v_pk_fma_f32 {oim}, {im}, {c_(p)}, {oim} {selc} neg_lo:[0,0,1] neg_hi:[0,0,1]')
        return o
    E = 64
    P = 96
    fbread = [f'ds_read_b128 v[{FB+4*q}:{FB+4*q+3}], v1 offset:{TB_FB+1024*q}' for q in range(6)]
    for q in range(4): a(f'ds_read_b128 v[{M2+4*q}:{M2+4*q+3}], v1 offset:{M2L+1024*q}')
    rd = []
    for d2l in range(4):
        rd.append(f'ds_read_b128 v[{CA+4*d2l}:{CA+4*d2l+3}], v28 offset:{1792+64*d2l}')
        rd.append(f'ds_read_b128 v[{SA+4*d2l}:{SA+4*d2l+3}], v29 offset:{64*d2l}')
    for q in range(2): rd.append(f'ds_read_b128 v[{FA+4*q}:{FA+4*q+3}], v1 offset:{TB_FA+1024*q}')
    for q in range(2): rd.append(f'ds_read_b128 v[{TWF+4*q}:{TWF+4*q+3}], v26 offset:{TB_TWF+16*q}')
    for d2l in range(4): rd.append(f'ds_read_b32 v{GA+d2l}, v30 offset:{3584+64*d2l}')
    rd += fbread
    rd += ['v_lshrrev_b32 v27, 2, v2', 'v_mul_u32_u24 v27, 28672, v27', 'v_and_b32 v31, 3, v2', 'v_lshl_add_u32 v27, v31, 4, v27',
           f'v_mul_u32_u24 v31, {4*114688}, v3', 'v_add_u32 v27, v27, v31',
           'v_lshlrev_b32 v28, 6, v2', 'v_lshl_add_u32 v28, v3, 4, v28', 's_mul_i32 s27, s3, 4160', f's_add_u32 s27, s27, {X2}', 'v_add_u32 v28, s27, v28']
    a('s_waitcnt lgkmcnt(0)')
    inter(a, phase1(0) + phase1(1) + phase1(2) + phase1(3), rd)
    a('s_waitcnt lgkmcnt(14)')
    for d2l in range(4):
        for x in modul(d2l): a(x)
    a('s_waitcnt lgkmcnt(10)')
    for x in cvt4(VA, DD): a(x)
    for d2l in range(4):
        inter(a, dft16(VA + 8 * d2l, DD + 8 * d2l), cvt4(VA + 8 * d2l + 8, DD + 8 * d2l + 8) if d2l < 3 else
              ['s_lshr_b32 s24, s2, 1', 's_and_b32 s24, s24, 31', 's_and_b32 s27, s2, 1', 's_lshl_b32 s27, s27, 5', 's_add_u32 s24, s24, s27',
               's_lshl_b32 s24, s24, 6', 's_lshl_b32 s27, s3, 12', 's_add_u32 s24, s24, s27'])
    for d2l in range(4):
        tw = f'v[{TWF+2*d2l}:{TWF+2*d2l+1}]'
        for x in cmulc(DD + 8 * d2l, E + 8 * d2l, lambda p: tw, lambda p: tw, 'op_sel_hi:[1,0,1]', 'op_sel:[0,1] op_sel_hi:[1,1]'): a(x)
    for i in range(4):
        a(f'v_cvt_pk_bf16_f32 v{P+4*i+0}, v{E+i}, v{E+8+i}')
        a(f'v_cvt_pk_bf16_f32 v{P+4*i+1}, v{E+16+i}, v{E+24+i}')
        a(f'v_cvt_pk_bf16_f32 v{P+4*i+2}, v{E+4+i}, v{E+12+i}')
        a(f'v_cvt_pk_bf16_f32 v{P+4*i+3}, v{E+20+i}, v{E+28+i}')
        a(f'ds_write_b128 v24, v[{P+4*i}:{P+4*i+3}] offset:{2304*i}')
    a('s_branch K1_J1')
    a.label('K1_W7')
    a('s_waitcnt lgkmcnt(0)')
    a('s_barrier')
    for q in range(4): a(f'v_mov_b32 v{P+q}, 0')
    a(f'v_mov_b32 v27, {OOB:#x}')
    for i in range(4): a(f'ds_write_b128 v24, v[{P}:{P+3}] offset:{2304*i}')
    for x in fbread: a(x)
    a.label('K1_J1')
    a('s_waitcnt lgkmcnt(0)')
    a('s_barrier')
    stamp(a, 1, 2, 28, stamps, tmp_v=TV)
    BX = 32
    for kk in range(2):
        for ks in range(2):
            b = BX + 8 * kk + 4 * ks
            a(f'ds_read_b128 v[{b}:{b+3}], v25 offset:{2304*kk+64*ks}')
    for q in range(4): a(f'ds_read_b128 v[{TWI+4*q}:{TWI+4*q+3}], v1 offset:{TB_TWI+1024*q}')
    def dft28(kk, data, data_is_a):
        o = []
        for ks in range(2):
            for t in range(2):
                for c in range(2):
                    d = DD + 16 * kk + 8 * t + 4 * c
                    f = FB + 6 * (2 * t + ks) + (2 if c == 0 else 0)
                    b = data + 8 * kk + 4 * ks
                    cc = '0' if ks == 0 else f'v[{d}:{d+3}]'
                    A, B = (b, f) if data_is_a else (f, b)
                    o.append(f'v_mfma_f32_16x16x32_bf16 v[{d}:{d+3}], v[{A}:{A+3}], v[{B}:{B+3}], {cc}')
        return o
    def wunp(kk):
        o = []
        for t in range(2):
            for i in range(4):
                src = WP + 8 * kk + 4 * t + i; w = WW + 16 * kk + 8 * t
                o.append(f'v_lshlrev_b32 v{w+i}, 16, v{src}')
                o.append(f'v_and_b32 v{w+4+i}, s21, v{src}')
        return o
    YA = 48
    def wmul(kk):
        o = []
        for t in range(2):
            d = DD + 16 * kk + 8 * t; e = E + 16 * kk + 8 * t; wr = WW + 16 * kk + 8 * t; wi = wr + 4
            for p in range(2):
                xr = f'v[{d+2*p}:{d+2*p+1}]'; xi = f'v[{d+4+2*p}:{d+5+2*p}]'
                Wr = f'v[{wr+2*p}:{wr+2*p+1}]'; Wi = f'v[{wi+2*p}:{wi+2*p+1}]'
                ore = f'v[{e+2*p}:{e+2*p+1}]'; oim = f'v[{e+4+2*p}:{e+5+2*p}]'
                o.append(f'v_pk_mul_f32 {ore}, {xi}, {Wi}')
                o.append(f'v_pk_mul_f32 {oim}, {xr}, {Wi}')
                o.append(f'v_pk_fma_f32 {ore}, {xr}, {Wr}, {ore} neg_lo:[0,0,1] neg_hi:[0,0,1]')
                o.append(f'v_pk_fma_f32 {oim}, {xi}, {Wr}, {oim} neg_lo:[1,0,1] neg_hi:[1,0,1]')
        return o
    m2i = ['v_lshlrev_b32 v12, 9, v3', 'v_add_u32 v12, s2, v12', 'v_mul_u32_u24 v12, v12, v2', 'v_cvt_f32_u32 v12, v12',
           'v_mul_f32 v12, 0x3a000000, v12', 'v_cvt_f32_u32 v31, v2', 'v_mul_f32 v31, 0x3d800000, v31']
    for j in range(4):
        m2i += [f'v_sin_f32 v{4+j}, v12', f'v_cos_f32 v{8+j}, v12']
        if j < 3: m2i.append('v_add_f32 v12, v12, v31')
    m2i2 = [f'v_cvt_pk_bf16_f32 v{M2I+0}, -v4, -v5', f'v_cvt_pk_bf16_f32 v{M2I+1}, -v6, -v7', f'v_cvt_pk_bf16_f32 v{M2I+2}, v8, v9',
            f'v_cvt_pk_bf16_f32 v{M2I+3}, v10, v11', f'v_cvt_pk_bf16_f32 v{M2I+4}, v4, v5', f'v_cvt_pk_bf16_f32 v{M2I+5}, v6, v7']
    a('s_mov_b32 s21, 0xffff0000')
    a('v_mul_u32_u24 v26, 1040, v2')
    a('v_lshl_add_u32 v26, v3, 4, v26')
    a('s_lshl_b32 s27, s3, 7')
    a(f's_add_u32 s27, s27, {X2}')
    a('v_add_u32 v26, s27, v26')
    a(f's_waitcnt vmcnt({nst}) lgkmcnt(6)')
    inter(a, dft28(0, BX, False), wunp(0))
    a('s_waitcnt lgkmcnt(4)')
    inter(a, dft28(1, BX, False), wunp(1))
    for x in wmul(0) + wmul(1): a(x)
    for x in cvt4(YA, E) + cvt4(YA + 4, E + 8): a(x)
    inter(a, dft28(0, YA, True), cvt4(YA + 8, E + 16) + cvt4(YA + 12, E + 24) + m2i[:7])
    inter(a, dft28(1, YA, True), m2i[7:])
    a('s_waitcnt lgkmcnt(0)')
    P2 = 32
    for kk in range(2):
        for t in range(2):
            c_ = lambda p: f'v[{TWI+8*t+2*p}:{TWI+8*t+2*p+1}]'
            s_ = lambda p: f'v[{TWI+8*t+4+2*p}:{TWI+8*t+5+2*p}]'
            e = E + 16 * kk + 8 * t; q = P2 + 8 * kk + 4 * t
            for x in cmulc(DD + 16 * kk + 8 * t, e, c_, s_, '', '') + cvt4(q, e): a(x)
            a(f'ds_write_b128 v26, v[{q}:{q+3}] offset:{16640*t+64*kk}')
    for x in m2i2: a(x)
    for i in range(4): a(f's_add_u32 s{60+i}, s24, {WS_TP + i*114688:#x}')
    a('s_waitcnt lgkmcnt(0)')
    a('s_barrier')
    a('s_cmp_eq_u32 s3, 7')
    a('s_cbranch_scc1 K1_END')
    stamp(a, 1, 3, 28, stamps, tmp_v=TV)
    ZA = 48
    for d2l in range(4):
        a(f'ds_read_b128 v[{ZA+4*d2l}:{ZA+4*d2l+3}], v28 offset:{1040*d2l}')
    ZB = 32
    def ph3(d2l):
        e = E + 8 * d2l
        return [f'v_mfma_f32_16x16x32_bf16 v[{e}:{e+3}], v[{M2I+2}:{M2I+5}], v[{ZB+4*d2l}:{ZB+4*d2l+3}], 0',
                f'v_mfma_f32_16x16x32_bf16 v[{e+4}:{e+7}], v[{M2I}:{M2I+3}], v[{ZB+4*d2l}:{ZB+4*d2l+3}], 0']
    def scl(d2l):
        e = E + 8 * d2l; gp = GA + (d2l & ~1)
        sel = 'op_sel_hi:[1,0]' if d2l % 2 == 0 else 'op_sel:[0,1] op_sel_hi:[1,1]'
        return [f'v_pk_mul_f32 v[{e+2*p}:{e+2*p+1}], v[{e+2*p}:{e+2*p+1}], v[{gp}:{gp+1}] {sel}' for p in range(4)]
    O = 48
    for d2l in range(4):
        a(f's_waitcnt lgkmcnt({3-d2l})')
        for x in dft16(ZA + 4 * d2l, DD + 8 * d2l): a(x)
    for x in cvt4(ZB, DD): a(x)
    for d2l in range(4):
        inter(a, ph3(d2l), cvt4(ZB + 4 * d2l + 4, DD + 8 * d2l + 8) if d2l < 3 else [])
    for d2l in range(4):
        for x in scl(d2l): a(x)
    a('s_cmp_eq_u32 s25, 0')
    a('s_cbranch_scc1 K1_SHORT')
    for i in range(4):
        a(f'v_cvt_pk_bf16_f32 v{O+4*i+0}, v{E+i}, v{E+8+i}')
        a(f'v_cvt_pk_bf16_f32 v{O+4*i+1}, v{E+16+i}, v{E+24+i}')
        a(f'v_cvt_pk_bf16_f32 v{O+4*i+2}, v{E+4+i}, v{E+12+i}')
        a(f'v_cvt_pk_bf16_f32 v{O+4*i+3}, v{E+20+i}, v{E+28+i}')
        a(f'buffer_store_dwordx4 v[{O+4*i}:{O+4*i+3}], v27, s[28:31], s{60+i} offen')
    if stamps:
        a('s_waitcnt vmcnt(0)')
        stamp(a, 1, 4, 28, stamps, tmp_v=TV)
    a('s_endpgm')
    a.label('K1_SHORT')
    a('s_lshr_b32 s24, s2, 3')
    a('v_add_u32 v27, s24, v27')
    for i in range(4):
        a(f'v_cvt_pk_bf16_f32 v{O+4*i+0}, v{E+i}, v{E+8+i}')
        a(f'v_cvt_pk_bf16_f32 v{O+4*i+1}, v{E+16+i}, v{E+24+i}')
        a(f'buffer_store_dwordx2 v[{O+4*i}:{O+4*i+1}], v27, s[28:31], s{60+i} offen')
    if stamps:
        a('s_waitcnt vmcnt(0)')
        stamp(a, 1, 4, 28, stamps, tmp_v=TV)
    a('s_endpgm')
    a.label('K1_PREP')
    if 'noP' in exp: a('s_endpgm')
    a(f's_cmp_lt_u32 s2, {K1_W0}')
    a('s_cbranch_scc1 K1_END')
    a('s_lshl_b32 s18, s3, 12')
    a('s_mov_b32 m0, s18')
    a('v_and_b32 v4, 3, v0')
    a('v_lshrrev_b32 v5, 2, v2')
    a('v_and_b32 v6, 1, v3')
    a('v_lshrrev_b32 v7, 5, v0')
    a('s_waitcnt lgkmcnt(0)')
    srd(a, 28, 16, WS_SIZE)
    if 'RG' in exp: a(f's_load_dword s55, s[16:17], {WS_REG:#x}')
    a(f's_cmp_ge_u32 s2, {K1_D0}')
    a('s_cbranch_scc1 K1_WD')
    a(f's_sub_u32 s19, s2, {K1_W0}')
    if 'HU' in exp:
        a('s_and_b32 s20, s19, -8')
        a('s_add_u32 s20, s20, s3')
        a('s_mul_i32 s21, s20, 147')
        a('s_lshr_b32 s21, s21, 12')
        a(f's_mul_i32 s21, s21, {8*57344 - 28*2048}')
        a('s_lshl_b32 s20, s20, 11')
        a('s_add_u32 s21, s21, s20')
        a('s_and_b32 s20, s19, 7')
        a('s_mul_i32 s20, s20, 57344')
        a('s_add_u32 s21, s21, s20')
        a(f's_add_u32 s21, s21, {WS_U:#x}')
        a('buffer_load_dwordx4 v[200:203], v1, s[28:31], s21 offen offset:1024')
        a('buffer_load_dwordx4 v[204:207], v1, s[28:31], s21 offen')
    XS, XB = 912, 40960
    srd(a, 12, 4, NB_X)
    a('s_lshr_b32 s50, s19, 2')
    a('s_and_b32 s51, s19, 3')
    a('s_lshr_b32 s20, s51, 1')
    a('s_lshl_b32 s20, s20, 5')
    a('s_and_b32 s21, s51, 1')
    a('s_add_u32 s20, s20, s21')
    a('s_lshr_b32 s21, s3, 2')
    a('s_lshl_b32 s21, s21, 6')
    a('s_add_u32 s20, s20, s21')
    a('s_and_b32 s21, s3, 3')
    a('s_lshl_b32 s21, s21, 3')
    a('s_add_u32 s20, s20, s21')
    a('s_lshl_b32 s20, s20, 4')
    a('s_add_u32 s20, s20, s50')
    a('s_mul_i32 s52, s20, 896')
    a('s_cmp_lt_u32 s19, 64')
    a('s_cselect_b32 s52, s52, 0')
    a('s_cselect_b32 s14, s14, 0')
    a('s_cselect_b32 s54, 1, 0')
    a(f's_mul_i32 s53, s3, {4*XS}')
    def xload():
        a(f's_add_u32 m0, s53, {XB}')
        a('s_mov_b32 exec_hi, 0x00ffffff')
        for r in range(4):
            a('buffer_load_dwordx4 v1, s[12:15], s52 offen nt lds')
            if r < 3:
                a(f's_add_u32 m0, m0, {XS}')
                a('s_add_u32 s52, s52, 28672')
        a('s_mov_b32 exec_hi, -1')
    a('s_cmp_ge_u32 s19, 56')
    a('s_cselect_b32 s20, 1, 0')
    a('s_cselect_b32 s8, s38, s36')
    a('s_cselect_b32 s9, s39, s37')
    a(f's_mov_b32 s10, {NB_WG:#x}')
    a('s_mov_b32 s11, 0x00020000')
    a('s_mul_i32 s21, s20, 56')
    a('s_sub_u32 s19, s19, s21')
    a('s_and_b32 s21, s19, 1')
    a('s_lshr_b32 s19, s19, 1')
    a('s_mul_i32 s22, s19, 116')
    a('s_add_u32 s22, s22, s20')
    a('s_lshl_b32 s22, s22, 10')
    a(f's_add_u32 s22, s22, {WS_WF:#x}')
    if 'RG' in exp:
        a('s_waitcnt lgkmcnt(0)')
        a('s_and_b32 s55, s55, 0x0f800000')
        a('s_add_u32 s22, s22, s55')
    a('s_cmp_eq_u32 s3, 7')
    a('s_cbranch_scc1 K1_WF_FIN')
    a('v_lshrrev_b32 v8, 3, v0')
    a('v_mul_u32_u24 v8, 3584, v8')
    a('v_and_b32 v9, 7, v0')
    a('v_lshl_add_u32 v8, v9, 4, v8')
    a('s_mul_i32 s23, s21, 7')
    a('s_add_u32 s23, s23, s3')
    a(f's_mul_i32 s23, s23, {32*3584}')
    a('s_lshl_b32 s24, s19, 7')
    a('s_add_u32 s23, s23, s24')
    if 'HU' in exp: a('s_waitcnt vmcnt(0)')
    if 'HB' in exp: a('s_barrier')
    for i in range(4):
        a('buffer_load_dwordx4 v8, s[8:11], s23 offen nt lds')
        if i < 3:
            a('s_add_u32 m0, m0, 1024')
            a(f's_add_u32 s23, s23, {8*3584}')
    stamp(a, 1, 0, 28, stamps, tmp_v=TV)
    a('s_and_b32 s23, s3, 1')
    a('s_mul_i32 s23, s23, 56')
    a('s_lshr_b32 s24, s3, 1')
    a('s_lshl_b32 s24, s24, 3')
    a('s_add_u32 s23, s23, s24')
    a('s_cmp_eq_u32 s3, 6')
    a('s_cselect_b32 s24, 56, 28')
    a('s_cselect_b32 s25, 28, 4')
    a('v_mul_u32_u24 v9, s24, v7')
    a('v_add_u32 v9, s23, v9')
    a('v_add_u32 v10, v9, v5')
    a('v_lshlrev_b32 v10, 7, v10')
    a('v_lshl_add_u32 v10, v6, 5, v10')
    a('v_lshl_add_u32 v10, v4, 3, v10')
    a('s_lshl_b32 s26, s25, 7')
    a('v_add_u32 v11, s26, v10')
    a('s_mul_i32 s26, s21, 896')
    a('v_lshl_add_u32 v9, v9, 2, s26')
    a('s_lshl_b32 s26, s25, 2')
    a('v_add_u32 v8, s26, v9')
    for q in range(4): a(f'v_mov_b32 v{12+q}, 0x3f803f80')
    a('s_mul_i32 s24, s21, 14')
    a('s_add_u32 s24, s24, s3')
    a('s_lshl_b32 s24, s24, 11')
    a('s_add_u32 s24, s24, s22')
    for z in range(1, 4): a(f's_add_u32 s{31+z}, s24, {7*2048*(z>>1) + 58*1024*(z&1)}')
    a('v_cmp_gt_u32 vcc, 32, v0')
    a('s_waitcnt vmcnt(0)')
    if 'XE' in exp: xload()
    a('s_barrier')
    stamp(a, 1, 1, 28, stamps, tmp_v=TV)
    ML = 28672
    CB, SBF, RW, SBP, AB, AC, SC = 32, 48, 64, 16, 96, 128, 80
    for wq in range(2):
        a(f'ds_read_b128 v[{CB+8*wq}:{CB+8*wq+3}], v9 offset:{ML+1792+448*wq}')
        a(f'ds_read_b128 v[{CB+8*wq+4}:{CB+8*wq+7}], v8 offset:{ML+1792+448*wq}')
        for j in range(2):
            z = 2 * wq + j
            a(f'ds_read_b64_tr_b16 v[{RW+4*z}:{RW+4*z+1}], v10 offset:{14336*wq+64*j}')
            a(f'ds_read_b64_tr_b16 v[{RW+4*z+2}:{RW+4*z+3}], v11 offset:{14336*wq+64*j}')
    for wq in range(2):
        a(f'ds_read_b128 v[{SBF+8*wq}:{SBF+8*wq+3}], v9 offset:{ML+448*wq}')
        a(f'ds_read_b128 v[{SBF+8*wq+4}:{SBF+8*wq+7}], v8 offset:{ML+448*wq}')
    UP = 160
    if 'XE' not in exp: xload()
    for z in range(4):
        wq, j = z >> 1, z & 1
        a(f's_waitcnt lgkmcnt({(12, 10, 6, 4)[z]})')
        for p in range(4):
            u = UP + 2 * p
            a(f'v_lshlrev_b32 v{u}, 16, v{RW+4*z+p}')
            a(f'v_and_b32 v{u+1}, 0xffff0000, v{RW+4*z+p}')
            a(f'v_pk_mul_f32 v[{u}:{u+1}], v[{u}:{u+1}], v[{CB+8*wq+2*p}:{CB+8*wq+2*p+1}]')
            a(f'v_cvt_pk_bf16_f32 v{SC+4*z+p}, v{u}, v{u+1}')
        a(f'buffer_store_dwordx4 v[{SC+4*z}:{SC+4*z+3}], v1, s[28:31], s{31+z if z else 24} offen sc1')
        d = AC + 16 * j
        a(f'v_mfma_f32_32x32x16_bf16 v[{d}:{d+15}], v[12:15], v[{SC+4*z}:{SC+4*z+3}], {"0" if wq == 0 else f"v[{d}:{d+15}]"}')
    a('s_waitcnt lgkmcnt(0)')
    for p in range(8): a(f'v_cvt_pk_bf16_f32 v{SBP+p}, v{SBF+2*p}, v{SBF+2*p+1}')
    for z in range(4):
        wq, j = z >> 1, z & 1; d = AB + 16 * j
        a(f'v_mfma_f32_32x32x16_bf16 v[{d}:{d+15}], v[{SBP+4*wq}:{SBP+4*wq+3}], v[{RW+4*z}:{RW+4*z+3}], {"0" if wq == 0 else f"v[{d}:{d+15}]"}')
    RED = 32768
    a('s_lshl_b32 s24, s3, 9')
    a('v_lshl_add_u32 v11, v0, 3, s24')
    a(f'v_cndmask_b32 v12, v{AC+16}, v{AC}, vcc')
    a(f'v_cndmask_b32 v13, v{AB+16}, v{AB}, vcc')
    a(f'ds_write_b64 v11, v[12:13] offset:{RED}')
    a(f'v_mul_u32_u24 v11, {XS}, v2')
    a('v_mul_u32_u24 v14, 56, v3')
    a('s_lshl_b32 s25, s3, 3')
    a('v_add3_u32 v11, v11, v14, s25')
    a(f's_mul_i32 s26, s50, {4*28672}')
    a('s_lshl_b32 s25, s3, 12')
    a('s_add_u32 s26, s26, s25')
    a('s_lshl_b32 s25, s51, 10')
    a('s_add_u32 s26, s26, s25')
    a(f's_add_u32 s26, s26, {WS_XF:#x}')
    a('s_waitcnt vmcnt(4) lgkmcnt(0)')
    a('s_barrier')
    a('s_cmp_eq_u32 s54, 0')
    a('s_cbranch_scc1 K1_END')
    for w in range(4):
        for hi in range(2):
            a(f'ds_read_b64 v[{32+4*w+2*hi}:{33+4*w+2*hi}], v11 offset:{XB + 224*w + 16*XS*hi}')
    for w in range(4):
        a(f's_waitcnt lgkmcnt({2*(3-w)})')
        a(f'buffer_store_dwordx4 v[{32+4*w}:{35+4*w}], v1, s[28:31], s26 offen sc1')
        if w < 3: a('s_add_u32 s26, s26, 28672')
    if stamps:
        a('s_waitcnt vmcnt(0)')
        stamp(a, 1, 5, 28, stamps, tmp_v=TV)
    a('s_endpgm')
    a.label('K1_WF_FIN')
    a(f's_mov_b32 s23, {WS_MOD + 3*1792}')
    for q in range(4): a(f'buffer_load_dwordx4 v1, s[28:31], s23 offen offset:{1024*q} lds')
    a('v_lshlrev_b32 v11, 3, v0')
    a('v_and_b32 v12, 31, v0')
    a('v_lshlrev_b32 v12, 4, v12')
    a(f'v_mul_u32_u24 v13, {58*1024}, v7')
    a('v_add_u32 v12, v12, v13')
    a('s_lshl_b32 s21, s21, 9')
    a('s_add_u32 s22, s22, s21')
    a(f's_add_u32 s22, s22, {28*2048}')
    a('v_mov_b32 v31, 0')
    a('s_waitcnt vmcnt(0)')
    if 'HB' in exp: a('s_barrier')
    a('s_barrier')
    xload()
    a('s_waitcnt vmcnt(0)')
    a('s_barrier')
    for w in range(7):
        a(f'ds_read_b64 v[{16+2*w}:{17+2*w}], v11 offset:{RED+512*w}')
    a('s_waitcnt lgkmcnt(0)')
    for d_, s_ in ((16, 18), (20, 22), (24, 26), (16, 20), (24, 28), (16, 24)):
        a(f'v_pk_add_f32 v[{d_}:{d_+1}], v[{d_}:{d_+1}], v[{s_}:{s_+1}]')
    a('v_cvt_pk_bf16_f32 v20, v16, v17')
    a('v_lshlrev_b32 v22, 16, v20')
    a('v_and_b32 v23, 0xffff0000, v20')
    a('v_pk_add_f32 v[16:17], v[16:17], v[22:23] neg_lo:[0,1] neg_hi:[0,1]')
    a('v_cvt_pk_bf16_f32 v21, v16, v17')
    a('v_lshlrev_b32 v24, 16, v21')
    a('v_and_b32 v25, 0xffff0000, v21')
    a('v_pk_add_f32 v[16:17], v[16:17], v[24:25] neg_lo:[0,1] neg_hi:[0,1]')
    a('v_cvt_pk_bf16_f32 v28, v22, v24')
    a('v_cvt_pk_bf16_f32 v29, v16, v23')
    a('v_cvt_pk_bf16_f32 v30, v25, v17')
    a('buffer_store_dwordx4 v[28:31], v12, s[28:31], s22 offen sc1')
    if stamps:
        a('s_waitcnt vmcnt(0)')
        stamp(a, 1, 4, 28, stamps, tmp_v=TV)
    a('s_endpgm')
    a.label('K1_WD')
    a(f's_sub_u32 s19, s2, {K1_D0}')
    if 'HW' in exp:
        a('s_and_b32 s20, s19, 7')
        a('s_lshr_b32 s21, s3, 1')
        a('s_lshl_b32 s21, s21, 3')
        a('s_add_u32 s20, s20, s21')
        a('s_sub_u32 s21, 64, s20')
        a('s_cmp_eq_u32 s20, 0')
        a('s_cselect_b32 s21, 32, s21')
        a('s_bitcmp0_b32 s3, 0')
        a('s_cselect_b32 s21, s20, s21')
        a('s_lshl_b32 s21, s21, 15')
        a('s_lshr_b32 s22, s19, 3')
        a('s_lshl_b32 s22, s22, 12')
        a('s_add_u32 s21, s21, s22')
        a(f's_add_u32 s21, s21, {WS_WEFF:#x}')
        for q in range(4): a(f'buffer_load_dwordx4 v[{64+4*q}:{67+4*q}], v1, s[28:31], s21 offen offset:{1024*q}')
    srd(a, 8, 40, NB_WG)
    a('s_mul_i32 s20, s19, 37')
    a('s_lshr_b32 s20, s20, 8')
    a('s_mul_i32 s21, s20, 7')
    a('s_add_u32 s22, s21, s3')
    a('s_sub_u32 s21, s19, s21')
    a(f's_mul_i32 s23, s22, {32*896}')
    a('s_lshl_b32 s24, s21, 7')
    a('s_add_u32 s23, s23, s24')
    a('v_lshrrev_b32 v8, 3, v0')
    a('v_mul_u32_u24 v8, 896, v8')
    a('v_and_b32 v9, 7, v0')
    a('v_lshl_add_u32 v8, v9, 4, v8')
    a('v_lshl_add_u32 v10, v7, 2, v5')
    a('v_lshlrev_b32 v10, 7, v10')
    a('v_lshl_add_u32 v10, v6, 5, v10')
    a('v_lshl_add_u32 v10, v4, 3, v10')
    a('v_add_u32 v10, s18, v10')
    a('s_mul_i32 s24, s21, 112')
    a('s_lshl_b32 s25, s22, 1')
    a('s_add_u32 s24, s24, s25')
    a('s_lshl_b32 s24, s24, 11')
    a(f's_add_u32 s24, s24, {WS_WDF:#x}')
    if 'RG' in exp:
        a('s_waitcnt lgkmcnt(0)')
        a('s_and_b32 s55, s55, 0x0f800000')
        a('s_add_u32 s24, s24, s55')
    a('s_waitcnt vmcnt(0)')
    if 'H2' in exp: a('s_barrier')
    a('s_cmp_eq_u32 s3, 7')
    a('s_cbranch_scc1 K1_END')
    a(f's_cmp_ge_u32 s19, {K1_ND}')
    a('s_cbranch_scc1 K1_END')
    for i in range(4):
        a('buffer_load_dwordx4 v8, s[8:11], s23 offen nt lds')
        if i < 3:
            a('s_add_u32 m0, m0, 1024')
            a(f's_add_u32 s23, s23, {8*896}')
    stamp(a, 1, 0, 28, stamps, tmp_v=TV)
    a('s_waitcnt vmcnt(0)')
    for ks2 in range(2):
        for ct in range(2):
            for q in range(2):
                b = 16 + 8 * ks2 + 4 * ct + 2 * q
                a(f'ds_read_b64_tr_b16 v[{b}:{b+1}], v10 offset:{2048*ks2+1024*q+64*ct}')
    for z in range(4):
        a(f's_waitcnt lgkmcnt({2*(3-z)})')
        a(f'buffer_store_dwordx4 v[{16+4*z}:{19+4*z}], v1, s[28:31], s24 offen offset:{1024*z} sc1')
    if stamps:
        a('s_waitcnt vmcnt(0)')
        stamp(a, 1, 4, 28, stamps, tmp_v=TV)
    a.label('K1_END')
    a('s_endpgm')
    return a
```

```python
from asmlib import *
from layout import *
from k0 import srd, rb16, stamp

K2_N = 224
AT_BYTES = 57 * 2048
R2O = AT_BYTES
RT = R2O + 512
RA = RT + 16384
K2_LDS = RA + 24576
JT = 8192

class Trk:
    def __init__(self, a, name, mx): self.a = a; self.tags = []; self.name = name; self.mx = mx; self.done = -1; self.waited = set()
    def op(self, text, tag=None):
        assert tag not in self.waited, tag
        self.a(text); self.tags.append(tag)
    def wait(self, *tags):
        idx = [i for i, t in enumerate(self.tags) if t in tags]
        assert idx, tags
        self.waited.update(tags)
        last = max(idx)
        if last <= self.done: return
        n = min(len(self.tags) - 1 - last, self.mx)
        self.done = len(self.tags) - 1 - n
        self.a(f's_waitcnt {self.name}({n})')
    def all(self):
        self.done = len(self.tags) - 1

def ids(a):
    a('s_and_b32 s18, s2, 7')
    a('s_lshr_b32 s19, s2, 3')
    a('s_mul_i32 s20, s19, 37')
    a('s_lshr_b32 s20, s20, 8')
    a('s_mul_i32 s21, s20, 7')
    a('s_sub_u32 s21, s19, s21')
    a('s_lshr_b32 s22, s18, 1')
    a('s_lshl_b32 s22, s22, 2')
    a('s_add_u32 s20, s20, s22')
    a('s_and_b32 s22, s18, 1')
    a('s_mul_i32 s23, s22, 7')
    a('s_add_u32 s23, s23, s21')

DEF = dict(R=4, nB1=4, nK=4, n0=3, n1=5, f1=-1, g1=0, g2=3, b0=12, rate=3.5, fa=3, win=14, pb=6, w0=10, fb=0, cb=0, ca=0, qa=8, qd=4, sc=1.0, st='0123456789abcdef', p1=26, c1=24, gw=8, pa=8, ba=3, r0=3.5, sx='', sen=0, ps=60, ord=0, oe=2, ma=-1, mb=0, mn=1, ms=3, mc=0)

def gen_k2(stamps=False, exp=''):
    P = dict(DEF)
    for kv in exp.split(','):
        if '=' in kv and not kv.startswith('K1='):
            k_, v_ = kv.split('='); P[k_] = v_ if k_ in ('st', 'sx') else float(v_) if '.' in v_ else int(v_, 0)
    a = Asm(); vm = Trk(a, 'vmcnt', 63); lg = Trk(a, 'lgkmcnt', 15)
    TV = (60, 61, 62)
    tail = []
    def st(slot, force=False):
        if stamps and (force or f'{slot:x}' in P['st']):
            stamp(a, 2, slot, 8, True, tmp_v=TV); vm.tags.append('stamp'); lg.all()
    def check(tag, voff, soff, name, pre=()):
        vm.wait(tag)
        a('v_cmp_ne_u32 vcc, 1, v37')
        a('s_nop 1')
        a(f's_cbranch_vccnz {name}_S')
        a.label(f'{name}_OK')
        tail.extend([f'{name}_S:'] + list(pre) + ['s_mov_b32 s36, 0', f'{name}_L:',
            f'buffer_load_dword v37, {voff}, s[8:11], {soff} offen sc1', 's_add_u32 s36, s36, 1', 's_waitcnt vmcnt(0)',
            'v_cmp_ne_u32 vcc, 1, v37', 's_cmp_gt_u32 s36, 400000', f's_cbranch_scc1 {name}_OK', 's_nop 1',
            f's_cbranch_vccnz {name}_L', f's_branch {name}_OK'])
    def emit(lst):
        for kind, text, tag in lst:
            if kind == 'x': a(text)
            elif kind == 'v': vm.op(text, tag)
            elif kind == 'l': lg.op(text, tag)
            elif kind == 'wv': vm.wait(tag)
            elif kind == 'wl': lg.wait(tag)
            elif kind == 'st': st(tag)
            elif kind == 'f': text()
    X_ = lambda lst: [('x', t, None) for t in lst]
    a.label('k2_kernel')
    if 'KA' in exp: a('s_memrealtime s[92:93]')
    a(f's_cmp_ge_u32 s2, {K2_N}')
    a('s_cbranch_scc1 K2_END')
    a('s_load_dwordx2 s[4:5], s[0:1], 88')
    a('s_load_dwordx2 s[50:51], s[0:1], 72')
    a('v_lshrrev_b32 v1, 6, v0')
    a('v_and_b32 v0, 63, v0')
    a('v_readfirstlane_b32 s3, v1')
    a('v_lshlrev_b32 v1, 4, v0')
    a('s_getpc_b64 s[6:7]')
    a.label('K2_PC')
    a('s_add_u32 s6, s6, k2_tbl-K2_PC')
    a('s_addc_u32 s7, s7, 0')
    srd(a, 12, 6, 16384)
    a('s_lshl_b32 s16, s3, 12')
    a(f's_add_u32 s17, s16, {RT}')
    a('s_mov_b32 m0, s17')
    ids(a)
    for q in range(4):
        vm.op(f'buffer_load_dwordx4 v1, s[12:15], s16 offen offset:{1024*q} lds', 'R')
    a('s_and_b32 s40, s23, 3')
    a('s_lshr_b32 s41, s23, 2')
    a('s_cmp_eq_u32 s41, 3')
    a('s_cselect_b32 s42, 1, 0')
    a('s_lshl_b32 s40, s40, s42')
    a('s_mul_i32 s40, s40, 28672')
    a('s_lshl_b32 s41, s41, 13')
    a('s_add_u32 s40, s40, s41')
    a('s_cmp_ge_u32 s23, 12')
    a('s_cselect_b32 s41, 7, 1')
    a('s_lshl_b32 s41, s41, 12')
    a(f's_mul_i32 s26, s20, {4*28672}')
    a('s_add_u32 s40, s40, s26')
    a('s_lshr_b32 s42, s3, 1')
    a('s_mul_i32 s42, s42, s41')
    a('s_and_b32 s43, s3, 1')
    a('s_lshl_b32 s43, s43, 11')
    a('s_add_u32 s42, s42, s43')
    a('s_add_u32 s42, s42, s40')
    a(f's_add_u32 s42, s42, {WS_TP:#x}')
    a('s_lshl_b32 s43, s3, 11')
    a(f's_add_u32 m0, s43, {JT}')
    a('s_lshl_b32 s43, s3, 10')
    a('s_add_u32 s43, s43, s40')
    a(f's_add_u32 s43, s43, {WS_XF:#x}')
    a('s_add_u32 s44, s43, s41')
    a('s_mul_i32 s25, s3, 28672')
    a('s_add_u32 s26, s26, s25')
    a(f's_add_u32 s24, s26, {WS_TP:#x}')
    a(f's_add_u32 s26, s26, {WS_XF:#x}')
    a('s_waitcnt lgkmcnt(0)')
    if 'RG' in exp: a(f's_load_dword s64, s[4:5], {WS_REG:#x}')
    srd(a, 8, 4, WS_SIZE)
    XA = 200
    st(0)
    if stamps: a('s_mov_b32 s95, 0')
    if 'KA' in exp:
        a('v_mov_b32 v60, s92'); a('v_add_u32 v62, 8, v62')
        vm.op('buffer_store_dwordx2 v[60:61], v62, s[8:11], 0 offen', 'ka')
    for q in range(2): vm.op(f'buffer_load_dwordx4 v1, s[8:11], s42 offen offset:{1024*q} lds', 'J')
    vm.op('buffer_load_dwordx4 a[248:251], v1, s[8:11], s43 offen', 'JX')
    vm.op('buffer_load_dwordx4 a[252:255], v1, s[8:11], s44 offen', 'JX')
    TL = (0, 1, 6) if P['R'] == 12 else (6,)
    def load_tile(ti):
        t = TL[ti]
        out = X_([f's_add_u32 m0, s25, {4096*t}', f's_add_u32 s46, s24, {4096*t}', f's_add_u32 s47, s26, {4096*t}'])
        for q in range(4):
            out.append(('v', f'buffer_load_dwordx4 v1, s[8:11], s46 offen offset:{1024*q} lds', f't{ti}'))
        for n in range(4):
            out.append(('v', f'buffer_load_dwordx4 a[{XA+16*ti+4*n}:{XA+16*ti+4*n+3}], v1, s[8:11], s47 offen offset:{1024*n}', f'x{ti}'))
        return out
    a('v_and_b32 v2, 15, v0')
    a('v_lshrrev_b32 v3, 4, v0')
    a('s_lshl_b32 s28, s23, 2')
    a('s_add_u32 s28, s28, s3')
    a(f's_mul_i32 s27, s28, {58*1024}')
    a(f's_add_u32 s27, s27, {WS_WF:#x}')
    RED = [7 * q + z for z in TL for q in range(4)]
    CH = [[2, 3], [4, 5]] if P['R'] == 12 else [[0], [1], [2, 3], [4, 5]]
    SPL = [7 * q + z for ch in CH for z in ch for q in range(4)]
    KORD = RED + SPL + [28]
    wreg = lambda k: 8 * KORD.index(k)
    def load_w(k):
        out = X_([f's_add_u32 s37, s27, {2048*k}'])
        for m in range(2):
            r = wreg(k) + 4 * m
            out.append(('v', f'buffer_load_dwordx4 a[{r}:{r+3}], v1, s[8:11], s37 offen offset:{1024*m}', f'w{k}'))
        return out
    LW = lambda i0, i1: sum([load_w(k) for k in KORD[i0:i1]], [])
    SEL = 8
    a('v_lshrrev_b32 v5, 2, v2')
    a('v_cmp_eq_u32 vcc, v5, v3')
    a('v_and_b32 v5, 1, v0')
    a('v_lshlrev_b32 v5, 4, v5')
    a('v_mov_b32 v6, 0x3f00')
    a('v_lshlrev_b32 v6, v5, v6')
    a('v_mov_b32 v7, 0')
    a('v_cndmask_b32 v6, v7, v6, vcc')
    a(f'v_mov_b32 v26, {OOB:#x}')
    a('v_lshlrev_b32 v5, 3, v2')
    a('v_cndmask_b32 v26, v26, v5, vcc')
    a('v_and_b32 v5, 2, v0')
    a('v_cmp_eq_u32 vcc, 0, v5')
    a(f'v_cndmask_b32 v{SEL}, v7, v6, vcc')
    a(f'v_cndmask_b32 v{SEL+1}, v6, v7, vcc')
    a(f'v_mov_b32 v{SEL+2}, v{SEL}')
    a(f'v_mov_b32 v{SEL+3}, v{SEL+1}')
    for q in range(2):
        a(f'v_lshlrev_b32 v5, 2, v{SEL+q}')
        a('v_and_b32 v5, 0x80008000, v5')
        a(f'v_or_b32 v{SEL+4+q}, v5, v{SEL+q}')
    a('v_lshrrev_b32 v33, 3, v0')
    a('v_lshlrev_b32 v33, 6, v33')
    a('v_and_b32 v5, 3, v0')
    a('v_lshl_add_u32 v33, v5, 4, v33')
    a('v_bfe_u32 v5, v0, 2, 1')
    a('v_lshl_add_u32 v33, v5, 3, v33')
    a('v_add_u32 v4, s25, v33')
    a(f'v_add_u32 v23, {RT}, v1')
    a('v_add_u32 v24, s17, v1')
    a('v_lshlrev_b32 v5, 4, v2')
    a('v_lshl_add_u32 v25, v3, 11, v5')
    a('v_add_u32 v14, s25, v25')
    a('v_lshrrev_b32 v6, 1, v3')
    a('v_lshl_add_u32 v15, v6, 11, v5')
    a('v_and_b32 v6, 1, v3')
    a('v_lshl_add_u32 v15, v6, 3, v15')
    a('v_add_u32 v15, s25, v15')
    for q in range(4): a(f'v_mov_b32 v{28+q}, 0x3f803f80')
    a('s_lshl_b32 s45, s20, 4')
    a('s_add_u32 s45, s45, s23')
    a('s_lshl_b32 s48, s45, 10')
    a('s_lshl_b32 s45, s45, 13')
    a('s_lshl_b32 s29, s3, 8')
    a('s_add_u32 s45, s45, s29')
    a(f's_add_u32 s45, s45, {WS_X1:#x}')
    a('s_lshl_b32 s29, s3, 7')
    a('s_add_u32 s48, s48, s29')
    a(f's_add_u32 s48, s48, {WS_ST:#x}')
    a('s_mov_b32 s52, 0xaaaaaaaa')
    a('s_mov_b32 s53, 0xaaaaaaaa')
    a('s_mov_b32 s54, 0xcccccccc')
    a('s_mov_b32 s55, 0xcccccccc')
    for ti in range(len(TL)): emit(load_tile(ti))
    if 'RG' in exp:
        a('s_waitcnt lgkmcnt(0)')
        a('s_and_b32 s64, s64, 0x0f800000')
        a('s_add_u32 s27, s27, s64')
    vm.wait('J')
    a('s_barrier')
    if 'FF' not in exp and 'GG' not in exp: st(1)
    R1 = 64
    ACC, PK, TT, TAB = 128, 160, 176, 192
    RJ = ACC + 16
    def rdT(buf, addr, off, tag):
        b = TAB + 16 * buf
        return [('l', f'ds_read_b64_tr_b16 v[{b+4*ks+2*h}:{b+4*ks+2*h+1}], {addr} offset:{off+1024*ks+512*h}', tag) for ks in range(4) for h in range(2)]
    def unit(e, X, tb, rr):
        E = f'v[{e}:{e+3}]'; O = f'v[{e+4}:{e+7}]'
        TA = lambda ks: f'v[{tb+4*ks}:{tb+4*ks+3}]'
        RR = lambda ks: f'v[{rr+4*ks}:{rr+4*ks+3}]'
        return [f'v_mfma_f32_16x16x32_bf16 {E}, v[{SEL}:{SEL+3}], {X}, 0',
                f'v_mfma_f32_16x16x32_bf16 {O}, v[{SEL+2}:{SEL+5}], {X}, 0',
                f'v_mfma_f32_16x16x32_bf16 {E}, {TA(0)}, {RR(0)}, {E}',
                f'v_mfma_f32_16x16x32_bf16 {O}, {TA(2)}, {RR(2)}, {O}',
                f'v_mfma_f32_16x16x32_bf16 {E}, {TA(1)}, {RR(1)}, {E}',
                f'v_mfma_f32_16x16x32_bf16 {O}, {TA(3)}, {RR(3)}, {O}']
    def bfly(e, T, pk):
        ops = []
        for q in range(4):
            ops += [f'v_add_f32 v{T+q}, v{e+q}, v{e+4+q}', f'v_sub_f32 v{T+4+q}, v{e+q}, v{e+4+q}']
        for q in range(2):
            ops += [f'v_cvt_pk_bf16_f32 v{pk+q}, v{T+2*q}, v{T+2*q+1}', f'v_cvt_pk_bf16_f32 v{pk+4+q}, v{T+4+2*q}, v{T+5+2*q}']
        return X_(ops)
    for q in range(4): lg.op(f'ds_read_b128 v[{RJ+4*q}:{RJ+4*q+3}], v24 offset:{1024*q}', 'RJ')
    emit(rdT(2, 'v33', JT, 'JA') + rdT(3, 'v33', JT + 4096, 'JB'))
    a('v_and_b32 v5, 31, v0')
    a('v_lshlrev_b32 v20, 4, v5')
    a('v_lshrrev_b32 v6, 5, v0')
    a('v_lshl_add_u32 v16, v6, 11, v20')
    a('v_add_u32 v17, 57344, v16')
    a(f'v_add_u32 v20, {56*2048}, v20')
    a('s_lshl_b32 s29, s3, 9')
    a('v_add_u32 v21, s29, v20')
    a('s_lshl_b32 s29, s3, 7')
    a(f's_add_u32 s29, s29, {R2O}')
    a('v_lshl_add_u32 v22, v5, 2, s29')
    a('v_mul_u32_u24 v27, 7168, v6')
    a('v_lshl_add_u32 v27, v5, 3, v27')
    uA = unit(ACC, 'a[248:251]', TAB + 32, RJ); uB = unit(ACC + 8, 'a[252:255]', TAB + 48, RJ)
    job = [('wv', None, 'JX')] + X_(uA[:2] + uB[:2]) + [('wl', None, 'JA')] + X_(uA[2:]) + [('wl', None, 'JB')]
    r1 = [('l', f'ds_read_b128 v[{R1+4*q}:{R1+4*q+3}], v23 offset:{1024*q}', 'R') for q in range(16)]
    for i, m in enumerate(uB[2:]): job += X_([m]) + r1[2*i:2*i+2]
    job += bfly(ACC, TT, PK) + bfly(ACC + 8, TT + 8, PK + 2)
    w0 = LW(0, P['n0'])
    for i, x in enumerate(job): emit([x] + w0[i * len(w0) // len(job):(i + 1) * len(w0) // len(job)])
    SJ = TAB + 48
    for hi in range(2):
        P_ = f'v[{PK+4*hi}:{PK+4*hi+3}]'
        vm.op(f'buffer_store_dwordx4 {P_}, v25, s[8:11], s45 offen offset:{1024*hi} sc1', 'js')
        a(f'v_mfma_f32_16x16x32_bf16 v[{SJ+8*hi}:{SJ+8*hi+3}], {P_}, {P_}, 0')
        a(f'v_mfma_f32_16x16x32_bf16 v[{SJ+8*hi+4}:{SJ+8*hi+7}], v[28:31], {P_}, 0')
    emit(r1[8:])
    for hi in range(2):
        q = SJ + 8 * hi
        a(f'v_cndmask_b32 v{q}, v{q}, v{q+1}, s[52:53]')
        a(f'v_cndmask_b32 v{q+2}, v{q+2}, v{q+3}, s[52:53]')
        a(f'v_cndmask_b32 v{q+5}, v{q}, v{q+2}, s[54:55]')
        vm.op(f'buffer_store_dwordx2 v[{q+4}:{q+5}], v26, s[8:11], s48 offen offset:{512*hi} sc1', 'js')
    st(2)
    flg = X_(['s_mul_i32 s29, s28, 37', 's_lshr_b32 s29, s29, 9', 's_mul_i32 s29, s29, 72', 's_lshl_b32 s30, s28, 2', 's_add_u32 s29, s29, s30',
              'v_mov_b32 v35, 1', f'v_mov_b32 v36, {OOB:#x}', 'v_writelane_b32 v36, s29, 0',
              'v_min_u32 v32, 55, v0', 'v_mul_u32_u24 v34, 37, v32', 'v_lshrrev_b32 v34, 9, v34', 'v_mul_u32_u24 v34, 72, v34', 'v_lshl_add_u32 v32, v32, 2, v34',
              'v_min_u32 v34, 13, v0', 's_lshl_b32 s29, s3, 7', 'v_lshl_add_u32 v34, v34, 2, s29',
              's_lshl_b32 s35, s20, 9', f's_add_u32 s35, s35, {WS_FLAGS:#x}', 's_add_u32 s56, s35, 8192', 's_add_u32 s57, s35, 16384'])
    setflag = lambda so, tag: [('wv', None, tag), ('v', f'buffer_store_dword v35, v36, s[8:11], {so} offen sc1', 'fl')]
    tb = {0: 0, 1: 1, 6: 2}
    units = ([(tt, n) for n in range(4) for tt in range(2)] if P['R'] == 12 else []) + [(len(TL) - 1, n) for n in range(4)]
    side = {}
    def spread(lst, u0, u1):
        k = len(lst); m = u1 - u0
        for i, x in enumerate(lst): side.setdefault(u0 + i * m // k, []).append(x)
    NPRE = P['n0'] + P['n1']
    spread(flg, 0, 2)
    spread(LW(P['n0'], NPRE), 0, len(units))
    rdO = lambda ti: rdT(tb[TL[ti]], 'v4', 4096 * TL[ti], f'T{ti}')
    if P['R'] == 12: spread([('wv', None, 'x2')] + rdO(2), 5, 8)
    if P['f1'] < 0: spread(setflag('s35', 'js'), len(units) + P['f1'], len(units) + P['f1'] + 1)
    def post(ui):
        ti, n = units[ui]; t = TL[ti]
        e = ACC + 8 * (ui % 4)
        grp = (ui // 2) % 2 if t < 6 else ui % 2
        b = PK + 8 * grp
        ops = bfly(e, TT + 8 * (ui % 2), b + (2 * t if t < 6 else 0))
        if t == 1:
            ops.append(('l', f'ds_write_b128 v14, v[{b}:{b+3}] offset:{256*n}', 'aw'))
            ops.append(('l', f'ds_write_b128 v14, v[{b+4}:{b+7}] offset:{256*n+1024}', 'aw'))
        elif t == 6:
            ops.append(('l', f'ds_write_b64 v15, v[{b}:{b+1}] offset:{24576+256*n}', 'aw'))
            ops.append(('l', f'ds_write_b64 v15, v[{b+4}:{b+5}] offset:{24576+256*n+1024}', 'aw'))
        return ops
    LAG = 2
    l0 = min(1, len(TL) - 1)
    vm.wait(f't{l0}')
    for ti in range(l0 + 1): emit(rdO(ti))
    vm.wait(f'x{l0}')
    for ui, (ti, n) in enumerate(units):
        if n == 0: lg.wait(f'T{ti}')
        mf = unit(ACC + 8 * (ui % 4), f'a[{XA+16*ti+4*n}:{XA+16*ti+4*n+3}]', TAB + 16 * tb[TL[ti]], R1 + 16 * n)
        fill = (post(ui - LAG) if ui >= LAG else []) + side.get(ui, [])
        k = len(fill)
        for i, m in enumerate(mf):
            a(m)
            emit(fill[i * k // 6:(i + 1) * k // 6])
    for ui in range(len(units) - LAG, len(units)): emit(post(ui))
    a('s_waitcnt lgkmcnt(0)'); lg.all()
    a('s_barrier')
    st(3)
    GT = {0: 128, 2: 160, 1: 192, 3: 224}
    BF = 64
    SA = 112
    nB1 = P['nB1']
    def two(ks, r0, r1, skew):
        o = [(k, r) for k in ks[:len(ks) - skew] for r in (r0, r1)]
        return o + [(k, r0) for k in ks[len(ks) - skew:]] + [(k, r1) for k in ks[len(ks) - skew:]]
    nK = P['nK']
    seq = two(RED, 0, 2, 0) + two(RED[:nB1], 1, 3, 0) + [(k, r) for k in SPL[:nK] for r in (0, 2, 1, 3)]
    seq += two(SPL[nK:] + [28], 0, 2, 2) + two(RED[nB1:] + [28] + SPL[nK:], 1, 3, 4)
    assert len(seq) == 116
    last_use = {k: max(i for i, f in enumerate(seq) if f[0] == k) for k in KORD}
    first_use = {k: min(i for i, f in enumerate(seq) if f[0] == k) for k in KORD}
    done = {r: max(i for i, f in enumerate(seq) if f[1] == r) for r in range(4)}
    def baddr(k, rt):
        if k < 28: return f'v{16 + k // 14} offset:{4096*(k%14)+512*rt}'
        return f'v20 offset:{512*rt}'
    breg = lambda i: BF + 4 * (i % 12)
    rdB = lambda i: ('l', f'ds_read_b128 v[{breg(i)}:{breg(i)+3}], {baddr(*seq[i])}', f'b{i}')
    NS = 232
    fill = [[] for _ in range(NS + 1)]
    def put(lst, s0, s1):
        k = len(lst); m = s1 - s0
        for i, x in enumerate(lst): fill[min(s0 + i * m // k, NS)].append(x)
    AHEAD = 8
    released = set(RED)
    rel = lambda ks: ('f', lambda: released.update(ks), None)
    fx = first_use[SPL[0]]; fa = first_use[28]
    GAP = P['R'] == 4
    if P['f1'] >= 0: put(setflag('s35', 'js') + ([('st', None, 1)] if 'FF' in exp else []), P['f1'], P['f1'] + 1)
    poll1 = [('v', 'buffer_load_dword v37, v32, s[8:11], s35 offen sc1', 'p1')]
    chk1 = [('f', lambda: check('p1', 'v32', 's35', 'K2_P1'), None), ('st', None, 4)]
    x1s = X_(['s_lshl_b32 s29, s20, 14', 's_lshl_b32 s30, s3, 8', 's_add_u32 s30, s30, s29', f's_add_u32 s30, s30, {WS_ST:#x}', 's_add_u32 s31, s30, 4096',
              's_lshl_b32 s29, s20, 17', 's_lshl_b32 s49, s3, 13', 's_add_u32 s49, s49, s29', f's_add_u32 s49, s49, {WS_X1:#x}'])
    def load_x1(z, c):
        return X_([f's_add_u32 m0, s25, {4096*z}', f's_add_u32 s46, s49, {32768*(z>>1)+4096*(z&1)}']) + \
               [('v', f'buffer_load_dwordx4 v1, s[8:11], s46 offen offset:{1024*q} sc1 lds', f'c{c}') for q in range(4)]
    load_sd = [('v', f'buffer_load_dwordx2 v[{SA+2*j}:{SA+2*j+1}], v27, s[8:11], s{30+j//4} offen offset:{1024*(j%4)} sc1', 'sd') for j in range(7)]
    bar = {}
    for c, ch in enumerate(CH):
        bar[c] = 2 * (first_use[ch[0]] - P['ba']) - 1 if (c or not GAP) else 2 * fx - 1
    bx = bar[len(CH) - 1] + 1
    inv = 0x3b124925
    fin = [('wv', None, 'sd')]
    for (d, s_) in ((0, 2), (4, 6), (8, 10), (0, 4), (8, 12), (0, 8)):
        fin += X_([f'v_add_f32 v{SA+d}, v{SA+d}, v{SA+s_}', f'v_add_f32 v{SA+d+1}, v{SA+d+1}, v{SA+s_+1}'])
    fin += X_([f'v_mov_b32 v{SA+2}, v{SA}', f'v_mov_b32 v{SA+3}, v{SA+1}', 'v_mov_b32 v31, 0',
               f'v_permlane32_swap_b32 v{SA}, v{SA+2}', f'v_permlane32_swap_b32 v{SA+1}, v{SA+3}',
               f'v_add_f32 v{SA}, v{SA}, v{SA+2}', f'v_add_f32 v{SA+2}, v{SA+1}, v{SA+3}',
               f'v_mul_f32 v{SA}, {inv:#x}, v{SA}', f'v_mul_f32 v{SA+2}, {inv:#x}, v{SA+2}',
               f'v_fma_f32 v{SA+2}, -v{SA}, v{SA}, v{SA+2}', f'v_max_f32 v{SA+2}, 0, v{SA+2}',
               f'v_cvt_pk_bf16_f32 v28, -v{SA}, -v{SA}', f'v_cvt_pk_bf16_f32 v{SA+2}, v{SA+2}, v{SA+2}',
               f'v_lshlrev_b32 v{SA+2}, 16, v{SA+2}', f'v_add_f32 v{SA+2}, 0x3727c5ac, v{SA+2}',
               f'v_cvt_pk_bf16_f32 v{SA+2}, v{SA+2}, v{SA+2}', f'v_lshlrev_b32 v{SA+2}, 16, v{SA+2}',
               f'v_sqrt_f32 v{SA+2}, v{SA+2}', 's_nop 0',
               f'v_cvt_pk_bf16_f32 v30, v{SA+2}, v{SA+2}', f'v_cvt_pk_bf16_f32 v29, -v{SA}, v{SA+2}',
               f'v_lshlrev_b32 v{SA+2}, 16, v30', f'v_rcp_f32 v{SA+2}, v{SA+2}'])
    fin += [('l', 'ds_write_b128 v21, v[28:31]', 'st')] + X_([f'v_mul_f32 v{SA+2}, v{SA+2}, v{SA+2}']) + [('l', f'ds_write_b32 v22, v{SA+2}', 'st')]
    fs = bx - 19
    put(fin + [('wl', None, 'st')], fs, fs + 17)
    wd_setup = X_(['s_mul_i32 s38, s21, 112', 's_mul_i32 s31, s3, 28', 's_add_u32 s38, s38, s31', 's_lshl_b32 s38, s38, 11',
                   f's_add_u32 s38, s38, {WS_WDF:#x}', 's_and_b32 s32, s3, 1', 's_lshl_b32 s32, s32, 10', 's_lshr_b32 s31, s3, 1', 's_lshl_b32 s31, s31, 8',
                   's_or_b32 s32, s32, s31', 'v_xor_b32 v2, s32, v1', 'v_xor_b32 v3, 0x400, v2',
                   's_mul_i32 s29, s20, 448', 's_lshl_b32 s31, s28, 1', 's_add_u32 s29, s29, s31', 's_lshl_b32 s29, s29, 10', f's_add_u32 s58, s29, {WS_HF:#x}'])
    if 'RG' in exp: wd_setup += X_(['s_add_u32 s38, s38, s64'])
    free = [(0, 232), (0, 240), (0, 248)] + sorted((2 * last_use[k] + 2, wreg(k)) for k in KORD)
    dreg = lambda j: free[j][1]
    def load_wd(j):
        r = dreg(j); out = []
        if j % 2 == 0: out += X_([f's_add_u32 s39, s38, {2048*j}'])
        out += [('v', f'buffer_load_dwordx4 a[{r}:{r+3}], v2, s[8:11], s39 offen offset:{2048*(j%2)}', f'd{j}'),
                ('v', f'buffer_load_dwordx4 a[{r+4}:{r+7}], v3, s[8:11], s39 offen offset:{2048*(j%2)}', f'd{j}')]
        return out
    res = X_(['s_lshl_b32 s33, s22, 1',
              's_lshl_b32 s34, s21, 4', 's_and_b32 s59, s3, 1', 's_lshl_b32 s59, s59, 3', 's_add_u32 s34, s34, s59',
              's_and_b32 s59, s3, 2', 's_lshl_b32 s59, s59, 1', 's_add_u32 s34, s34, s59',
              'v_lshrrev_b32 v10, 5, v0', 'v_and_b32 v11, 31, v0', 's_lshl_b32 s59, s33, 9', 'v_lshl_add_u32 v12, v11, 4, s59',
              's_lshl_b32 s59, s33, 7', f's_add_u32 s59, s59, {R2O}', 'v_lshl_add_u32 v18, v11, 2, s59',
              'v_add_u32 v11, s34, v10'])
    for q in range(2):
        res += X_(['v_mul_u32_u24 v13, 147, v11', 'v_lshrrev_b32 v13, 10, v13',
                   'v_mul_u32_u24 v14, 7, v13', 'v_sub_u32 v14, v11, v14',
                   'v_and_b32 v15, 3, v13', 'v_lshrrev_b32 v13, 2, v13',
                   'v_cmp_eq_u32 vcc, 6, v14',
                   'v_lshl_add_u32 v8, v15, 1, v14', 'v_and_b32 v14, 6, v14', 'v_lshl_add_u32 v8, v14, 2, v8', 'v_sub_u32 v8, v8, v14',
                   'v_add_u32 v15, 24, v15', 'v_cndmask_b32 v8, v8, v15, vcc',
                   'v_mul_u32_u24 v13, 28672, v13', 'v_lshrrev_b32 v14, 1, v8', 'v_lshl_add_u32 v13, v14, 11, v13',
                   'v_and_b32 v8, 1, v8', 'v_lshl_add_u32 v13, v8, 3, v13', f'v_add_u32 v{38+q}, v13, v12', 'v_add_u32 v11, 2, v11'])
    res += X_(['v_lshlrev_b32 v4, 4, v10', 's_lshl_b32 s59, s34, 4', f's_add_u32 s59, s59, {WS_MOD + 5*1792}'])
    for q in range(2):
        res.append(('v', f'buffer_load_dwordx4 v[{40+4*q}:{43+4*q}], v4, s[8:11], s59 offen offset:{32*q}', 'gb'))
    for q in range(2):
        res.append(('l', f'ds_read_b64 v[{56+2*q}:{57+2*q}], v{38+q}', 'res'))
        res.append(('l', f'ds_read_b64 v[{8+2*q}:{9+2*q}], v{38+q} offset:512', 'res'))
    res += [('l', 'ds_read_b32 v12, v18', 'res'), ('l', 'ds_read_b32 v13, v18 offset:128', 'res')]
    res += X_(['v_and_b32 v19, 15, v0', 'v_lshlrev_b32 v19, 1, v19', 'v_bfe_u32 v14, v0, 4, 1', 'v_add_u32 v19, v19, v14',
               f'v_mul_u32_u24 v19, {16*896}, v19', 'v_add_u32 v19, v19, v4',
               f's_mul_i32 s60, s33, {32*16*896}', 's_mul_i32 s59, s20, 896', 's_add_u32 s60, s60, s59', 's_lshl_b32 s59, s34, 3', 's_add_u32 s60, s60, s59',
               f's_add_u32 s61, s60, {32*16*896}',
               's_lshl_b32 s62, s20, 2', 's_add_u32 s62, s62, s33', 's_mul_i32 s62, s62, 112', 's_mul_i32 s59, s3, 28', 's_add_u32 s62, s62, s59',
               's_lshl_b32 s62, s62, 10', f's_add_u32 s62, s62, {WS_HF:#x}', f's_add_u32 s63, s62, {112*1024}',
               's_mov_b32 s12, s50', 's_mov_b32 s13, s51', f's_mov_b32 s14, {NB_X:#x}', 's_mov_b32 s15, 0x00020000'])
    for lam in range(1, 4):
        res += X_([f's_xor_b32 s59, s3, {lam}', 's_mul_i32 s59, s59, 6144', f'v_add_u32 v{4+lam}, s59, v1'])
    res += X_(['s_mul_i32 s59, s3, 6144', 'v_add_u32 v14, s59, v1'])
    res2 = [('wl', None, 'res'), ('wv', None, 'gb')]
    res2 += X_([f'v_mul_f32 v{48+i}, v13, v{40+i}' for i in range(8)] + [f'v_mul_f32 v{40+i}, v12, v{40+i}' for i in range(8)])
    put(res, bx, bx + 32)
    def epi(rt, packed, tag):
        g = GT[rt]; u = g + 16; o = X_([f's_add_u32 s29, s58, {rt*112*1024}'])
        for hh in range(2):
            o += X_([f'v_max_f32 v{g+i}, 0, v{g+i}' for i in range(8 * hh, 8 * hh + 8)])
            if packed: o += X_([f'v_pk_mul_f32 v[{g+2*i}:{g+2*i+1}], v[{g+2*i}:{g+2*i+1}], v[{u+2*i}:{u+2*i+1}]' for i in range(4 * hh, 4 * hh + 4)])
            else: o += X_([f'v_mul_f32 v{g+i}, v{g+i}, v{u+i}' for i in range(8 * hh, 8 * hh + 8)])
            o += X_([f'v_cvt_pk_bf16_f32 v{u+i}, v{g+2*i}, v{g+2*i+1}' for i in range(4 * hh, 4 * hh + 4)])
            o.append(('v', f'buffer_store_dwordx4 v[{u+4*hh}:{u+4*hh+3}], v1, s[8:11], s29 offen offset:{1024*hh} sc1', tag))
        return o
    e0 = 2 * done[0] + 2
    SEN = P['sen']
    if SEN:
        pf = X_([f'v_mov_b32 v{44+q}, -1' for q in range(4)])
        for rt in (1, 3):
            pf += X_([f's_add_u32 s59, s58, {rt*112*1024}'])
            pf += [('v', f'buffer_store_dwordx4 v[44:47], v1, s[8:11], s59 offen offset:{1024*hh} sc1', 'hA') for hh in range(2)]
        put(pf, P['ps'], P['ps'] + 30)
        assert P['ps'] + 30 <= bx
    put(epi(0, False, 'hA'), e0, e0 + 9)
    put(epi(2, False, 'hA') + ([('st', None, 6)] if 'FF' not in exp else []), e0 + 9, e0 + 18)
    assert 2 * done[2] + 2 <= e0 + 9
    put(res2, e0 + 18, e0 + 24)
    put(setflag('s56', 'hA') + ([('st', None, 1)] if 'GG' in exp else []), e0 + 18 + 8 * P['fa'], e0 + 19 + 8 * P['fa'])
    put(epi(1, False, 'hB'), 2 * done[1] + 2, NS)
    put([('v', 'buffer_load_dword v37, v34, s[8:11], s56 offen sc1', 'pA')], NS - P['pa'], NS - P['pa'] + 1)
    hreg = lambda s: 128 + 4 * (s % 32) if s % 32 < 16 else 64 + 4 * (s % 32 - 16)
    def loadh(s):
        ph, k = divmod(s, 28); b = hreg(s); o = []
        if k % 4 == 0: o += X_([f's_add_u32 s47, s{62+ph}, {1024*k}'])
        return o + [('v', f'buffer_load_dwordx4 v[{b}:{b+3}], v1, s[8:11], s47 offen offset:{1024*(k%4)} sc1', f'h{s}')]
    dt = 8 / P['rate']
    nld = lambda item: sum(0.5 if 'x2' in x[1] else 1 for x in item if x[0] == 'v')
    wq = list(KORD[NPRE:]); t = 0.0
    c1 = 2 * fx if GAP else P['c1']
    d0 = 8 / P['r0']
    while wq and t + d0 < c1:
        put(load_w(wq.pop(0)), int(t), int(t + d0) + 1); t += 2 * d0
    gap = []
    if GAP:
        def paced(n):
            o = []
            for _ in range(n):
                if wq: o += [('f', lambda: a(f"s_waitcnt vmcnt({P['gw']})"), None)] + load_w(wq.pop(0))
            return o
        pl = ([('st', None, 6)] if 'FF' in exp else []) + poll1
        if P['p1'] >= 0: put(pl, P['p1'], P['p1'] + 1); pl = []
        gap = paced(P['g1']) + pl + paced(P['g2']) + chk1
    else:
        put(poll1, P['p1'], P['p1'] + 1); put(chk1, c1 - 1, c1)
    q_ = [(bar[c] - 24, 0, load_x1(z, c)) for c, ch in enumerate(CH) for z in ch] + [(fs - 16, 0, load_sd)]
    q_ += [(2 * first_use[k] - 8, 0, load_w(k)) for k in wq]
    q_.sort(key=lambda x: x[0])
    q_ += [(1000 + j, free[j][0], load_wd(j)) for j in range(28)]
    t = float(c1); late = []; burst = P['b0']
    stores = [i for i, f in enumerate(fill) for x in f if x[0] == 'v' and 'store_dwordx4' in x[1]]
    ca = NS - P['ca']; nh = 0
    if P['ca']: put([('f', lambda: check('pA', 'v34', 's56', 'K2_PA'), None), ('st', None, 8)], ca - 1, ca)
    while q_:
        dl, earl, item = q_[0]
        if GAP and burst > 0: gap += item; burst -= nld(item); q_.pop(0); continue
        while stores and stores[0] <= t: t += P['sc'] * dt; stores.pop(0)
        if P['ca'] and ca <= max(t, min(earl, ca)) and t < NS - P['qa'] and nh < 16:
            t = max(t, ca); item = loadh(nh); nh += 1
        else:
            q_.pop(0); t = max(t, earl)
            if t >= NS - P['qd']: late.append(dl - 1000); continue
        put(item, int(t), int(t + dt * (nld(item) - 1)) + 1)
        if 'dbg' in exp and dl < 1000: print(item[-1][2], 'issue', int(t), 'need', dl)
        t += dt * nld(item)
    for c, ch in enumerate(CH):
        b_ = [('wv', None, f'c{c}'), ('x', 's_barrier', None), rel([k for k in SPL if k % 7 in ch] + ([28] if c == len(CH) - 1 else []))] + ([('st', None, 5)] if c == 0 else [])
        if GAP and c == 0: fill[bar[0]] += gap + b_
        else: fill[bar[c]] += b_
    if 'dbg' in exp: print('late Wd', late, 'nh', nh, 'bar', bar, 'e0', e0, 'max fill', sorted(len(f) for f in fill)[-3:])
    for z, sl in enumerate(P['sx'].split(':') if P['sx'] else []): fill[int(sl)].append(('f', lambda z=z: st(8 + z, True), None))
    if 'noW!' in exp: fill = [[f for f in fl if not (f[0] == 'v' and f[2][0] in 'wd')] for fl in fill]; late = []
    if 'noD!' in exp: fill = [[f for f in fl if not (f[0] == 'v' and f[2][0] in 'd')] for fl in fill]; late = []
    if 'noX!' in exp: fill = [[f for f in fl if not (f[0] in ('v', 'wv') and f[2] in ('x1d', 'sd'))] for fl in fill]
    if 'noA!' in exp: fill = [[f for f in fl if not (f[0] == 'x' and f[1].startswith(('v_max', 'v_mul_f32', 'v_cvt', 'v_add_f32')))] for fl in fill]
    if 'noB!' in exp: fill = [[f for f in fl if not (f[0] == 'x' and f[1].startswith('s_barrier'))] for fl in fill]
    if 'noS!' in exp: fill = [[f for f in fl if not (f[0] in ('v', 'wv') and f[2] in ('hA',))] for fl in fill]
    emit([rdB(i) for i in range(AHEAD)] + wd_setup + x1s)
    started = set(); nb = AHEAD
    for i, (k, rt) in enumerate(seq):
        while nb <= i + 2 and nb < 116 and seq[nb][0] in released: emit([rdB(nb)]); nb += 1
        if 'noW!' not in exp: vm.wait(f'w{k}')
        lg.wait(f'b{i}')
        for m in range(2):
            d = GT[rt] + 16 * m; w = wreg(k) + 4 * m; b = breg(i)
            c = f'v[{d}:{d+15}]' if rt in started else '0'
            a(f'v_mfma_f32_32x32x16_bf16 v[{d}:{d+15}], a[{w}:{w+3}], v[{b}:{b+3}], {c}')
            if nb <= i + AHEAD and nb < 116 and seq[nb][0] in released: emit([rdB(nb)]); nb += 1
            emit(fill[2 * i + m])
        started.add(rt)
    st(7)
    flB = 'buffer_store_dword v35, v36, s[8:11], s57 offen sc1'
    e3 = epi(3, True, 'hB')
    if P['ord']:
        lw = sum([load_wd(k) for k in late[:P['oe']]], [])
        emit(fill[NS] + lw + e3)
        for k in late[P['oe']:]: emit(load_wd(k))
        late = []
        if P['ord'] == 1 and not SEN:
            emit(setflag('s57', 'hB')); st(9)
    else: emit(fill[NS] + e3)
    if not P['ca']:
        check('pA', 'v34', 's56', 'K2_PA', ['s_waitcnt vmcnt(0)', flB] if not SEN else [])
        st(8)
    stream = []
    for k in range(28):
        if k in late: stream.append((0, load_wd(k)))
        if k >= nh: stream.append((0, loadh(k)))
    if not SEN:
        stream.insert(max(len(stream) - P['pb'], P['w0']), (0, [('v', 'buffer_load_dword v37, v34, s[8:11], s57 offen sc1', 'pB')]))
        stream.append((P['cb'], [('f', lambda: check('pB', 'v34', 's57', 'K2_PB'), None), ('st', None, 11)]))
    stream += [(max(k - 3, P['cb']), loadh(28 + k)) for k in range(28)]
    def topup(win, s):
        while stream and stream[0][0] <= s and len(vm.tags) - 1 - vm.done < win: emit(stream.pop(0)[1])
    for _ in range(P['w0']): emit(stream.pop(0)[1])
    def reduce(ph):
        G2 = 192 + 32 * ph; gb = 40 + 8 * ph; xs = 56 if ph == 0 else 8; T = 20; ad = (5, 6, 7, 14) if ph else (32, 33, 38, 39)
        blk = lambda lam: G2 + 16 * (lam & 1) + 8 * (lam >> 1)
        def fma(r):
            if ph: return X_([f'v_pk_fma_f32 v[{T+2*i}:{T+1+2*i}], v[{r+2*i}:{r+2*i+1}], v[{gb+2*i}:{gb+2*i+1}], v[{T+2*i}:{T+1+2*i}]' for i in range(4)])
            return X_([f'v_fma_f32 v{T+i}, v{r+i}, v{gb+i}, v{T+i}' for i in range(8)])
        o1 = [('l', f'ds_write_b128 v{ad[lam-1]}, v[{blk(lam)+4*q}:{blk(lam)+4*q+3}] offset:{2048*(lam-1)+1024*q}', f'rw{ph}') for lam in (2, 1, 3) for q in range(2)]
        o0 = []
        for i in range(4): o0 += X_([f'v_lshlrev_b32 v{T+2*i}, 16, v{xs+i}', f'v_and_b32 v{T+1+2*i}, 0xffff0000, v{xs+i}'])
        o1 += fma(G2)
        o2 = [('wl', None, f'rw{ph}'), ('x', 's_barrier', None)]
        o2 += [('l', f'ds_read_b128 v[{G2+8+4*z}:{G2+11+4*z}], v{ad[3]} offset:{1024*z}', f'rr{ph}{z//2}') for z in range(6)]
        o3 = []
        for lam in range(3): o3 += [('wl', None, f'rr{ph}{lam}')] + fma(G2 + 8 + 8 * lam)
        o3 += X_([f'v_cvt_pk_bf16_f32 v{28+i}, v{T+2*i}, v{T+1+2*i}' for i in range(4)] + ['v_permlane32_swap_b32 v28, v30', 'v_permlane32_swap_b32 v29, v31'])
        o3 += [('v', f'buffer_store_dwordx4 v[28:31], v19, s[12:15], s{60+ph} offen{"" if ph else " sc1"}', 'out')]
        return o0, o1, o2, o3
    f2 = [[] for _ in range(113)]
    def put2(lst, s0, s1):
        k = len(lst); m = s1 - s0
        for i, x in enumerate(lst): f2[s0 + i * m // k].append(x)
    rA = reduce(0); rB = reduce(1)
    if not SEN and P['ord'] != 1: put2(setflag('s57', 'hB') + [('st', None, 9)], P['fb'], P['fb'] + 1)
    put2(X_([f'v_add_u32 v{d}, {RA}, v{r}' for d, r in zip((32, 33, 38, 39), (5, 6, 7, 14))]) + rA[0], 40, 50)
    put2(rA[1], 58, 64); put2(rA[2], 68, 72); put2(rA[3], 76, 88); put2(rB[0], 90, 96)
    emit(f2[0])
    grp = {0: 4, 4: 4, 8: 4, 12: 4, 16: 4, 20: 4, 24: 2, 26: 2}
    for s in range(56):
        ph, k = divmod(s, 28)
        if SEN and ph and k in grp:
            n = grp[k]
            while f'h{s+n-1}' not in vm.tags: emit(stream.pop(0)[1])
            vm.wait(f'h{s+n-1}')
            mx = [f'v_max_u32 v37, v{hreg(s)}, v{hreg(s)+2}'] + [f'v_max3_u32 v37, v37, v{hreg(s+z)}, v{hreg(s+z)+2}' for z in range(1, n)] + ['v_cmp_eq_u32 vcc, -1, v37']
            for x in mx: a(x)
            a('s_nop 1')
            a(f's_cbranch_vccnz K2_B{k}_S')
            a.label(f'K2_B{k}_OK')
            tail.extend([f'K2_B{k}_S:', 's_mov_b32 s36, 0', f's_add_u32 s49, s63, {1024*k}', f'K2_B{k}_L:'] +
                [f'buffer_load_dwordx4 v[{hreg(s+z)}:{hreg(s+z)+3}], v1, s[8:11], s49 offen offset:{1024*z} sc1' for z in range(n)] +
                (['s_add_u32 s95, s95, 1'] if stamps else []) +
                ['s_add_u32 s36, s36, 1', 's_waitcnt vmcnt(0)'] + mx + ['s_cmp_gt_u32 s36, 200000', f's_cbranch_scc1 K2_B{k}_OK', 's_nop 1',
                 f's_cbranch_vccnz K2_B{k}_L', f's_branch K2_B{k}_OK'])
        while f'h{s}' not in vm.tags: emit(stream.pop(0)[1])
        vm.wait(f'h{s}')
        if ph == 0 and '!' not in exp: vm.wait(f'd{k}')
        if k == 0: st(10 + 3 * ph)
        b = hreg(s); dr = dreg(k)
        for c in (1, 0):
            d = 192 + 32 * ph + 16 * c
            cc = '0' if k == 0 else f'v[{d}:{d+15}]'
            a(f'v_mfma_f32_32x32x16_bf16 v[{d}:{d+15}], a[{dr+4*c}:{dr+4*c+3}], v[{b}:{b+3}], {cc}')
            if c == 1 and 2 * s + 1 >= P['fb']: topup(P['win'], s)
            emit(f2[2 * s + 2 - c])
        if k == 27: st(12 + 2 * ph)
    emit(rB[1] + rB[2] + rB[3])
    if stamps:
        a('s_waitcnt vmcnt(0)')
        st(15)
        a('s_lshl_b32 s98, s2, 4')
        a('s_lshl_b32 s99, s3, 2')
        a('s_add_u32 s98, s98, s99')
        a(f's_add_u32 s98, s98, {WS_STAMP + 0x30000:#x}')
        a('v_mov_b32 v60, s95')
        a('v_mov_b32 v61, 0')
        a('buffer_store_dword v60, v61, s[8:11], s98 offen')
    if P['ma'] >= 0:
        a('s_cmp_lg_u32 s2, 0')
        a('s_cbranch_scc1 K2_END')
        a('s_waitcnt vmcnt(0)')
        adr = lambda o: WS_STAMP + (o >> 16) * 0x10000 + ((o >> 4) & 0xfff) * 128 + (o & 15) * 8
        a(f'v_mov_b32 v2, {adr(P["ma"]):#x}')
        a('buffer_load_dword v64, v2, s[8:11], 0 offen sc1')
        for i in range(4):
            a(f'v_add_u32 v2, {64*i}, v0')
            a(f'v_min_u32 v2, {P["mn"]-1}, v2')
            a('v_lshlrev_b32 v2, 7, v2')
            a(f'v_add_u32 v2, {adr(P["mb"]):#x}, v2')
            a(f'buffer_load_dword v{65+i}, v2, s[8:11], 0 offen sc1')
        a('s_waitcnt vmcnt(0)')
        for i in range(4): a(f'v_sub_u32 v{65+i}, v{65+i}, v64')
        a('v_max_i32 v65, v65, v66'); a('v_max_i32 v67, v67, v68'); a('v_max_i32 v64, v65, v67')
        a('s_mov_b32 s20, 0')
        for i in range(64):
            a(f'v_readlane_b32 s21, v64, {i}')
            a('s_max_i32 s20, s20, s21')
        a('s_memrealtime s[22:23]')
        a('s_min_u32 s20, s20, 5000')
        a(f's_lshl_b32 s20, s20, {P["ms"]}')
        a(f's_add_u32 s20, s20, {P["mc"]}')
        a('s_waitcnt lgkmcnt(0)')
        a.label('K2_SPIN')
        a('s_memrealtime s[24:25]')
        a('s_waitcnt lgkmcnt(0)')
        a('s_sub_u32 s24, s24, s22')
        a('s_cmp_lt_u32 s24, s20')
        a('s_cbranch_scc1 K2_SPIN')
    if 'DBG' in exp:
        a('s_cmp_lg_u32 s2, 0')
        a('s_cbranch_scc1 K2_END')
        a('s_load_dwordx2 s[12:13], s[0:1], 80')
        a('s_waitcnt vmcnt(0)')
        offs = [180*128, 0, 8, 16, 130*128+16, 0x10000, 0x10008, 0x10020, 0x10000+100*128+32, 0x20000, 0x20000+5*8, 0x20000+7*8, 0x20000+15*8]
        for i, o in enumerate(offs):
            a(f'v_mov_b32 v2, {WS_STAMP + o:#x}')
            a(f'buffer_load_dword v{64+i}, v2, s[8:11], 0 offen sc1')
        a('s_mov_b32 s14, 256')
        a('s_mov_b32 s15, 0x00020000')
        a('v_mov_b32 v2, 0')
        a('s_waitcnt vmcnt(0) lgkmcnt(0)')
        for i in range(1, len(offs)):
            a(f'v_sub_u32 v{64+i}, v{64+i}, v64')
            a(f'buffer_store_dword v{64+i}, v2, s[12:15], 0 offen offset:{4*i}')
    a.label('K2_END')
    a('s_endpgm')
    for t_ in tail:
        if t_.endswith(':'): a.label(t_[:-1])
        else: a(t_)
    return a
```

```python
from asmlib import *
from layout import *
from k0 import srd, rb16, stamp, w_rows
from tables import TB_FB, TB_FA, TB_TWI, TB_TWF

MODL = 16384
X1 = MODL + 8192
M2L = X1 + 256 * 144
UL = M2L + 4096
X2 = UL
K1_LDS = UL + 57344
ZERO = TB_TWF + 7 * 512

def inter(a, mf, va):
    n, k = len(mf), len(va)
    for i, m in enumerate(mf):
        a(m)
        for x in va[i * k // n:(i + 1) * k // n]: a(x)

def gen_k1(stamps=False, exp=''):
    if 'K1=' not in exp: exp += ',HU,HW,H2'
    EARLY = 4 if 'k1e' in exp else 0
    a = Asm()
    TV = (250, 251, 252)
    nst = 1 if stamps else 0
    a.label('k1_kernel')
    a(f's_cmp_ge_u32 s2, {K1_GRID}')
    a('s_cbranch_scc1 K1_END')
    a('s_load_dwordx2 s[16:17], s[0:1], 88')
    a('s_load_dwordx4 s[36:39], s[0:1], 32')
    a('s_load_dwordx2 s[40:41], s[0:1], 48')
    a('s_load_dwordx2 s[4:5], s[0:1], 0')
    a('v_lshrrev_b32 v1, 6, v0')
    a('v_and_b32 v0, 63, v0')
    a('v_readfirstlane_b32 s3, v1')
    a('v_lshlrev_b32 v1, 4, v0')
    a('v_and_b32 v2, 15, v0')
    a('v_lshrrev_b32 v3, 4, v0')
    a(f's_cmp_ge_u32 s2, {K1_NF}')
    a('s_cbranch_scc1 K1_PREP')
    if 'noF' in exp: a('s_endpgm')
    a('s_getpc_b64 s[42:43]')
    a.label('K1_PC')
    a('s_add_u32 s42, s42, k1_tbl-K1_PC')
    a('s_addc_u32 s43, s43, 0')
    srd(a, 44, 42, 16384)
    a('s_lshl_b32 s18, s3, 11')
    a('s_mov_b32 m0, s18')
    a('s_and_b32 s19, s2, 7')
    a('s_lshr_b32 s21, s2, 4')
    a('buffer_load_dwordx4 v1, s[44:47], s18 offen lds')
    a('buffer_load_dwordx4 v1, s[44:47], s18 offen offset:1024 lds')
    a('s_lshl_b32 s21, s21, 3')
    a('s_add_u32 s19, s19, s21')
    a('s_bfe_u32 s48, s2, 0x10003')
    a('s_sub_u32 s21, 64, s19')
    a('s_cmp_eq_u32 s19, 0')
    a('s_cselect_b32 s21, 32, s21')
    a('s_cmp_eq_u32 s48, 0')
    a('s_cselect_b32 s21, s19, s21')
    a('s_cmp_eq_u32 s2, 64')
    a('s_cselect_b32 s2, 64, s21')
    a('s_and_b32 s19, s19, 31')
    a('s_and_b32 s25, s2, 63')
    a('s_cmp_gt_u32 s25, 32')
    a('s_cselect_b32 s20, -1.0, 1.0')
    a('s_cmp_eq_u32 s19, 0')
    a('s_cselect_b32 s20, 0, s20')
    a('s_mul_i32 s19, s19, 57344')
    a('s_lshl_b32 s21, s3, 13')
    a('s_add_u32 s19, s19, s21')
    a(f's_add_u32 s19, s19, {WS_U:#x}')
    a(f's_add_u32 s23, s21, {UL}')
    a('s_lshl_b32 s48, s48, 12')
    a('s_xor_b32 s49, s48, 4096')
    a('s_add_u32 s22, s19, s49')
    a('s_add_u32 s19, s19, s48')
    a('s_add_u32 m0, s23, s48')
    a('s_waitcnt lgkmcnt(0)')
    srd(a, 28, 16, WS_SIZE)
    stamp(a, 1, 0, 28, stamps, tmp_v=TV)
    a('s_cmp_eq_u32 s3, 7')
    a('s_cbranch_scc1 K1_NOU')
    for q in range(4): a(f'buffer_load_dwordx4 v1, s[28:31], s19 offen offset:{1024*q} lds')
    a('s_add_u32 m0, s23, s49')
    for q in range(4): a(f'buffer_load_dwordx4 v1, s[28:31], s22 offen offset:{1024*q} lds')
    a('s_branch K1_U1')
    a.label('K1_NOU')
    a(f's_mov_b32 m0, {MODL}')
    a('s_mov_b32 s24, 4096')
    for q in range(4): a(f'buffer_load_dwordx4 v1, s[28:31], 0 offen offset:{1024*q} lds')
    a(f's_mov_b32 m0, {MODL+4096}')
    for q in range(2): a(f'buffer_load_dwordx4 v1, s[28:31], s24 offen offset:{1024*q} lds')
    a.label('K1_U1')
    UA, M2, CA, SA, GA, M2I, FA, TWF, FB, TWI, WW, DD, WP = 32, 64, 80, 96, 112, 116, 124, 132, 140, 164, 180, 216, 8
    a('v_lshlrev_b32 v13, 7, v2')
    a('v_add_u32 v13, s2, v13')
    a('s_lshr_b32 s27, s3, 1')
    a('s_lshl_b32 s27, s27, 3')
    a('s_and_b32 s21, s3, 1')
    a('s_add_u32 s27, s27, s21')
    a('v_lshl_add_u32 v14, v3, 1, s27')
    a('v_mul_u32_u24 v13, v13, v14')
    a('v_cvt_f32_u32 v13, v13')
    a('v_mul_f32 v13, 0x3a000000, v13')
    a('v_sin_f32 v17, v13')
    a('v_cos_f32 v18, v13')
    a('s_lshr_b32 s27, s3, 2')
    a('s_lshl_b32 s27, s27, 10')
    a('s_and_b32 s21, s3, 3')
    a('s_lshl_b32 s21, s21, 2')
    a('s_add_u32 s27, s27, s21')
    a('v_add_u32 v14, s27, v1')
    a('v_mul_f32 v19, s20, v17')
    a('v_mul_f32 v21, s20, v18')
    a('v_cvt_pk_bf16_f32 v15, v18, v19')
    a('v_cvt_pk_bf16_f32 v16, -v17, v21')
    a(f'ds_write_b32 v14, v15 offset:{M2L}')
    a(f'ds_write_b32 v14, v16 offset:{M2L+2048}')
    a('v_lshrrev_b32 v8, 3, v0')
    a('v_lshlrev_b32 v9, 8, v8')
    a('v_and_b32 v10, 3, v0')
    a('v_lshl_add_u32 v9, v10, 6, v9')
    a('v_bfe_u32 v10, v0, 2, 1')
    a('s_cmp_eq_u32 s25, 32')
    a('s_cselect_b32 s27, 1, 0')
    a('v_xor_b32 v10, s27, v10')
    a('v_lshl_add_u32 v9, v10, 3, v9')
    a('v_add_u32 v9, s23, v9')
    a('v_and_b32 v8, 3, v8')
    a('v_lshl_add_u32 v4, v8, 4, v9')
    for e in range(1, 4): a(f'v_xor_b32 v{4+e}, {16*e}, v4')
    a('s_lshl_b32 s27, s2, 15')
    a('s_lshl_b32 s21, s3, 12')
    a('s_add_u32 s27, s27, s21')
    a(f's_add_u32 s50, s27, {WS_WEFF:#x}')
    late = []
    late += [f'buffer_load_dwordx4 v[{WP+4*q}:{WP+4*q+3}], v1, s[28:31], s50 offen offset:{1024*q}' for q in range(4)]
    a('s_lshl_b32 s27, s3, 9')
    a('v_lshl_add_u32 v26, v2, 5, s27')
    a('s_lshl_b32 s27, s3, 8')
    a(f's_add_u32 s27, s27, {MODL}')
    a('v_lshl_add_u32 v28, v3, 4, s27')
    a('v_lshl_add_u32 v30, v2, 2, s27')
    a('s_cmp_eq_u32 s2, 0')
    a('s_cselect_b32 s27, 0, 99')
    a('v_cmp_eq_u32 vcc, s27, v2')
    a(f'v_mov_b32 v29, {ZERO}')
    a('v_lshl_add_u32 v24, v3, 6, v2')
    a('v_cndmask_b32 v29, v29, v28, vcc')
    a('v_mul_u32_u24 v24, 144, v24')
    a('s_lshl_b32 s27, s3, 4')
    a(f's_add_u32 s27, s27, {X1}')
    a('v_add_u32 v24, s27, v24')
    a('v_mul_u32_u24 v25, 144, v2')
    a('v_lshl_add_u32 v25, v3, 4, v25')
    a(f's_mul_i32 s27, s3, {32*144}')
    a(f's_add_u32 s27, s27, {X1}')
    a('v_add_u32 v25, s27, v25')
    if EARLY:
        a(f's_waitcnt vmcnt({EARLY})')
        for x in late: a(x)
        a('s_waitcnt vmcnt(4)')
    else:
        a('s_waitcnt vmcnt(0)')
        for x in late: a(x)
    a('s_cmp_eq_u32 s3, 7')
    a('s_cbranch_scc1 K1_W7')
    for d2l in range(4):
        for ks in range(2):
            for h in range(2):
                b = UA + 8 * d2l + 4 * ks + 2 * h
                a(f'ds_read_b64_tr_b16 v[{b}:{b+1}], v{4+d2l} offset:{4096*ks+2048*h}')
    a('s_waitcnt lgkmcnt(15)')
    a('s_barrier')
    stamp(a, 1, 1, 28, stamps, tmp_v=TV)
    def phase1(d2l):
        o = []
        for ks in range(2):
            for c in range(2):
                d = DD + 8 * d2l + 4 * c
                cc = '0' if ks == 0 else f'v[{d}:{d+3}]'
                o.append(f'v_mfma_f32_16x16x32_bf16 v[{d}:{d+3}], v[{UA+8*d2l+4*ks}:{UA+8*d2l+4*ks+3}], v[{M2+8*c+4*ks}:{M2+8*c+4*ks+3}], {cc}')
        return o
    VA = UA
    def modul(d2l):
        o = []; d = DD + 8 * d2l
        for p in range(2):
            o.append(f'v_pk_fma_f32 v[{d+2*p}:{d+2*p+1}], v[{d+2*p}:{d+2*p+1}], v[{CA+4*d2l+2*p}:{CA+4*d2l+2*p+1}], v[{SA+4*d2l+2*p}:{SA+4*d2l+2*p+1}]')
            o.append(f'v_pk_mul_f32 v[{d+4+2*p}:{d+5+2*p}], v[{d+4+2*p}:{d+5+2*p}], v[{CA+4*d2l+2*p}:{CA+4*d2l+2*p+1}]')
        return o
    def cvt4(dst, src):
        return [f'v_cvt_pk_bf16_f32 v{dst+p}, v{src+2*p}, v{src+2*p+1}' for p in range(4)]
    def dft16(src, d):
        return [f'v_mfma_f32_16x16x32_bf16 v[{d}:{d+3}], v[{src}:{src+3}], v[{FA+2}:{FA+5}], 0',
                f'v_mfma_f32_16x16x32_bf16 v[{d+4}:{d+7}], v[{src}:{src+3}], v[{FA}:{FA+3}], 0']
    def cmulc(d, e, c_, s_, selc, sels):
        o = []
        for p in range(2):
            re = f'v[{d+2*p}:{d+2*p+1}]'; im = f'v[{d+4+2*p}:{d+5+2*p}]'
            ore = f'v[{e+2*p}:{e+2*p+1}]'; oim = f'v[{e+4+2*p}:{e+5+2*p}]'
            o.append(f'v_pk_mul_f32 {ore}, {im}, {s_(p)} {sels}')
            o.append(f'v_pk_mul_f32 {oim}, {re}, {s_(p)} {sels}')
            o.append(f'v_pk_fma_f32 {ore}, {re}, {c_(p)}, {ore} {selc}')
            o.append(f'v_pk_fma_f32 {oim}, {im}, {c_(p)}, {oim} {selc} neg_lo:[0,0,1] neg_hi:[0,0,1]')
        return o
    E = 64
    P = 96
    fbread = [f'ds_read_b128 v[{FB+4*q}:{FB+4*q+3}], v1 offset:{TB_FB+1024*q}' for q in range(6)]
    for q in range(4): a(f'ds_read_b128 v[{M2+4*q}:{M2+4*q+3}], v1 offset:{M2L+1024*q}')
    rd = []
    for d2l in range(4):
        rd.append(f'ds_read_b128 v[{CA+4*d2l}:{CA+4*d2l+3}], v28 offset:{1792+64*d2l}')
        rd.append(f'ds_read_b128 v[{SA+4*d2l}:{SA+4*d2l+3}], v29 offset:{64*d2l}')
    for q in range(2): rd.append(f'ds_read_b128 v[{FA+4*q}:{FA+4*q+3}], v1 offset:{TB_FA+1024*q}')
    for q in range(2): rd.append(f'ds_read_b128 v[{TWF+4*q}:{TWF+4*q+3}], v26 offset:{TB_TWF+16*q}')
    for d2l in range(4): rd.append(f'ds_read_b32 v{GA+d2l}, v30 offset:{3584+64*d2l}')
    rd += fbread
    rd += ['v_lshrrev_b32 v27, 2, v2', 'v_mul_u32_u24 v27, 28672, v27', 'v_and_b32 v31, 3, v2', 'v_lshl_add_u32 v27, v31, 4, v27',
           f'v_mul_u32_u24 v31, {4*114688}, v3', 'v_add_u32 v27, v27, v31',
           'v_lshlrev_b32 v28, 6, v2', 'v_lshl_add_u32 v28, v3, 4, v28', 's_mul_i32 s27, s3, 4160', f's_add_u32 s27, s27, {X2}', 'v_add_u32 v28, s27, v28']
    a('s_waitcnt lgkmcnt(0)')
    inter(a, phase1(0) + phase1(1) + phase1(2) + phase1(3), rd)
    a('s_waitcnt lgkmcnt(14)')
    for d2l in range(4):
        for x in modul(d2l): a(x)
    a('s_waitcnt lgkmcnt(10)')
    for x in cvt4(VA, DD): a(x)
    for d2l in range(4):
        inter(a, dft16(VA + 8 * d2l, DD + 8 * d2l), cvt4(VA + 8 * d2l + 8, DD + 8 * d2l + 8) if d2l < 3 else
              ['s_lshr_b32 s24, s2, 1', 's_and_b32 s24, s24, 31', 's_and_b32 s27, s2, 1', 's_lshl_b32 s27, s27, 5', 's_add_u32 s24, s24, s27',
               's_lshl_b32 s24, s24, 6', 's_lshl_b32 s27, s3, 12', 's_add_u32 s24, s24, s27'])
    for d2l in range(4):
        tw = f'v[{TWF+2*d2l}:{TWF+2*d2l+1}]'
        for x in cmulc(DD + 8 * d2l, E + 8 * d2l, lambda p: tw, lambda p: tw, 'op_sel_hi:[1,0,1]', 'op_sel:[0,1] op_sel_hi:[1,1]'): a(x)
    for i in range(4):
        a(f'v_cvt_pk_bf16_f32 v{P+4*i+0}, v{E+i}, v{E+8+i}')
        a(f'v_cvt_pk_bf16_f32 v{P+4*i+1}, v{E+16+i}, v{E+24+i}')
        a(f'v_cvt_pk_bf16_f32 v{P+4*i+2}, v{E+4+i}, v{E+12+i}')
        a(f'v_cvt_pk_bf16_f32 v{P+4*i+3}, v{E+20+i}, v{E+28+i}')
        a(f'ds_write_b128 v24, v[{P+4*i}:{P+4*i+3}] offset:{2304*i}')
    a('s_branch K1_J1')
    a.label('K1_W7')
    a('s_waitcnt lgkmcnt(0)')
    a('s_barrier')
    for q in range(4): a(f'v_mov_b32 v{P+q}, 0')
    a(f'v_mov_b32 v27, {OOB:#x}')
    for i in range(4): a(f'ds_write_b128 v24, v[{P}:{P+3}] offset:{2304*i}')
    for x in fbread: a(x)
    a.label('K1_J1')
    a('s_waitcnt lgkmcnt(0)')
    a('s_barrier')
    stamp(a, 1, 2, 28, stamps, tmp_v=TV)
    BX = 32
    for kk in range(2):
        for ks in range(2):
            b = BX + 8 * kk + 4 * ks
            a(f'ds_read_b128 v[{b}:{b+3}], v25 offset:{2304*kk+64*ks}')
    for q in range(4): a(f'ds_read_b128 v[{TWI+4*q}:{TWI+4*q+3}], v1 offset:{TB_TWI+1024*q}')
    def dft28(kk, data, data_is_a):
        o = []
        for ks in range(2):
            for t in range(2):
                for c in range(2):
                    d = DD + 16 * kk + 8 * t + 4 * c
                    f = FB + 6 * (2 * t + ks) + (2 if c == 0 else 0)
                    b = data + 8 * kk + 4 * ks
                    cc = '0' if ks == 0 else f'v[{d}:{d+3}]'
                    A, B = (b, f) if data_is_a else (f, b)
                    o.append(f'v_mfma_f32_16x16x32_bf16 v[{d}:{d+3}], v[{A}:{A+3}], v[{B}:{B+3}], {cc}')
        return o
    def wunp(kk):
        o = []
        for t in range(2):
            for i in range(4):
                src = WP + 8 * kk + 4 * t + i; w = WW + 16 * kk + 8 * t
                o.append(f'v_lshlrev_b32 v{w+i}, 16, v{src}')
                o.append(f'v_and_b32 v{w+4+i}, s21, v{src}')
        return o
    YA = 48
    def wmul(kk):
        o = []
        for t in range(2):
            d = DD + 16 * kk + 8 * t; e = E + 16 * kk + 8 * t; wr = WW + 16 * kk + 8 * t; wi = wr + 4
            for p in range(2):
                xr = f'v[{d+2*p}:{d+2*p+1}]'; xi = f'v[{d+4+2*p}:{d+5+2*p}]'
                Wr = f'v[{wr+2*p}:{wr+2*p+1}]'; Wi = f'v[{wi+2*p}:{wi+2*p+1}]'
                ore = f'v[{e+2*p}:{e+2*p+1}]'; oim = f'v[{e+4+2*p}:{e+5+2*p}]'
                o.append(f'v_pk_mul_f32 {ore}, {xi}, {Wi}')
                o.append(f'v_pk_mul_f32 {oim}, {xr}, {Wi}')
                o.append(f'v_pk_fma_f32 {ore}, {xr}, {Wr}, {ore} neg_lo:[0,0,1] neg_hi:[0,0,1]')
                o.append(f'v_pk_fma_f32 {oim}, {xi}, {Wr}, {oim} neg_lo:[1,0,1] neg_hi:[1,0,1]')
        return o
    m2i = ['v_lshlrev_b32 v12, 9, v3', 'v_add_u32 v12, s2, v12', 'v_mul_u32_u24 v12, v12, v2', 'v_cvt_f32_u32 v12, v12',
           'v_mul_f32 v12, 0x3a000000, v12', 'v_cvt_f32_u32 v31, v2', 'v_mul_f32 v31, 0x3d800000, v31']
    for j in range(4):
        m2i += [f'v_sin_f32 v{4+j}, v12', f'v_cos_f32 v{8+j}, v12']
        if j < 3: m2i.append('v_add_f32 v12, v12, v31')
    m2i2 = [f'v_cvt_pk_bf16_f32 v{M2I+0}, -v4, -v5', f'v_cvt_pk_bf16_f32 v{M2I+1}, -v6, -v7', f'v_cvt_pk_bf16_f32 v{M2I+2}, v8, v9',
            f'v_cvt_pk_bf16_f32 v{M2I+3}, v10, v11', f'v_cvt_pk_bf16_f32 v{M2I+4}, v4, v5', f'v_cvt_pk_bf16_f32 v{M2I+5}, v6, v7']
    a('s_mov_b32 s21, 0xffff0000')
    a('v_mul_u32_u24 v26, 1040, v2')
    a('v_lshl_add_u32 v26, v3, 4, v26')
    a('s_lshl_b32 s27, s3, 7')
    a(f's_add_u32 s27, s27, {X2}')
    a('v_add_u32 v26, s27, v26')
    a(f's_waitcnt vmcnt({nst}) lgkmcnt(6)')
    inter(a, dft28(0, BX, False), wunp(0))
    a('s_waitcnt lgkmcnt(4)')
    inter(a, dft28(1, BX, False), wunp(1))
    for x in wmul(0) + wmul(1): a(x)
    for x in cvt4(YA, E) + cvt4(YA + 4, E + 8): a(x)
    inter(a, dft28(0, YA, True), cvt4(YA + 8, E + 16) + cvt4(YA + 12, E + 24) + m2i[:7])
    inter(a, dft28(1, YA, True), m2i[7:])
    a('s_waitcnt lgkmcnt(0)')
    P2 = 32
    for kk in range(2):
        for t in range(2):
            c_ = lambda p: f'v[{TWI+8*t+2*p}:{TWI+8*t+2*p+1}]'
            s_ = lambda p: f'v[{TWI+8*t+4+2*p}:{TWI+8*t+5+2*p}]'
            e = E + 16 * kk + 8 * t; q = P2 + 8 * kk + 4 * t
            for x in cmulc(DD + 16 * kk + 8 * t, e, c_, s_, '', '') + cvt4(q, e): a(x)
            a(f'ds_write_b128 v26, v[{q}:{q+3}] offset:{16640*t+64*kk}')
    for x in m2i2: a(x)
    for i in range(4): a(f's_add_u32 s{60+i}, s24, {WS_TP + i*114688:#x}')
    a('s_waitcnt lgkmcnt(0)')
    a('s_barrier')
    a('s_cmp_eq_u32 s3, 7')
    a('s_cbranch_scc1 K1_END')
    stamp(a, 1, 3, 28, stamps, tmp_v=TV)
    ZA = 48
    for d2l in range(4):
        a(f'ds_read_b128 v[{ZA+4*d2l}:{ZA+4*d2l+3}], v28 offset:{1040*d2l}')
    ZB = 32
    def ph3(d2l):
        e = E + 8 * d2l
        return [f'v_mfma_f32_16x16x32_bf16 v[{e}:{e+3}], v[{M2I+2}:{M2I+5}], v[{ZB+4*d2l}:{ZB+4*d2l+3}], 0',
                f'v_mfma_f32_16x16x32_bf16 v[{e+4}:{e+7}], v[{M2I}:{M2I+3}], v[{ZB+4*d2l}:{ZB+4*d2l+3}], 0']
    def scl(d2l):
        e = E + 8 * d2l; gp = GA + (d2l & ~1)
        sel = 'op_sel_hi:[1,0]' if d2l % 2 == 0 else 'op_sel:[0,1] op_sel_hi:[1,1]'
        return [f'v_pk_mul_f32 v[{e+2*p}:{e+2*p+1}], v[{e+2*p}:{e+2*p+1}], v[{gp}:{gp+1}] {sel}' for p in range(4)]
    O = 48
    for d2l in range(4):
        a(f's_waitcnt lgkmcnt({3-d2l})')
        for x in dft16(ZA + 4 * d2l, DD + 8 * d2l): a(x)
    for x in cvt4(ZB, DD): a(x)
    for d2l in range(4):
        inter(a, ph3(d2l), cvt4(ZB + 4 * d2l + 4, DD + 8 * d2l + 8) if d2l < 3 else [])
    for d2l in range(4):
        for x in scl(d2l): a(x)
    if 'SP' in exp:
        a('s_memrealtime s[70:71]')
        a('s_waitcnt lgkmcnt(0)')
        a.label('K1_SPIN')
        a('s_memrealtime s[72:73]')
        a('s_waitcnt lgkmcnt(0)')
        a('s_sub_u32 s72, s72, s70')
        a(f"s_cmp_lt_u32 s72, {100 * exp.count('SP')}")
        a('s_cbranch_scc1 K1_SPIN')
    a('s_cmp_eq_u32 s25, 0')
    a('s_cbranch_scc1 K1_SHORT')
    for i in range(4):
        a(f'v_cvt_pk_bf16_f32 v{O+4*i+0}, v{E+i}, v{E+8+i}')
        a(f'v_cvt_pk_bf16_f32 v{O+4*i+1}, v{E+16+i}, v{E+24+i}')
        a(f'v_cvt_pk_bf16_f32 v{O+4*i+2}, v{E+4+i}, v{E+12+i}')
        a(f'v_cvt_pk_bf16_f32 v{O+4*i+3}, v{E+20+i}, v{E+28+i}')
        a(f'buffer_store_dwordx4 v[{O+4*i}:{O+4*i+3}], v27, s[28:31], s{60+i} offen')
    if stamps:
        a('s_waitcnt vmcnt(0)')
        stamp(a, 1, 4, 28, stamps, tmp_v=TV)
    a('s_endpgm')
    a.label('K1_SHORT')
    a('s_lshr_b32 s24, s2, 3')
    a('v_add_u32 v27, s24, v27')
    for i in range(4):
        a(f'v_cvt_pk_bf16_f32 v{O+4*i+0}, v{E+i}, v{E+8+i}')
        a(f'v_cvt_pk_bf16_f32 v{O+4*i+1}, v{E+16+i}, v{E+24+i}')
        a(f'buffer_store_dwordx2 v[{O+4*i}:{O+4*i+1}], v27, s[28:31], s{60+i} offen')
    if stamps:
        a('s_waitcnt vmcnt(0)')
        stamp(a, 1, 4, 28, stamps, tmp_v=TV)
    a('s_endpgm')
    a.label('K1_PREP')
    if 'noP' in exp: a('s_endpgm')
    a(f's_cmp_lt_u32 s2, {K1_W0}')
    a('s_cbranch_scc1 K1_END')
    a('s_lshl_b32 s18, s3, 12')
    a('s_mov_b32 m0, s18')
    a('v_and_b32 v4, 3, v0')
    a('v_lshrrev_b32 v5, 2, v2')
    a('v_and_b32 v6, 1, v3')
    a('v_lshrrev_b32 v7, 5, v0')
    a('s_waitcnt lgkmcnt(0)')
    srd(a, 28, 16, WS_SIZE)
    if 'RG' in exp: a(f's_load_dword s55, s[16:17], {WS_REG:#x}')
    a(f's_cmp_ge_u32 s2, {K1_D0}')
    a('s_cbranch_scc1 K1_WD')
    a(f's_sub_u32 s19, s2, {K1_W0}')
    if 'HU' in exp:
        a('s_and_b32 s20, s19, -8')
        a('s_add_u32 s20, s20, s3')
        a('s_mul_i32 s21, s20, 147')
        a('s_lshr_b32 s21, s21, 12')
        a(f's_mul_i32 s21, s21, {8*57344 - 28*2048}')
        a('s_lshl_b32 s20, s20, 11')
        a('s_add_u32 s21, s21, s20')
        a('s_and_b32 s20, s19, 7')
        a('s_mul_i32 s20, s20, 57344')
        a('s_add_u32 s21, s21, s20')
        a(f's_add_u32 s21, s21, {WS_U:#x}')
        a('buffer_load_dwordx4 v[200:203], v1, s[28:31], s21 offen offset:1024')
        a('buffer_load_dwordx4 v[204:207], v1, s[28:31], s21 offen')
    XS, XB = 912, 40960
    srd(a, 12, 4, NB_X)
    a('s_lshr_b32 s50, s19, 2')
    a('s_and_b32 s51, s19, 3')
    a('s_lshr_b32 s20, s51, 1')
    a('s_lshl_b32 s20, s20, 5')
    a('s_and_b32 s21, s51, 1')
    a('s_add_u32 s20, s20, s21')
    a('s_lshr_b32 s21, s3, 2')
    a('s_lshl_b32 s21, s21, 6')
    a('s_add_u32 s20, s20, s21')
    a('s_and_b32 s21, s3, 3')
    a('s_lshl_b32 s21, s21, 3')
    a('s_add_u32 s20, s20, s21')
    a('s_lshl_b32 s20, s20, 4')
    a('s_add_u32 s20, s20, s50')
    a('s_mul_i32 s52, s20, 896')
    a('s_cmp_lt_u32 s19, 64')
    a('s_cselect_b32 s52, s52, 0')
    a('s_cselect_b32 s14, s14, 0')
    a('s_cselect_b32 s54, 1, 0')
    a(f's_mul_i32 s53, s3, {4*XS}')
    def xload():
        a(f's_add_u32 m0, s53, {XB}')
        a('s_mov_b32 exec_hi, 0x00ffffff')
        for r in range(4):
            a('buffer_load_dwordx4 v1, s[12:15], s52 offen nt lds')
            if r < 3:
                a(f's_add_u32 m0, m0, {XS}')
                a('s_add_u32 s52, s52, 28672')
        a('s_mov_b32 exec_hi, -1')
    a('s_cmp_ge_u32 s19, 56')
    a('s_cselect_b32 s20, 1, 0')
    a('s_cselect_b32 s8, s38, s36')
    a('s_cselect_b32 s9, s39, s37')
    a(f's_mov_b32 s10, {NB_WG:#x}')
    a('s_mov_b32 s11, 0x00020000')
    a('s_mul_i32 s21, s20, 56')
    a('s_sub_u32 s19, s19, s21')
    a('s_and_b32 s21, s19, 1')
    a('s_lshr_b32 s19, s19, 1')
    a('s_mul_i32 s22, s19, 116')
    a('s_add_u32 s22, s22, s20')
    a('s_lshl_b32 s22, s22, 10')
    a(f's_add_u32 s22, s22, {WS_WF:#x}')
    if 'RG' in exp:
        a('s_waitcnt lgkmcnt(0)')
        a('s_and_b32 s55, s55, 0x0f800000')
        a('s_add_u32 s22, s22, s55')
    a('s_cmp_eq_u32 s3, 7')
    a('s_cbranch_scc1 K1_WF_FIN')
    a('v_lshrrev_b32 v8, 3, v0')
    a('v_mul_u32_u24 v8, 3584, v8')
    a('v_and_b32 v9, 7, v0')
    a('v_lshl_add_u32 v8, v9, 4, v8')
    a('s_mul_i32 s23, s21, 7')
    a('s_add_u32 s23, s23, s3')
    a(f's_mul_i32 s23, s23, {32*3584}')
    a('s_lshl_b32 s24, s19, 7')
    a('s_add_u32 s23, s23, s24')
    if 'HU' in exp: a('s_waitcnt vmcnt(0)')
    if 'HB' in exp: a('s_barrier')
    for i in range(4):
        a('buffer_load_dwordx4 v8, s[8:11], s23 offen nt lds')
        if i < 3:
            a('s_add_u32 m0, m0, 1024')
            a(f's_add_u32 s23, s23, {8*3584}')
    stamp(a, 1, 0, 28, stamps, tmp_v=TV)
    a('s_and_b32 s23, s3, 1')
    a('s_mul_i32 s23, s23, 56')
    a('s_lshr_b32 s24, s3, 1')
    a('s_lshl_b32 s24, s24, 3')
    a('s_add_u32 s23, s23, s24')
    a('s_cmp_eq_u32 s3, 6')
    a('s_cselect_b32 s24, 56, 28')
    a('s_cselect_b32 s25, 28, 4')
    a('v_mul_u32_u24 v9, s24, v7')
    a('v_add_u32 v9, s23, v9')
    a('v_add_u32 v10, v9, v5')
    a('v_lshlrev_b32 v10, 7, v10')
    a('v_lshl_add_u32 v10, v6, 5, v10')
    a('v_lshl_add_u32 v10, v4, 3, v10')
    a('s_lshl_b32 s26, s25, 7')
    a('v_add_u32 v11, s26, v10')
    a('s_mul_i32 s26, s21, 896')
    a('v_lshl_add_u32 v9, v9, 2, s26')
    a('s_lshl_b32 s26, s25, 2')
    a('v_add_u32 v8, s26, v9')
    for q in range(4): a(f'v_mov_b32 v{12+q}, 0x3f803f80')
    a('s_mul_i32 s24, s21, 14')
    a('s_add_u32 s24, s24, s3')
    a('s_lshl_b32 s24, s24, 11')
    a('s_add_u32 s24, s24, s22')
    for z in range(1, 4): a(f's_add_u32 s{31+z}, s24, {7*2048*(z>>1) + 58*1024*(z&1)}')
    a('v_cmp_gt_u32 vcc, 32, v0')
    a('s_waitcnt vmcnt(0)')
    if 'XE' in exp: xload()
    a('s_barrier')
    stamp(a, 1, 1, 28, stamps, tmp_v=TV)
    ML = 28672
    CB, SBF, RW, SBP, AB, AC, SC = 32, 48, 64, 16, 96, 128, 80
    for wq in range(2):
        a(f'ds_read_b128 v[{CB+8*wq}:{CB+8*wq+3}], v9 offset:{ML+1792+448*wq}')
        a(f'ds_read_b128 v[{CB+8*wq+4}:{CB+8*wq+7}], v8 offset:{ML+1792+448*wq}')
        for j in range(2):
            z = 2 * wq + j
            a(f'ds_read_b64_tr_b16 v[{RW+4*z}:{RW+4*z+1}], v10 offset:{14336*wq+64*j}')
            a(f'ds_read_b64_tr_b16 v[{RW+4*z+2}:{RW+4*z+3}], v11 offset:{14336*wq+64*j}')
    for wq in range(2):
        a(f'ds_read_b128 v[{SBF+8*wq}:{SBF+8*wq+3}], v9 offset:{ML+448*wq}')
        a(f'ds_read_b128 v[{SBF+8*wq+4}:{SBF+8*wq+7}], v8 offset:{ML+448*wq}')
    UP = 160
    if 'XE' not in exp: xload()
    for z in range(4):
        wq, j = z >> 1, z & 1
        a(f's_waitcnt lgkmcnt({(12, 10, 6, 4)[z]})')
        for p in range(4):
            u = UP + 2 * p
            a(f'v_lshlrev_b32 v{u}, 16, v{RW+4*z+p}')
            a(f'v_and_b32 v{u+1}, 0xffff0000, v{RW+4*z+p}')
            a(f'v_pk_mul_f32 v[{u}:{u+1}], v[{u}:{u+1}], v[{CB+8*wq+2*p}:{CB+8*wq+2*p+1}]')
            a(f'v_cvt_pk_bf16_f32 v{SC+4*z+p}, v{u}, v{u+1}')
        a(f'buffer_store_dwordx4 v[{SC+4*z}:{SC+4*z+3}], v1, s[28:31], s{31+z if z else 24} offen sc1' if 'noWF' not in exp else 'buffer_load_dword v210, v1, s[28:31], 0 offen')
        d = AC + 16 * j
        a(f'v_mfma_f32_32x32x16_bf16 v[{d}:{d+15}], v[12:15], v[{SC+4*z}:{SC+4*z+3}], {"0" if wq == 0 else f"v[{d}:{d+15}]"}')
    a('s_waitcnt lgkmcnt(0)')
    for p in range(8): a(f'v_cvt_pk_bf16_f32 v{SBP+p}, v{SBF+2*p}, v{SBF+2*p+1}')
    for z in range(4):
        wq, j = z >> 1, z & 1; d = AB + 16 * j
        a(f'v_mfma_f32_32x32x16_bf16 v[{d}:{d+15}], v[{SBP+4*wq}:{SBP+4*wq+3}], v[{RW+4*z}:{RW+4*z+3}], {"0" if wq == 0 else f"v[{d}:{d+15}]"}')
    RED = 32768
    a('s_lshl_b32 s24, s3, 9')
    a('v_lshl_add_u32 v11, v0, 3, s24')
    a(f'v_cndmask_b32 v12, v{AC+16}, v{AC}, vcc')
    a(f'v_cndmask_b32 v13, v{AB+16}, v{AB}, vcc')
    a(f'ds_write_b64 v11, v[12:13] offset:{RED}')
    a(f'v_mul_u32_u24 v11, {XS}, v2')
    a('v_mul_u32_u24 v14, 56, v3')
    a('s_lshl_b32 s25, s3, 3')
    a('v_add3_u32 v11, v11, v14, s25')
    a(f's_mul_i32 s26, s50, {4*28672}')
    a('s_lshl_b32 s25, s3, 12')
    a('s_add_u32 s26, s26, s25')
    a('s_lshl_b32 s25, s51, 10')
    a('s_add_u32 s26, s26, s25')
    a(f's_add_u32 s26, s26, {WS_XF:#x}')
    a('s_waitcnt vmcnt(4) lgkmcnt(0)')
    a('s_barrier')
    a('s_cmp_eq_u32 s54, 0')
    a('s_cbranch_scc1 K1_END')
    for w in range(4):
        for hi in range(2):
            a(f'ds_read_b64 v[{32+4*w+2*hi}:{33+4*w+2*hi}], v11 offset:{XB + 224*w + 16*XS*hi}')
    for w in range(4):
        a(f's_waitcnt lgkmcnt({2*(3-w)})')
        a(f'buffer_store_dwordx4 v[{32+4*w}:{35+4*w}], v1, s[28:31], s26 offen sc1')
        if w < 3: a('s_add_u32 s26, s26, 28672')
    if stamps:
        a('s_waitcnt vmcnt(0)')
        stamp(a, 1, 5, 28, stamps, tmp_v=TV)
    a('s_endpgm')
    a.label('K1_WF_FIN')
    a(f's_mov_b32 s23, {WS_MOD + 3*1792}')
    for q in range(4): a(f'buffer_load_dwordx4 v1, s[28:31], s23 offen offset:{1024*q} lds')
    a('v_lshlrev_b32 v11, 3, v0')
    a('v_and_b32 v12, 31, v0')
    a('v_lshlrev_b32 v12, 4, v12')
    a(f'v_mul_u32_u24 v13, {58*1024}, v7')
    a('v_add_u32 v12, v12, v13')
    a('s_lshl_b32 s21, s21, 9')
    a('s_add_u32 s22, s22, s21')
    a(f's_add_u32 s22, s22, {28*2048}')
    a('v_mov_b32 v31, 0')
    a('s_waitcnt vmcnt(0)')
    if 'HB' in exp: a('s_barrier')
    a('s_barrier')
    xload()
    a('s_waitcnt vmcnt(0)')
    a('s_barrier')
    for w in range(7):
        a(f'ds_read_b64 v[{16+2*w}:{17+2*w}], v11 offset:{RED+512*w}')
    a('s_waitcnt lgkmcnt(0)')
    for d_, s_ in ((16, 18), (20, 22), (24, 26), (16, 20), (24, 28), (16, 24)):
        a(f'v_pk_add_f32 v[{d_}:{d_+1}], v[{d_}:{d_+1}], v[{s_}:{s_+1}]')
    a('v_cvt_pk_bf16_f32 v20, v16, v17')
    a('v_lshlrev_b32 v22, 16, v20')
    a('v_and_b32 v23, 0xffff0000, v20')
    a('v_pk_add_f32 v[16:17], v[16:17], v[22:23] neg_lo:[0,1] neg_hi:[0,1]')
    a('v_cvt_pk_bf16_f32 v21, v16, v17')
    a('v_lshlrev_b32 v24, 16, v21')
    a('v_and_b32 v25, 0xffff0000, v21')
    a('v_pk_add_f32 v[16:17], v[16:17], v[24:25] neg_lo:[0,1] neg_hi:[0,1]')
    a('v_cvt_pk_bf16_f32 v28, v22, v24')
    a('v_cvt_pk_bf16_f32 v29, v16, v23')
    a('v_cvt_pk_bf16_f32 v30, v25, v17')
    a('buffer_store_dwordx4 v[28:31], v12, s[28:31], s22 offen sc1')
    if stamps:
        a('s_waitcnt vmcnt(0)')
        stamp(a, 1, 4, 28, stamps, tmp_v=TV)
    a('s_endpgm')
    a.label('K1_WD')
    a(f's_sub_u32 s19, s2, {K1_D0}')
    if 'HW' in exp:
        a('s_and_b32 s20, s19, 7')
        a('s_lshr_b32 s21, s3, 1')
        a('s_lshl_b32 s21, s21, 3')
        a('s_add_u32 s20, s20, s21')
        a('s_sub_u32 s21, 64, s20')
        a('s_cmp_eq_u32 s20, 0')
        a('s_cselect_b32 s21, 32, s21')
        a('s_bitcmp0_b32 s3, 0')
        a('s_cselect_b32 s21, s20, s21')
        a('s_lshl_b32 s21, s21, 15')
        a('s_lshr_b32 s22, s19, 3')
        a('s_lshl_b32 s22, s22, 12')
        a('s_add_u32 s21, s21, s22')
        a(f's_add_u32 s21, s21, {WS_WEFF:#x}')
        for q in range(4): a(f'buffer_load_dwordx4 v[{64+4*q}:{67+4*q}], v1, s[28:31], s21 offen offset:{1024*q}')
    srd(a, 8, 40, NB_WG)
    a('s_mul_i32 s20, s19, 37')
    a('s_lshr_b32 s20, s20, 8')
    a('s_mul_i32 s21, s20, 7')
    a('s_add_u32 s22, s21, s3')
    a('s_sub_u32 s21, s19, s21')
    a(f's_mul_i32 s23, s22, {32*896}')
    a('s_lshl_b32 s24, s21, 7')
    a('s_add_u32 s23, s23, s24')
    a('v_lshrrev_b32 v8, 3, v0')
    a('v_mul_u32_u24 v8, 896, v8')
    a('v_and_b32 v9, 7, v0')
    a('v_lshl_add_u32 v8, v9, 4, v8')
    a('v_lshl_add_u32 v10, v7, 2, v5')
    a('v_lshlrev_b32 v10, 7, v10')
    a('v_lshl_add_u32 v10, v6, 5, v10')
    a('v_lshl_add_u32 v10, v4, 3, v10')
    a('v_add_u32 v10, s18, v10')
    a('s_mul_i32 s24, s21, 112')
    a('s_lshl_b32 s25, s22, 1')
    a('s_add_u32 s24, s24, s25')
    a('s_lshl_b32 s24, s24, 11')
    a(f's_add_u32 s24, s24, {WS_WDF:#x}')
    if 'RG' in exp:
        a('s_waitcnt lgkmcnt(0)')
        a('s_and_b32 s55, s55, 0x0f800000')
        a('s_add_u32 s24, s24, s55')
    a('s_waitcnt vmcnt(0)')
    if 'H2' in exp: a('s_barrier')
    a('s_cmp_eq_u32 s3, 7')
    a('s_cbranch_scc1 K1_END')
    a(f's_cmp_ge_u32 s19, {K1_ND}')
    a('s_cbranch_scc1 K1_END')
    for i in range(4):
        a('buffer_load_dwordx4 v8, s[8:11], s23 offen nt lds')
        if i < 3:
            a('s_add_u32 m0, m0, 1024')
            a(f's_add_u32 s23, s23, {8*896}')
    stamp(a, 1, 0, 28, stamps, tmp_v=TV)
    a('s_waitcnt vmcnt(0)')
    for ks2 in range(2):
        for ct in range(2):
            for q in range(2):
                b = 16 + 8 * ks2 + 4 * ct + 2 * q
                a(f'ds_read_b64_tr_b16 v[{b}:{b+1}], v10 offset:{2048*ks2+1024*q+64*ct}')
    for z in range(4 if 'noWD' not in exp else 0):
        a(f's_waitcnt lgkmcnt({2*(3-z)})')
        a(f'buffer_store_dwordx4 v[{16+4*z}:{19+4*z}], v1, s[28:31], s24 offen offset:{1024*z} sc1')
    if stamps:
        a('s_waitcnt vmcnt(0)')
        stamp(a, 1, 4, 28, stamps, tmp_v=TV)
    a.label('K1_END')
    a('s_endpgm')
    return a
```

```python
from asmlib import *
from layout import *
from k0 import srd, rb16, stamp, w_rows
from tables import TB_FB, TB_FA, TB_TWI, TB_TWF

MODL = 16384
X1 = MODL + 8192
M2L = X1 + 256 * 144
UL = M2L + 4096
X2 = UL
K1_LDS = UL + 57344
ZERO = TB_TWF + 7 * 512

def inter(a, mf, va):
    n, k = len(mf), len(va)
    for i, m in enumerate(mf):
        a(m)
        for x in va[i * k // n:(i + 1) * k // n]: a(x)

def gen_k1(stamps=False, exp=''):
    if 'K1=' not in exp: exp += ',HU,HW,H2'
    EARLY = 4 if 'k1e' in exp else 0
    a = Asm()
    TV = (250, 251, 252)
    nst = 1 if stamps else 0
    a.label('k1_kernel')
    a(f's_cmp_ge_u32 s2, {K1_GRID}')
    a('s_cbranch_scc1 K1_END')
    a('s_load_dwordx2 s[16:17], s[0:1], 88')
    a('s_load_dwordx4 s[36:39], s[0:1], 32')
    a('s_load_dwordx2 s[40:41], s[0:1], 48')
    a('s_load_dwordx2 s[4:5], s[0:1], 0')
    a('v_lshrrev_b32 v1, 6, v0')
    a('v_and_b32 v0, 63, v0')
    a('v_readfirstlane_b32 s3, v1')
    a('v_lshlrev_b32 v1, 4, v0')
    a('v_and_b32 v2, 15, v0')
    a('v_lshrrev_b32 v3, 4, v0')
    a(f's_cmp_ge_u32 s2, {K1_NF}')
    a('s_cbranch_scc1 K1_PREP')
    if 'noF' in exp: a('s_endpgm')
    a('s_getpc_b64 s[42:43]')
    a.label('K1_PC')
    a('s_add_u32 s42, s42, k1_tbl-K1_PC')
    a('s_addc_u32 s43, s43, 0')
    srd(a, 44, 42, 16384)
    a('s_lshl_b32 s18, s3, 11')
    a('s_mov_b32 m0, s18')
    a('s_and_b32 s19, s2, 7')
    a('s_lshr_b32 s21, s2, 4')
    a('buffer_load_dwordx4 v1, s[44:47], s18 offen lds')
    a('buffer_load_dwordx4 v1, s[44:47], s18 offen offset:1024 lds')
    a('s_lshl_b32 s21, s21, 3')
    a('s_add_u32 s19, s19, s21')
    a('s_bfe_u32 s48, s2, 0x10003')
    a('s_sub_u32 s21, 64, s19')
    a('s_cmp_eq_u32 s19, 0')
    a('s_cselect_b32 s21, 32, s21')
    a('s_cmp_eq_u32 s48, 0')
    a('s_cselect_b32 s21, s19, s21')
    a('s_cmp_eq_u32 s2, 64')
    a('s_cselect_b32 s2, 64, s21')
    a('s_and_b32 s19, s19, 31')
    a('s_and_b32 s25, s2, 63')
    a('s_cmp_gt_u32 s25, 32')
    a('s_cselect_b32 s20, -1.0, 1.0')
    a('s_cmp_eq_u32 s19, 0')
    a('s_cselect_b32 s20, 0, s20')
    a('s_mul_i32 s19, s19, 57344')
    a('s_lshl_b32 s21, s3, 13')
    a('s_add_u32 s19, s19, s21')
    a(f's_add_u32 s19, s19, {WS_U:#x}')
    a(f's_add_u32 s23, s21, {UL}')
    a('s_lshl_b32 s48, s48, 12')
    a('s_xor_b32 s49, s48, 4096')
    a('s_add_u32 s22, s19, s49')
    a('s_add_u32 s19, s19, s48')
    a('s_add_u32 m0, s23, s48')
    a('s_waitcnt lgkmcnt(0)')
    srd(a, 28, 16, WS_SIZE)
    stamp(a, 1, 0, 28, stamps, tmp_v=TV)
    a('s_cmp_eq_u32 s3, 7')
    a('s_cbranch_scc1 K1_NOU')
    for q in range(4): a(f'buffer_load_dwordx4 v1, s[28:31], s19 offen offset:{1024*q} lds')
    a('s_add_u32 m0, s23, s49')
    for q in range(4): a(f'buffer_load_dwordx4 v1, s[28:31], s22 offen offset:{1024*q} lds')
    a('s_branch K1_U1')
    a.label('K1_NOU')
    a(f's_mov_b32 m0, {MODL}')
    a('s_mov_b32 s24, 4096')
    for q in range(4): a(f'buffer_load_dwordx4 v1, s[28:31], 0 offen offset:{1024*q} lds')
    a(f's_mov_b32 m0, {MODL+4096}')
    for q in range(2): a(f'buffer_load_dwordx4 v1, s[28:31], s24 offen offset:{1024*q} lds')
    a.label('K1_U1')
    UA, M2, CA, SA, GA, M2I, FA, TWF, FB, TWI, WW, DD, WP = 32, 64, 80, 96, 112, 116, 124, 132, 140, 164, 180, 216, 8
    a('v_lshlrev_b32 v13, 7, v2')
    a('v_add_u32 v13, s2, v13')
    a('s_lshr_b32 s27, s3, 1')
    a('s_lshl_b32 s27, s27, 3')
    a('s_and_b32 s21, s3, 1')
    a('s_add_u32 s27, s27, s21')
    a('v_lshl_add_u32 v14, v3, 1, s27')
    a('v_mul_u32_u24 v13, v13, v14')
    a('v_cvt_f32_u32 v13, v13')
    a('v_mul_f32 v13, 0x3a000000, v13')
    a('v_sin_f32 v17, v13')
    a('v_cos_f32 v18, v13')
    a('s_lshr_b32 s27, s3, 2')
    a('s_lshl_b32 s27, s27, 10')
    a('s_and_b32 s21, s3, 3')
    a('s_lshl_b32 s21, s21, 2')
    a('s_add_u32 s27, s27, s21')
    a('v_add_u32 v14, s27, v1')
    a('v_mul_f32 v19, s20, v17')
    a('v_mul_f32 v21, s20, v18')
    a('v_cvt_pk_bf16_f32 v15, v18, v19')
    a('v_cvt_pk_bf16_f32 v16, -v17, v21')
    a(f'ds_write_b32 v14, v15 offset:{M2L}')
    a(f'ds_write_b32 v14, v16 offset:{M2L+2048}')
    a('v_lshrrev_b32 v8, 3, v0')
    a('v_lshlrev_b32 v9, 8, v8')
    a('v_and_b32 v10, 3, v0')
    a('v_lshl_add_u32 v9, v10, 6, v9')
    a('v_bfe_u32 v10, v0, 2, 1')
    a('s_cmp_eq_u32 s25, 32')
    a('s_cselect_b32 s27, 1, 0')
    a('v_xor_b32 v10, s27, v10')
    a('v_lshl_add_u32 v9, v10, 3, v9')
    a('v_add_u32 v9, s23, v9')
    a('v_and_b32 v8, 3, v8')
    a('v_lshl_add_u32 v4, v8, 4, v9')
    for e in range(1, 4): a(f'v_xor_b32 v{4+e}, {16*e}, v4')
    a('s_lshl_b32 s27, s2, 15')
    a('s_lshl_b32 s21, s3, 12')
    a('s_add_u32 s27, s27, s21')
    a(f's_add_u32 s50, s27, {WS_WEFF:#x}')
    late = []
    late += [f'buffer_load_dwordx4 v[{WP+4*q}:{WP+4*q+3}], v1, s[28:31], s50 offen offset:{1024*q}' for q in range(4)]
    a('s_lshl_b32 s27, s3, 9')
    a('v_lshl_add_u32 v26, v2, 5, s27')
    a('s_lshl_b32 s27, s3, 8')
    a(f's_add_u32 s27, s27, {MODL}')
    a('v_lshl_add_u32 v28, v3, 4, s27')
    a('v_lshl_add_u32 v30, v2, 2, s27')
    a('s_cmp_eq_u32 s2, 0')
    a('s_cselect_b32 s27, 0, 99')
    a('v_cmp_eq_u32 vcc, s27, v2')
    a(f'v_mov_b32 v29, {ZERO}')
    a('v_lshl_add_u32 v24, v3, 6, v2')
    a('v_cndmask_b32 v29, v29, v28, vcc')
    a('v_mul_u32_u24 v24, 144, v24')
    a('s_lshl_b32 s27, s3, 4')
    a(f's_add_u32 s27, s27, {X1}')
    a('v_add_u32 v24, s27, v24')
    a('v_mul_u32_u24 v25, 144, v2')
    a('v_lshl_add_u32 v25, v3, 4, v25')
    a(f's_mul_i32 s27, s3, {32*144}')
    a(f's_add_u32 s27, s27, {X1}')
    a('v_add_u32 v25, s27, v25')
    if EARLY:
        a(f's_waitcnt vmcnt({EARLY})')
        for x in late: a(x)
        a('s_waitcnt vmcnt(4)')
    else:
        a('s_waitcnt vmcnt(0)')
        for x in late: a(x)
    a('s_cmp_eq_u32 s3, 7')
    a('s_cbranch_scc1 K1_W7')
    for d2l in range(4):
        for ks in range(2):
            for h in range(2):
                b = UA + 8 * d2l + 4 * ks + 2 * h
                a(f'ds_read_b64_tr_b16 v[{b}:{b+1}], v{4+d2l} offset:{4096*ks+2048*h}')
    a('s_waitcnt lgkmcnt(15)')
    a('s_barrier')
    stamp(a, 1, 1, 28, stamps, tmp_v=TV)
    def phase1(d2l):
        o = []
        for ks in range(2):
            for c in range(2):
                d = DD + 8 * d2l + 4 * c
                cc = '0' if ks == 0 else f'v[{d}:{d+3}]'
                o.append(f'v_mfma_f32_16x16x32_bf16 v[{d}:{d+3}], v[{UA+8*d2l+4*ks}:{UA+8*d2l+4*ks+3}], v[{M2+8*c+4*ks}:{M2+8*c+4*ks+3}], {cc}')
        return o
    VA = UA
    def modul(d2l):
        o = []; d = DD + 8 * d2l
        for p in range(2):
            o.append(f'v_pk_fma_f32 v[{d+2*p}:{d+2*p+1}], v[{d+2*p}:{d+2*p+1}], v[{CA+4*d2l+2*p}:{CA+4*d2l+2*p+1}], v[{SA+4*d2l+2*p}:{SA+4*d2l+2*p+1}]')
            o.append(f'v_pk_mul_f32 v[{d+4+2*p}:{d+5+2*p}], v[{d+4+2*p}:{d+5+2*p}], v[{CA+4*d2l+2*p}:{CA+4*d2l+2*p+1}]')
        return o
    def cvt4(dst, src):
        return [f'v_cvt_pk_bf16_f32 v{dst+p}, v{src+2*p}, v{src+2*p+1}' for p in range(4)]
    def dft16(src, d):
        return [f'v_mfma_f32_16x16x32_bf16 v[{d}:{d+3}], v[{src}:{src+3}], v[{FA+2}:{FA+5}], 0',
                f'v_mfma_f32_16x16x32_bf16 v[{d+4}:{d+7}], v[{src}:{src+3}], v[{FA}:{FA+3}], 0']
    def cmulc(d, e, c_, s_, selc, sels):
        o = []
        for p in range(2):
            re = f'v[{d+2*p}:{d+2*p+1}]'; im = f'v[{d+4+2*p}:{d+5+2*p}]'
            ore = f'v[{e+2*p}:{e+2*p+1}]'; oim = f'v[{e+4+2*p}:{e+5+2*p}]'
            o.append(f'v_pk_mul_f32 {ore}, {im}, {s_(p)} {sels}')
            o.append(f'v_pk_mul_f32 {oim}, {re}, {s_(p)} {sels}')
            o.append(f'v_pk_fma_f32 {ore}, {re}, {c_(p)}, {ore} {selc}')
            o.append(f'v_pk_fma_f32 {oim}, {im}, {c_(p)}, {oim} {selc} neg_lo:[0,0,1] neg_hi:[0,0,1]')
        return o
    E = 64
    P = 96
    fbread = [f'ds_read_b128 v[{FB+4*q}:{FB+4*q+3}], v1 offset:{TB_FB+1024*q}' for q in range(6)]
    for q in range(4): a(f'ds_read_b128 v[{M2+4*q}:{M2+4*q+3}], v1 offset:{M2L+1024*q}')
    rd = []
    for d2l in range(4):
        rd.append(f'ds_read_b128 v[{CA+4*d2l}:{CA+4*d2l+3}], v28 offset:{1792+64*d2l}')
        rd.append(f'ds_read_b128 v[{SA+4*d2l}:{SA+4*d2l+3}], v29 offset:{64*d2l}')
    for q in range(2): rd.append(f'ds_read_b128 v[{FA+4*q}:{FA+4*q+3}], v1 offset:{TB_FA+1024*q}')
    for q in range(2): rd.append(f'ds_read_b128 v[{TWF+4*q}:{TWF+4*q+3}], v26 offset:{TB_TWF+16*q}')
    for d2l in range(4): rd.append(f'ds_read_b32 v{GA+d2l}, v30 offset:{3584+64*d2l}')
    rd += fbread
    rd += ['v_lshrrev_b32 v27, 2, v2', 'v_mul_u32_u24 v27, 28672, v27', 'v_and_b32 v31, 3, v2', 'v_lshl_add_u32 v27, v31, 4, v27',
           f'v_mul_u32_u24 v31, {4*114688}, v3', 'v_add_u32 v27, v27, v31',
           'v_lshlrev_b32 v28, 6, v2', 'v_lshl_add_u32 v28, v3, 4, v28', 's_mul_i32 s27, s3, 4160', f's_add_u32 s27, s27, {X2}', 'v_add_u32 v28, s27, v28']
    a('s_waitcnt lgkmcnt(0)')
    inter(a, phase1(0) + phase1(1) + phase1(2) + phase1(3), rd)
    a('s_waitcnt lgkmcnt(14)')
    for d2l in range(4):
        for x in modul(d2l): a(x)
    a('s_waitcnt lgkmcnt(10)')
    for x in cvt4(VA, DD): a(x)
    for d2l in range(4):
        inter(a, dft16(VA + 8 * d2l, DD + 8 * d2l), cvt4(VA + 8 * d2l + 8, DD + 8 * d2l + 8) if d2l < 3 else
              ['s_lshr_b32 s24, s2, 1', 's_and_b32 s24, s24, 31', 's_and_b32 s27, s2, 1', 's_lshl_b32 s27, s27, 5', 's_add_u32 s24, s24, s27',
               's_lshl_b32 s24, s24, 6', 's_lshl_b32 s27, s3, 12', 's_add_u32 s24, s24, s27'])
    for d2l in range(4):
        tw = f'v[{TWF+2*d2l}:{TWF+2*d2l+1}]'
        for x in cmulc(DD + 8 * d2l, E + 8 * d2l, lambda p: tw, lambda p: tw, 'op_sel_hi:[1,0,1]', 'op_sel:[0,1] op_sel_hi:[1,1]'): a(x)
    for i in range(4):
        a(f'v_cvt_pk_bf16_f32 v{P+4*i+0}, v{E+i}, v{E+8+i}')
        a(f'v_cvt_pk_bf16_f32 v{P+4*i+1}, v{E+16+i}, v{E+24+i}')
        a(f'v_cvt_pk_bf16_f32 v{P+4*i+2}, v{E+4+i}, v{E+12+i}')
        a(f'v_cvt_pk_bf16_f32 v{P+4*i+3}, v{E+20+i}, v{E+28+i}')
        a(f'ds_write_b128 v24, v[{P+4*i}:{P+4*i+3}] offset:{2304*i}')
    a('s_branch K1_J1')
    a.label('K1_W7')
    a('s_waitcnt lgkmcnt(0)')
    a('s_barrier')
    for q in range(4): a(f'v_mov_b32 v{P+q}, 0')
    a(f'v_mov_b32 v27, {OOB:#x}')
    for i in range(4): a(f'ds_write_b128 v24, v[{P}:{P+3}] offset:{2304*i}')
    for x in fbread: a(x)
    a.label('K1_J1')
    a('s_waitcnt lgkmcnt(0)')
    a('s_barrier')
    stamp(a, 1, 2, 28, stamps, tmp_v=TV)
    BX = 32
    for kk in range(2):
        for ks in range(2):
            b = BX + 8 * kk + 4 * ks
            a(f'ds_read_b128 v[{b}:{b+3}], v25 offset:{2304*kk+64*ks}')
    for q in range(4): a(f'ds_read_b128 v[{TWI+4*q}:{TWI+4*q+3}], v1 offset:{TB_TWI+1024*q}')
    def dft28(kk, data, data_is_a):
        o = []
        for ks in range(2):
            for t in range(2):
                for c in range(2):
                    d = DD + 16 * kk + 8 * t + 4 * c
                    f = FB + 6 * (2 * t + ks) + (2 if c == 0 else 0)
                    b = data + 8 * kk + 4 * ks
                    cc = '0' if ks == 0 else f'v[{d}:{d+3}]'
                    A, B = (b, f) if data_is_a else (f, b)
                    o.append(f'v_mfma_f32_16x16x32_bf16 v[{d}:{d+3}], v[{A}:{A+3}], v[{B}:{B+3}], {cc}')
        return o
    def wunp(kk):
        o = []
        for t in range(2):
            for i in range(4):
                src = WP + 8 * kk + 4 * t + i; w = WW + 16 * kk + 8 * t
                o.append(f'v_lshlrev_b32 v{w+i}, 16, v{src}')
                o.append(f'v_and_b32 v{w+4+i}, s21, v{src}')
        return o
    YA = 48
    def wmul(kk):
        o = []
        for t in range(2):
            d = DD + 16 * kk + 8 * t; e = E + 16 * kk + 8 * t; wr = WW + 16 * kk + 8 * t; wi = wr + 4
            for p in range(2):
                xr = f'v[{d+2*p}:{d+2*p+1}]'; xi = f'v[{d+4+2*p}:{d+5+2*p}]'
                Wr = f'v[{wr+2*p}:{wr+2*p+1}]'; Wi = f'v[{wi+2*p}:{wi+2*p+1}]'
                ore = f'v[{e+2*p}:{e+2*p+1}]'; oim = f'v[{e+4+2*p}:{e+5+2*p}]'
                o.append(f'v_pk_mul_f32 {ore}, {xi}, {Wi}')
                o.append(f'v_pk_mul_f32 {oim}, {xr}, {Wi}')
                o.append(f'v_pk_fma_f32 {ore}, {xr}, {Wr}, {ore} neg_lo:[0,0,1] neg_hi:[0,0,1]')
                o.append(f'v_pk_fma_f32 {oim}, {xi}, {Wr}, {oim} neg_lo:[1,0,1] neg_hi:[1,0,1]')
        return o
    m2i = ['v_lshlrev_b32 v12, 9, v3', 'v_add_u32 v12, s2, v12', 'v_mul_u32_u24 v12, v12, v2', 'v_cvt_f32_u32 v12, v12',
           'v_mul_f32 v12, 0x3a000000, v12', 'v_cvt_f32_u32 v31, v2', 'v_mul_f32 v31, 0x3d800000, v31']
    for j in range(4):
        m2i += [f'v_sin_f32 v{4+j}, v12', f'v_cos_f32 v{8+j}, v12']
        if j < 3: m2i.append('v_add_f32 v12, v12, v31')
    m2i2 = [f'v_cvt_pk_bf16_f32 v{M2I+0}, -v4, -v5', f'v_cvt_pk_bf16_f32 v{M2I+1}, -v6, -v7', f'v_cvt_pk_bf16_f32 v{M2I+2}, v8, v9',
            f'v_cvt_pk_bf16_f32 v{M2I+3}, v10, v11', f'v_cvt_pk_bf16_f32 v{M2I+4}, v4, v5', f'v_cvt_pk_bf16_f32 v{M2I+5}, v6, v7']
    a('s_mov_b32 s21, 0xffff0000')
    a('v_mul_u32_u24 v26, 1040, v2')
    a('v_lshl_add_u32 v26, v3, 4, v26')
    a('s_lshl_b32 s27, s3, 7')
    a(f's_add_u32 s27, s27, {X2}')
    a('v_add_u32 v26, s27, v26')
    a(f's_waitcnt vmcnt({nst}) lgkmcnt(6)')
    inter(a, dft28(0, BX, False), wunp(0))
    a('s_waitcnt lgkmcnt(4)')
    inter(a, dft28(1, BX, False), wunp(1))
    for x in wmul(0) + wmul(1): a(x)
    for x in cvt4(YA, E) + cvt4(YA + 4, E + 8): a(x)
    inter(a, dft28(0, YA, True), cvt4(YA + 8, E + 16) + cvt4(YA + 12, E + 24) + m2i[:7])
    inter(a, dft28(1, YA, True), m2i[7:])
    a('s_waitcnt lgkmcnt(0)')
    P2 = 32
    for kk in range(2):
        for t in range(2):
            c_ = lambda p: f'v[{TWI+8*t+2*p}:{TWI+8*t+2*p+1}]'
            s_ = lambda p: f'v[{TWI+8*t+4+2*p}:{TWI+8*t+5+2*p}]'
            e = E + 16 * kk + 8 * t; q = P2 + 8 * kk + 4 * t
            for x in cmulc(DD + 16 * kk + 8 * t, e, c_, s_, '', '') + cvt4(q, e): a(x)
            a(f'ds_write_b128 v26, v[{q}:{q+3}] offset:{16640*t+64*kk}')
    for x in m2i2: a(x)
    for i in range(4): a(f's_add_u32 s{60+i}, s24, {WS_TP + i*114688:#x}')
    a('s_waitcnt lgkmcnt(0)')
    a('s_barrier')
    a('s_cmp_eq_u32 s3, 7')
    a('s_cbranch_scc1 K1_END')
    stamp(a, 1, 3, 28, stamps, tmp_v=TV)
    ZA = 48
    for d2l in range(4):
        a(f'ds_read_b128 v[{ZA+4*d2l}:{ZA+4*d2l+3}], v28 offset:{1040*d2l}')
    ZB = 32
    def ph3(d2l):
        e = E + 8 * d2l
        return [f'v_mfma_f32_16x16x32_bf16 v[{e}:{e+3}], v[{M2I+2}:{M2I+5}], v[{ZB+4*d2l}:{ZB+4*d2l+3}], 0',
                f'v_mfma_f32_16x16x32_bf16 v[{e+4}:{e+7}], v[{M2I}:{M2I+3}], v[{ZB+4*d2l}:{ZB+4*d2l+3}], 0']
    def scl(d2l):
        e = E + 8 * d2l; gp = GA + (d2l & ~1)
        sel = 'op_sel_hi:[1,0]' if d2l % 2 == 0 else 'op_sel:[0,1] op_sel_hi:[1,1]'
        return [f'v_pk_mul_f32 v[{e+2*p}:{e+2*p+1}], v[{e+2*p}:{e+2*p+1}], v[{gp}:{gp+1}] {sel}' for p in range(4)]
    O = 48
    for d2l in range(4):
        a(f's_waitcnt lgkmcnt({3-d2l})')
        for x in dft16(ZA + 4 * d2l, DD + 8 * d2l): a(x)
    for x in cvt4(ZB, DD): a(x)
    for d2l in range(4):
        inter(a, ph3(d2l), cvt4(ZB + 4 * d2l + 4, DD + 8 * d2l + 8) if d2l < 3 else [])
    for d2l in range(4):
        for x in scl(d2l): a(x)
    if 'SP' in exp:
        a('s_memrealtime s[70:71]')
        a('s_waitcnt lgkmcnt(0)')
        a.label('K1_SPIN')
        a('s_memrealtime s[72:73]')
        a('s_waitcnt lgkmcnt(0)')
        a('s_sub_u32 s72, s72, s70')
        a(f"s_cmp_lt_u32 s72, {100 * exp.count('SP')}")
        a('s_cbranch_scc1 K1_SPIN')
    a('s_cmp_eq_u32 s25, 0')
    a('s_cbranch_scc1 K1_SHORT')
    for i in range(4):
        a(f'v_cvt_pk_bf16_f32 v{O+4*i+0}, v{E+i}, v{E+8+i}')
        a(f'v_cvt_pk_bf16_f32 v{O+4*i+1}, v{E+16+i}, v{E+24+i}')
        a(f'v_cvt_pk_bf16_f32 v{O+4*i+2}, v{E+4+i}, v{E+12+i}')
        a(f'v_cvt_pk_bf16_f32 v{O+4*i+3}, v{E+20+i}, v{E+28+i}')
        a(f'buffer_store_dwordx4 v[{O+4*i}:{O+4*i+3}], v27, s[28:31], s{60+i} offen')
    if stamps:
        a('s_waitcnt vmcnt(0)')
        stamp(a, 1, 4, 28, stamps, tmp_v=TV)
    a('s_endpgm')
    a.label('K1_SHORT')
    a('s_lshr_b32 s24, s2, 3')
    a('v_add_u32 v27, s24, v27')
    for i in range(4):
        a(f'v_cvt_pk_bf16_f32 v{O+4*i+0}, v{E+i}, v{E+8+i}')
        a(f'v_cvt_pk_bf16_f32 v{O+4*i+1}, v{E+16+i}, v{E+24+i}')
        a(f'buffer_store_dwordx2 v[{O+4*i}:{O+4*i+1}], v27, s[28:31], s{60+i} offen')
    if stamps:
        a('s_waitcnt vmcnt(0)')
        stamp(a, 1, 4, 28, stamps, tmp_v=TV)
    a('s_endpgm')
    a.label('K1_PREP')
    if 'noP' in exp: a('s_endpgm')
    a(f's_cmp_lt_u32 s2, {K1_W0}')
    a('s_cbranch_scc1 K1_END')
    a('s_lshl_b32 s18, s3, 12')
    a('s_mov_b32 m0, s18')
    a('v_and_b32 v4, 3, v0')
    a('v_lshrrev_b32 v5, 2, v2')
    a('v_and_b32 v6, 1, v3')
    a('v_lshrrev_b32 v7, 5, v0')
    a('s_waitcnt lgkmcnt(0)')
    srd(a, 28, 16, WS_SIZE)
    if 'SQ' in exp:
        a('s_memrealtime s[70:71]')
        a('s_waitcnt lgkmcnt(0)')
        a.label('K1_SPIN2')
        a('s_memrealtime s[72:73]')
        a('s_waitcnt lgkmcnt(0)')
        a('s_sub_u32 s72, s72, s70')
        a(f"s_cmp_lt_u32 s72, {60 * exp.count('SQ')}")
        a('s_cbranch_scc1 K1_SPIN2')
    if 'RG' in exp: a(f's_load_dword s55, s[16:17], {WS_REG:#x}')
    a(f's_cmp_ge_u32 s2, {K1_D0}')
    a('s_cbranch_scc1 K1_WD')
    a(f's_sub_u32 s19, s2, {K1_W0}')
    if 'HU' in exp:
        a('s_and_b32 s20, s19, -8')
        a('s_add_u32 s20, s20, s3')
        a('s_mul_i32 s21, s20, 147')
        a('s_lshr_b32 s21, s21, 12')
        a(f's_mul_i32 s21, s21, {8*57344 - 28*2048}')
        a('s_lshl_b32 s20, s20, 11')
        a('s_add_u32 s21, s21, s20')
        a('s_and_b32 s20, s19, 7')
        a('s_mul_i32 s20, s20, 57344')
        a('s_add_u32 s21, s21, s20')
        a(f's_add_u32 s21, s21, {WS_U:#x}')
        a('buffer_load_dwordx4 v[200:203], v1, s[28:31], s21 offen offset:1024')
        a('buffer_load_dwordx4 v[204:207], v1, s[28:31], s21 offen')
    XS, XB = 912, 40960
    srd(a, 12, 4, NB_X)
    a('s_lshr_b32 s50, s19, 2')
    a('s_and_b32 s51, s19, 3')
    a('s_lshr_b32 s20, s51, 1')
    a('s_lshl_b32 s20, s20, 5')
    a('s_and_b32 s21, s51, 1')
    a('s_add_u32 s20, s20, s21')
    a('s_lshr_b32 s21, s3, 2')
    a('s_lshl_b32 s21, s21, 6')
    a('s_add_u32 s20, s20, s21')
    a('s_and_b32 s21, s3, 3')
    a('s_lshl_b32 s21, s21, 3')
    a('s_add_u32 s20, s20, s21')
    a('s_lshl_b32 s20, s20, 4')
    a('s_add_u32 s20, s20, s50')
    a('s_mul_i32 s52, s20, 896')
    a('s_cmp_lt_u32 s19, 64')
    a('s_cselect_b32 s52, s52, 0')
    a('s_cselect_b32 s14, s14, 0')
    a('s_cselect_b32 s54, 1, 0')
    a(f's_mul_i32 s53, s3, {4*XS}')
    def xload():
        a(f's_add_u32 m0, s53, {XB}')
        a('s_mov_b32 exec_hi, 0x00ffffff')
        for r in range(4):
            a('buffer_load_dwordx4 v1, s[12:15], s52 offen nt lds')
            if r < 3:
                a(f's_add_u32 m0, m0, {XS}')
                a('s_add_u32 s52, s52, 28672')
        a('s_mov_b32 exec_hi, -1')
    a('s_cmp_ge_u32 s19, 56')
    a('s_cselect_b32 s20, 1, 0')
    a('s_cselect_b32 s8, s38, s36')
    a('s_cselect_b32 s9, s39, s37')
    a(f's_mov_b32 s10, {NB_WG:#x}')
    a('s_mov_b32 s11, 0x00020000')
    a('s_mul_i32 s21, s20, 56')
    a('s_sub_u32 s19, s19, s21')
    a('s_and_b32 s21, s19, 1')
    a('s_lshr_b32 s19, s19, 1')
    a('s_mul_i32 s22, s19, 116')
    a('s_add_u32 s22, s22, s20')
    a('s_lshl_b32 s22, s22, 10')
    a(f's_add_u32 s22, s22, {WS_WF:#x}')
    if 'RG' in exp:
        a('s_waitcnt lgkmcnt(0)')
        a('s_and_b32 s55, s55, 0x0f800000')
        a('s_add_u32 s22, s22, s55')
    a('s_cmp_eq_u32 s3, 7')
    a('s_cbranch_scc1 K1_WF_FIN')
    a('v_lshrrev_b32 v8, 3, v0')
    a('v_mul_u32_u24 v8, 3584, v8')
    a('v_and_b32 v9, 7, v0')
    a('v_lshl_add_u32 v8, v9, 4, v8')
    a('s_mul_i32 s23, s21, 7')
    a('s_add_u32 s23, s23, s3')
    a(f's_mul_i32 s23, s23, {32*3584}')
    a('s_lshl_b32 s24, s19, 7')
    a('s_add_u32 s23, s23, s24')
    if 'HU' in exp: a('s_waitcnt vmcnt(0)')
    if 'HB' in exp: a('s_barrier')
    for i in range(4):
        a('buffer_load_dwordx4 v8, s[8:11], s23 offen nt lds')
        if i < 3:
            a('s_add_u32 m0, m0, 1024')
            a(f's_add_u32 s23, s23, {8*3584}')
    stamp(a, 1, 0, 28, stamps, tmp_v=TV)
    a('s_and_b32 s23, s3, 1')
    a('s_mul_i32 s23, s23, 56')
    a('s_lshr_b32 s24, s3, 1')
    a('s_lshl_b32 s24, s24, 3')
    a('s_add_u32 s23, s23, s24')
    a('s_cmp_eq_u32 s3, 6')
    a('s_cselect_b32 s24, 56, 28')
    a('s_cselect_b32 s25, 28, 4')
    a('v_mul_u32_u24 v9, s24, v7')
    a('v_add_u32 v9, s23, v9')
    a('v_add_u32 v10, v9, v5')
    a('v_lshlrev_b32 v10, 7, v10')
    a('v_lshl_add_u32 v10, v6, 5, v10')
    a('v_lshl_add_u32 v10, v4, 3, v10')
    a('s_lshl_b32 s26, s25, 7')
    a('v_add_u32 v11, s26, v10')
    a('s_mul_i32 s26, s21, 896')
    a('v_lshl_add_u32 v9, v9, 2, s26')
    a('s_lshl_b32 s26, s25, 2')
    a('v_add_u32 v8, s26, v9')
    for q in range(4): a(f'v_mov_b32 v{12+q}, 0x3f803f80')
    a('s_mul_i32 s24, s21, 14')
    a('s_add_u32 s24, s24, s3')
    a('s_lshl_b32 s24, s24, 11')
    a('s_add_u32 s24, s24, s22')
    for z in range(1, 4): a(f's_add_u32 s{31+z}, s24, {7*2048*(z>>1) + 58*1024*(z&1)}')
    a('v_cmp_gt_u32 vcc, 32, v0')
    a('s_waitcnt vmcnt(0)')
    if 'XE' in exp: xload()
    a('s_barrier')
    stamp(a, 1, 1, 28, stamps, tmp_v=TV)
    ML = 28672
    CB, SBF, RW, SBP, AB, AC, SC = 32, 48, 64, 16, 96, 128, 80
    for wq in range(2):
        a(f'ds_read_b128 v[{CB+8*wq}:{CB+8*wq+3}], v9 offset:{ML+1792+448*wq}')
        a(f'ds_read_b128 v[{CB+8*wq+4}:{CB+8*wq+7}], v8 offset:{ML+1792+448*wq}')
        for j in range(2):
            z = 2 * wq + j
            a(f'ds_read_b64_tr_b16 v[{RW+4*z}:{RW+4*z+1}], v10 offset:{14336*wq+64*j}')
            a(f'ds_read_b64_tr_b16 v[{RW+4*z+2}:{RW+4*z+3}], v11 offset:{14336*wq+64*j}')
    for wq in range(2):
        a(f'ds_read_b128 v[{SBF+8*wq}:{SBF+8*wq+3}], v9 offset:{ML+448*wq}')
        a(f'ds_read_b128 v[{SBF+8*wq+4}:{SBF+8*wq+7}], v8 offset:{ML+448*wq}')
    UP = 160
    if 'XE' not in exp: xload()
    for z in range(4):
        wq, j = z >> 1, z & 1
        a(f's_waitcnt lgkmcnt({(12, 10, 6, 4)[z]})')
        for p in range(4):
            u = UP + 2 * p
            a(f'v_lshlrev_b32 v{u}, 16, v{RW+4*z+p}')
            a(f'v_and_b32 v{u+1}, 0xffff0000, v{RW+4*z+p}')
            a(f'v_pk_mul_f32 v[{u}:{u+1}], v[{u}:{u+1}], v[{CB+8*wq+2*p}:{CB+8*wq+2*p+1}]')
            a(f'v_cvt_pk_bf16_f32 v{SC+4*z+p}, v{u}, v{u+1}')
        a(f'buffer_store_dwordx4 v[{SC+4*z}:{SC+4*z+3}], v1, s[28:31], s{31+z if z else 24} offen sc1' if 'noWF' not in exp else 'buffer_load_dword v210, v1, s[28:31], 0 offen')
        d = AC + 16 * j
        a(f'v_mfma_f32_32x32x16_bf16 v[{d}:{d+15}], v[12:15], v[{SC+4*z}:{SC+4*z+3}], {"0" if wq == 0 else f"v[{d}:{d+15}]"}')
    a('s_waitcnt lgkmcnt(0)')
    for p in range(8): a(f'v_cvt_pk_bf16_f32 v{SBP+p}, v{SBF+2*p}, v{SBF+2*p+1}')
    for z in range(4):
        wq, j = z >> 1, z & 1; d = AB + 16 * j
        a(f'v_mfma_f32_32x32x16_bf16 v[{d}:{d+15}], v[{SBP+4*wq}:{SBP+4*wq+3}], v[{RW+4*z}:{RW+4*z+3}], {"0" if wq == 0 else f"v[{d}:{d+15}]"}')
    RED = 32768
    a('s_lshl_b32 s24, s3, 9')
    a('v_lshl_add_u32 v11, v0, 3, s24')
    a(f'v_cndmask_b32 v12, v{AC+16}, v{AC}, vcc')
    a(f'v_cndmask_b32 v13, v{AB+16}, v{AB}, vcc')
    a(f'ds_write_b64 v11, v[12:13] offset:{RED}')
    a(f'v_mul_u32_u24 v11, {XS}, v2')
    a('v_mul_u32_u24 v14, 56, v3')
    a('s_lshl_b32 s25, s3, 3')
    a('v_add3_u32 v11, v11, v14, s25')
    a(f's_mul_i32 s26, s50, {4*28672}')
    a('s_lshl_b32 s25, s3, 12')
    a('s_add_u32 s26, s26, s25')
    a('s_lshl_b32 s25, s51, 10')
    a('s_add_u32 s26, s26, s25')
    a(f's_add_u32 s26, s26, {WS_XF:#x}')
    a('s_waitcnt vmcnt(4) lgkmcnt(0)')
    a('s_barrier')
    a('s_cmp_eq_u32 s54, 0')
    a('s_cbranch_scc1 K1_END')
    for w in range(4):
        for hi in range(2):
            a(f'ds_read_b64 v[{32+4*w+2*hi}:{33+4*w+2*hi}], v11 offset:{XB + 224*w + 16*XS*hi}')
    for w in range(4):
        a(f's_waitcnt lgkmcnt({2*(3-w)})')
        a(f'buffer_store_dwordx4 v[{32+4*w}:{35+4*w}], v1, s[28:31], s26 offen sc1')
        if w < 3: a('s_add_u32 s26, s26, 28672')
    if stamps:
        a('s_waitcnt vmcnt(0)')
        stamp(a, 1, 5, 28, stamps, tmp_v=TV)
    a('s_endpgm')
    a.label('K1_WF_FIN')
    a(f's_mov_b32 s23, {WS_MOD + 3*1792}')
    for q in range(4): a(f'buffer_load_dwordx4 v1, s[28:31], s23 offen offset:{1024*q} lds')
    a('v_lshlrev_b32 v11, 3, v0')
    a('v_and_b32 v12, 31, v0')
    a('v_lshlrev_b32 v12, 4, v12')
    a(f'v_mul_u32_u24 v13, {58*1024}, v7')
    a('v_add_u32 v12, v12, v13')
    a('s_lshl_b32 s21, s21, 9')
    a('s_add_u32 s22, s22, s21')
    a(f's_add_u32 s22, s22, {28*2048}')
    a('v_mov_b32 v31, 0')
    a('s_waitcnt vmcnt(0)')
    if 'HB' in exp: a('s_barrier')
    a('s_barrier')
    xload()
    a('s_waitcnt vmcnt(0)')
    a('s_barrier')
    for w in range(7):
        a(f'ds_read_b64 v[{16+2*w}:{17+2*w}], v11 offset:{RED+512*w}')
    a('s_waitcnt lgkmcnt(0)')
    for d_, s_ in ((16, 18), (20, 22), (24, 26), (16, 20), (24, 28), (16, 24)):
        a(f'v_pk_add_f32 v[{d_}:{d_+1}], v[{d_}:{d_+1}], v[{s_}:{s_+1}]')
    a('v_cvt_pk_bf16_f32 v20, v16, v17')
    a('v_lshlrev_b32 v22, 16, v20')
    a('v_and_b32 v23, 0xffff0000, v20')
    a('v_pk_add_f32 v[16:17], v[16:17], v[22:23] neg_lo:[0,1] neg_hi:[0,1]')
    a('v_cvt_pk_bf16_f32 v21, v16, v17')
    a('v_lshlrev_b32 v24, 16, v21')
    a('v_and_b32 v25, 0xffff0000, v21')
    a('v_pk_add_f32 v[16:17], v[16:17], v[24:25] neg_lo:[0,1] neg_hi:[0,1]')
    a('v_cvt_pk_bf16_f32 v28, v22, v24')
    a('v_cvt_pk_bf16_f32 v29, v16, v23')
    a('v_cvt_pk_bf16_f32 v30, v25, v17')
    a('buffer_store_dwordx4 v[28:31], v12, s[28:31], s22 offen sc1')
    if stamps:
        a('s_waitcnt vmcnt(0)')
        stamp(a, 1, 4, 28, stamps, tmp_v=TV)
    a('s_endpgm')
    a.label('K1_WD')
    a(f's_sub_u32 s19, s2, {K1_D0}')
    if 'HW' in exp:
        a('s_and_b32 s20, s19, 7')
        a('s_lshr_b32 s21, s3, 1')
        a('s_lshl_b32 s21, s21, 3')
        a('s_add_u32 s20, s20, s21')
        a('s_sub_u32 s21, 64, s20')
        a('s_cmp_eq_u32 s20, 0')
        a('s_cselect_b32 s21, 32, s21')
        a('s_bitcmp0_b32 s3, 0')
        a('s_cselect_b32 s21, s20, s21')
        a('s_lshl_b32 s21, s21, 15')
        a('s_lshr_b32 s22, s19, 3')
        a('s_lshl_b32 s22, s22, 12')
        a('s_add_u32 s21, s21, s22')
        a(f's_add_u32 s21, s21, {WS_WEFF:#x}')
        for q in range(4): a(f'buffer_load_dwordx4 v[{64+4*q}:{67+4*q}], v1, s[28:31], s21 offen offset:{1024*q}')
    srd(a, 8, 40, NB_WG)
    a('s_mul_i32 s20, s19, 37')
    a('s_lshr_b32 s20, s20, 8')
    a('s_mul_i32 s21, s20, 7')
    a('s_add_u32 s22, s21, s3')
    a('s_sub_u32 s21, s19, s21')
    a(f's_mul_i32 s23, s22, {32*896}')
    a('s_lshl_b32 s24, s21, 7')
    a('s_add_u32 s23, s23, s24')
    a('v_lshrrev_b32 v8, 3, v0')
    a('v_mul_u32_u24 v8, 896, v8')
    a('v_and_b32 v9, 7, v0')
    a('v_lshl_add_u32 v8, v9, 4, v8')
    a('v_lshl_add_u32 v10, v7, 2, v5')
    a('v_lshlrev_b32 v10, 7, v10')
    a('v_lshl_add_u32 v10, v6, 5, v10')
    a('v_lshl_add_u32 v10, v4, 3, v10')
    a('v_add_u32 v10, s18, v10')
    a('s_mul_i32 s24, s21, 112')
    a('s_lshl_b32 s25, s22, 1')
    a('s_add_u32 s24, s24, s25')
    a('s_lshl_b32 s24, s24, 11')
    a(f's_add_u32 s24, s24, {WS_WDF:#x}')
    if 'RG' in exp:
        a('s_waitcnt lgkmcnt(0)')
        a('s_and_b32 s55, s55, 0x0f800000')
        a('s_add_u32 s24, s24, s55')
    a('s_waitcnt vmcnt(0)')
    if 'H2' in exp: a('s_barrier')
    a('s_cmp_eq_u32 s3, 7')
    a('s_cbranch_scc1 K1_END')
    a(f's_cmp_ge_u32 s19, {K1_ND}')
    a('s_cbranch_scc1 K1_END')
    for i in range(4):
        a('buffer_load_dwordx4 v8, s[8:11], s23 offen nt lds')
        if i < 3:
            a('s_add_u32 m0, m0, 1024')
            a(f's_add_u32 s23, s23, {8*896}')
    stamp(a, 1, 0, 28, stamps, tmp_v=TV)
    a('s_waitcnt vmcnt(0)')
    for ks2 in range(2):
        for ct in range(2):
            for q in range(2):
                b = 16 + 8 * ks2 + 4 * ct + 2 * q
                a(f'ds_read_b64_tr_b16 v[{b}:{b+1}], v10 offset:{2048*ks2+1024*q+64*ct}')
    for z in range(4 if 'noWD' not in exp else 0):
        a(f's_waitcnt lgkmcnt({2*(3-z)})')
        a(f'buffer_store_dwordx4 v[{16+4*z}:{19+4*z}], v1, s[28:31], s24 offen offset:{1024*z} sc1')
    if stamps:
        a('s_waitcnt vmcnt(0)')
        stamp(a, 1, 4, 28, stamps, tmp_v=TV)
    a.label('K1_END')
    a('s_endpgm')
    return a
```

```python
from asmlib import *
from layout import *
import struct

XS = 912
RO = 64 * XS
MO = RO + 256
K0_LDS = 57344 + 2048 + 512

def srd(a, d, base, nbytes):
    a(f's_mov_b32 s{d}, s{base}')
    a(f's_mov_b32 s{d+1}, s{base+1}')
    a(f's_mov_b32 s{d+2}, {nbytes:#x}' if isinstance(nbytes, int) else f's_mov_b32 s{d+2}, {nbytes}')
    a(f's_mov_b32 s{d+3}, 0x00020000')

def rb16(a, dst, src):
    a(f'v_cvt_pk_bf16_f32 v{dst}, v{src}, v{src}')
    a(f'v_lshlrev_b32 v{dst}, 16, v{dst}')

def stamp(a, kidx, slot, ws_srd, enable, wgreg='s2', tmp_s=96, tmp_v=(250, 251, 252)):
    if not enable: return
    v0_, v1_, v2_ = tmp_v
    a(f's_memrealtime s[{tmp_s}:{tmp_s+1}]')
    a(f's_memtime s[{tmp_s+2}:{tmp_s+3}]')
    a('s_waitcnt lgkmcnt(0)')
    a(f'v_mov_b32 v{v0_}, s{tmp_s}')
    a(f'v_mov_b32 v{v1_}, s{tmp_s+2}')
    a(f's_lshl_b32 s{tmp_s+2}, {wgreg}, 7')
    a(f's_add_u32 s{tmp_s+2}, s{tmp_s+2}, {WS_STAMP + kidx * 0x10000 + slot * 8:#x}')
    a(f'v_mov_b32 v{v2_}, s{tmp_s+2}')
    a(f'buffer_store_dwordx2 v[{v0_}:{v1_}], v{v2_}, s[{ws_srd}:{ws_srd+3}], 0 offen')

def w_rows(a, kp, wave, vdst, vt0, vt1, st):
    a(f'v_and_b32 v{vt0}, 31, v0')
    a(f'v_lshlrev_b32 v{vt0}, 4, v{vt0}')
    a('v_cmp_gt_u32 vcc, 32, v0')
    for kk in range(2):
        s0, s1 = st + 2 * kk, st + 2 * kk + 1
        a(f's_lshl_b32 s{s0}, {wave}, 8')
        a(f's_add_u32 s{s0}, s{s0}, {kp}')
        if kk: a(f's_add_u32 s{s0}, s{s0}, 128')
        a(f's_sub_u32 s{s1}, 2048, s{s0}')
        a(f's_and_b32 s{s1}, s{s1}, 2047')
        a(f's_mul_i32 s{s0}, s{s0}, 450')
        a(f's_mul_i32 s{s1}, s{s1}, 450')
        a(f'v_mov_b32 v{vdst+kk}, s{s1}')
        a(f'v_mov_b32 v{vt1}, s{s0}')
        a(f'v_cndmask_b32 v{vdst+kk}, v{vdst+kk}, v{vt1}, vcc')
        a(f'v_and_b32 v{vdst+kk}, -16, v{vdst+kk}')
        a(f'v_add_u32 v{vdst+kk}, v{vdst+kk}, v{vt0}')

def gen_k0(stamps=False, exp=''):
    a = Asm()
    TV = (120, 121, 122)
    nst = (3 if 'KA' in exp else 1) if stamps else 0
    a.label('k0_kernel')
    if 'KA' in exp: a('s_memrealtime s[92:93]')
    a(f's_cmp_ge_u32 s2, {K0_GRID}')
    a('s_cbranch_scc1 K0_END')
    a('s_load_dwordx2 s[4:5], s[0:1], 0')
    a('s_load_dwordx2 s[6:7], s[0:1], 88')
    a('s_load_dwordx4 s[16:19], s[0:1], 56')
    a('s_load_dwordx4 s[32:35], s[0:1], 8')
    a('s_getpc_b64 s[36:37]')
    a.label('K0_PC')
    a('s_sub_u32 s36, s36, K0_PC-k0_kernel')
    a('s_subb_u32 s37, s37, 0')
    a('s_mov_b32 s38, k1_kernel-k0_kernel')
    a('s_mov_b32 s39, 0x00020000')
    a('v_lshlrev_b32 v1, 4, v0')
    a('buffer_load_dwordx4 v[112:115], v1, s[36:39], 0 offen')
    a('v_lshrrev_b32 v1, 6, v0')
    a('v_and_b32 v0, 63, v0')
    a('v_readfirstlane_b32 s3, v1')
    a('v_lshlrev_b32 v1, 4, v0')
    a('v_and_b32 v2, 15, v0')
    a('v_lshrrev_b32 v3, 4, v0')
    a(f's_cmp_ge_u32 s2, {K0_NA}')
    a('s_cbranch_scc1 K0_B')
    a('s_lshr_b32 s21, s2, 5')
    a('s_lshl_b32 s21, s21, 3')
    a('s_and_b32 s20, s2, 7')
    a('s_add_u32 s21, s21, s20')
    a('s_mul_i32 s23, s21, 896')
    a(f's_mul_i32 s24, s3, {8*28672}')
    a('s_add_u32 s23, s23, s24')
    a(f's_mul_i32 s24, s3, {8*XS}')
    a('s_mov_b32 m0, s24')
    a('s_waitcnt lgkmcnt(0)')
    if 'KA' in exp: a('s_memrealtime s[94:95]')
    srd(a, 8, 4, NB_X)
    a('s_mov_b32 exec_hi, 0x00ffffff')
    for r in range(8):
        a('buffer_load_dwordx4 v1, s[8:11], s23 offen lds')
        if r < 7:
            a(f's_add_u32 m0, m0, {XS}')
            a('s_add_u32 s23, s23, 28672')
    a('s_mov_b32 exec_hi, -1')
    srd(a, 12, 6, WS_SIZE)
    stamp(a, 0, 0, 12, stamps, tmp_v=TV)
    if 'KA' in exp:
        a('v_mov_b32 v120, s92'); a('v_mov_b32 v121, s94')
        a('buffer_store_dword v120, v122, s[12:15], 0 offen offset:24')
        a('buffer_store_dword v121, v122, s[12:15], 0 offen offset:32')
    a('s_lshr_b32 s22, s2, 2')
    a('s_and_b32 s22, s22, 6')
    a('s_lshr_b32 s20, s3, 2')
    a('s_add_u32 s22, s22, s20')
    a('s_and_b32 s29, s3, 3')
    CT = 80
    a('s_lshl_b32 s24, s29, 4')
    a('v_add_u32 v4, s24, v2')
    a('v_lshrrev_b32 v5, 1, v4')
    a('v_and_b32 v6, 1, v4')
    a('v_cmp_eq_u32 vcc, 1, v4')
    a('v_mov_b32 v7, 32')
    a('v_cndmask_b32 v5, v5, v7, vcc')
    a('v_mov_b32 v7, 0')
    a('v_cndmask_b32 v6, v6, v7, vcc')
    a('v_cvt_f32_u32 v5, v5')
    a('v_cvt_f32_u32 v6, v6')
    a('v_mul_f32 v5, 0x3c800000, v5')
    a('v_mul_f32 v6, 0x3e800000, v6')
    a('v_lshlrev_b32 v7, 3, v3')
    a('v_cvt_f32_u32 v7, v7')
    a('v_fma_f32 v6, v5, v7, v6')
    a('v_mul_f32 v7, 0x42000000, v5')
    a('v_add_f32 v7, v7, v6')
    for j in range(8):
        a(f'v_cos_f32 v{CT+j}, v6')
        a(f'v_cos_f32 v{CT+8+j}, v7')
        if j < 7:
            a('v_add_f32 v6, v6, v5')
            a('v_add_f32 v7, v7, v5')
    a('s_lshl_b32 s24, s3, 3')
    a('v_lshrrev_b32 v4, 3, v0')
    a('v_add_u32 v4, s24, v4')
    a(f'v_mul_u32_u24 v5, {XS}, v4')
    a('v_and_b32 v6, 7, v0')
    a('v_lshl_add_u32 v5, v6, 4, v5')
    a('v_and_b32 v6, 3, v0')
    a('v_lshrrev_b32 v7, 2, v2')
    a('v_lshl_add_u32 v7, v3, 3, v7')
    a(f'v_mul_u32_u24 v8, {XS}, v7')
    a('v_mul_u32_u24 v7, 224, v6')
    a('s_lshl_b32 s25, s22, 3')
    a('v_add3_u32 v8, v8, v7, s25')
    a(f'v_mul_u32_u24 v11, {2*57344}, v3')
    a('s_and_b32 s27, s21, 3')
    a('v_xor_b32 v7, s27, v2')
    a('v_lshl_add_u32 v11, v7, 4, v11')
    a(f's_mul_i32 s26, s29, {8*57344}')
    a('s_lshl_b32 s27, s21, 8')
    a('s_add_u32 s26, s26, s27')
    a('s_lshl_b32 s27, s22, 13')
    a('s_add_u32 s26, s26, s27')
    a(f's_add_u32 s26, s26, {WS_U:#x}')
    a('s_add_u32 s27, s26, 57344')
    a('v_lshlrev_b32 v12, 2, v4')
    a('v_lshlrev_b32 v13, 1, v4')
    a('v_lshlrev_b32 v14, 5, v3')
    a('v_lshlrev_b32 v15, 4, v3')
    a('s_mov_b32 s28, 0x3f803f80')
    for i in range(4): a(f'v_mov_b32 v{16+i}, 0')
    a(f's_waitcnt vmcnt({nst})')
    stamp(a, 0, 1, 12, stamps, tmp_v=TV)
    XB = 20
    for i in range(7):
        a(f'ds_read_b128 v[{XB+4*i}:{XB+4*i+3}], v5 offset:{128*i}')
    for i in range(7):
        a(f's_waitcnt lgkmcnt({6-i})')
        for j in range(4):
            r = XB + 4 * i + j
            a(f'v_dot2c_f32_bf16 v{16+(j&1)}, s28, v{r}')
            a(f'v_dot2c_f32_bf16 v{18+(j&1)}, v{r}, v{r}')
    a('v_add_f32 v16, v16, v17')
    a('v_add_f32 v18, v18, v19')
    for qp in ('quad_perm:[1,0,3,2]', 'quad_perm:[2,3,0,1]', 'row_half_mirror'):
        a(f'v_add_f32_dpp v16, v16, v16 {qp} row_mask:0xf bank_mask:0xf')
        a(f'v_add_f32_dpp v18, v18, v18 {qp} row_mask:0xf bank_mask:0xf')
    inv = 0x3b124925
    a(f'v_mul_f32 v16, {inv:#x}, v16')
    a(f'v_mul_f32 v18, {inv:#x}, v18')
    a('v_fma_f32 v18, -v16, v16, v18')
    a('v_max_f32 v18, 0, v18')
    a('v_cvt_pk_bf16_f32 v17, -v16, -v16')
    rb16(a, 18, 18)
    a(f'ds_write_b16 v13, v17 offset:{MO}')
    a('v_add_f32 v18, 0x3727c5ac, v18')
    rb16(a, 18, 18)
    a('v_sqrt_f32 v18, v18')
    rb16(a, 18, 18)
    a('v_rcp_f32 v18, v18')
    a(f'ds_write_b32 v12, v18 offset:{RO}')
    a('s_waitcnt lgkmcnt(0)')
    a('s_barrier')
    a('s_cmp_eq_u32 s22, 7')
    a('s_cbranch_scc1 K0_END')
    for ks in range(2):
        for h in range(2):
            a(f'ds_read_b128 v[{20+8*ks+4*h}:{23+8*ks+4*h}], v14 offset:{RO+128*ks+16*h}')
    for ks in range(2):
        a(f'ds_read_b128 v[{36+4*ks}:{39+4*ks}], v15 offset:{MO+64*ks}')
    for ks in range(2):
        for t in range(4):
            for h in range(2):
                b = 44 + 8 * t + 4 * ks + 2 * h
                a(f'ds_read_b64_tr_b16 v[{b}:{b+1}], v8 offset:{ks*32*XS + h*4*XS + t*56}')
        if ks == 0:
            a('s_waitcnt lgkmcnt(10)')
            for p in range(8):
                a(f'v_pk_mul_f32 v[{CT+2*p}:{CT+2*p+1}], v[{CT+2*p}:{CT+2*p+1}], v[{20+2*p}:{21+2*p}]')
    for p in range(8):
        a(f'v_cvt_pk_bf16_f32 v{20+p}, v{CT+2*p}, v{CT+2*p+1}')
    a('s_waitcnt lgkmcnt(8)')
    a('v_mfma_f32_16x16x32_bf16 v[28:31], v[20:23], v[36:39], 0')
    a('v_mfma_f32_16x16x32_bf16 v[28:31], v[24:27], v[40:43], v[28:31]')
    DT = 80
    for t in range(4):
        a(f'v_mfma_f32_16x16x32_bf16 v[{DT+4*t}:{DT+4*t+3}], v[20:23], v[{44+8*t}:{47+8*t}], v[28:31]')
    a('s_waitcnt lgkmcnt(0)')
    for t in range(4):
        a(f'v_mfma_f32_16x16x32_bf16 v[{DT+4*t}:{DT+4*t+3}], v[24:27], v[{48+8*t}:{51+8*t}], v[{DT+4*t}:{DT+4*t+3}]')
    for i in range(4):
        a(f'v_cvt_pk_bf16_f32 v{104+2*i}, v{DT+i}, v{DT+4+i}')
        a(f'v_cvt_pk_bf16_f32 v{105+2*i}, v{DT+8+i}, v{DT+12+i}')
    a('buffer_store_dwordx4 v[104:107], v11, s[12:15], s26 offen')
    a('buffer_store_dwordx4 v[108:111], v11, s[12:15], s27 offen')
    if stamps:
        a('s_waitcnt vmcnt(0)')
        stamp(a, 0, 2, 12, stamps, tmp_v=TV)
    a('s_endpgm')
    a.label('K0_B')
    a(f's_cmp_ge_u32 s2, {K0_B0 + K0_NB}')
    a('s_cbranch_scc1 K0_C')
    a(f's_sub_u32 s20, s2, {K0_B0}')
    a('v_lshrrev_b32 v4, 3, v0')
    a('v_lshlrev_b32 v5, 1, v3')
    a('v_and_b32 v6, 7, v0')
    a('v_xor_b32 v6, v6, v5')
    a('v_mul_u32_u24 v4, 5376, v4')
    a('v_lshl_add_u32 v4, v6, 4, v4')
    a('s_lshl_b32 s22, s20, 7')
    a(f's_mul_i32 s23, s3, {56*5376}')
    a('s_add_u32 s23, s23, s22')
    a(f's_mul_i32 s24, s3, {7*1024}')
    a('s_mov_b32 m0, s24')
    a('s_lshl_b32 s25, s3, 8')
    a('v_lshl_add_u32 v7, v0, 2, s25')
    a('s_waitcnt lgkmcnt(0)')
    if 'KA' in exp: a('s_memrealtime s[94:95]')
    srd(a, 8, 18, NB_WMOD)
    srd(a, 28, 16, 896)
    a('buffer_load_dword v8, v7, s[28:31], 0 offen')
    for r in range(7):
        a('buffer_load_dwordx4 v4, s[8:11], s23 offen nt lds')
        if r < 6:
            a('s_add_u32 m0, m0, 1024')
            a(f's_add_u32 s23, s23, {8*5376}')
    srd(a, 12, 6, WS_SIZE)
    stamp(a, 0, 0, 12, stamps, tmp_v=TV)
    if 'KA' in exp:
        a('v_mov_b32 v120, s92'); a('v_mov_b32 v121, s94')
        a('buffer_store_dword v120, v122, s[12:15], 0 offen offset:24')
        a('buffer_store_dword v121, v122, s[12:15], 0 offen offset:32')
    a('s_mul_i32 s21, s20, 37')
    a('s_lshr_b32 s21, s21, 8')
    SO = 57344
    a('v_lshrrev_b32 v10, 2, v0')
    a('v_lshrrev_b32 v11, 3, v0')
    a('v_xor_b32 v11, s3, v11')
    a('v_and_b32 v11, 3, v11')
    a('v_lshlrev_b32 v10, 7, v10')
    a('v_lshl_add_u32 v10, v11, 5, v10')
    a('v_and_b32 v11, 3, v0')
    a('v_lshl_add_u32 v10, v11, 3, v10')
    a('v_lshlrev_b32 v11, 3, v3')
    a('s_mul_i32 s24, s21, 448')
    a('s_lshl_b32 s25, s20, 6')
    a('s_sub_u32 s25, s25, s24')
    a('s_lshl_b32 s26, s3, 4')
    a('s_add_u32 s25, s25, s26')
    a('v_add_u32 v12, s25, v2')
    a('v_mul_u32_u24 v13, 2341, v12')
    a('v_lshrrev_b32 v13, 16, v13')
    a('v_mul_u32_u24 v14, 28, v13')
    a('v_sub_u32 v14, v12, v14')
    a('v_cvt_f32_u32 v96, v12')
    a('v_mul_f32 v96, 0x3b124925, v96')
    a('v_lshlrev_b32 v97, 2, v3')
    a('v_cvt_f32_u32 v97, v97')
    a('v_mul_f32 v97, v97, v96')
    for j in range(4):
        a(f'v_cos_f32 v{88+j}, v97')
        a(f'v_sin_f32 v{92+j}, v97')
        if j < 3: a('v_add_f32 v97, v97, v96')
    a('s_cmp_eq_u32 s21, 2')
    a('s_cselect_b32 s40, 4, 6')
    a('s_cselect_b32 s41, 8, 4')
    a('v_lshlrev_b32 v96, s40, v13')
    a('v_lshlrev_b32 v97, s41, v3')
    a('v_lshl_add_u32 v96, v14, 10, v96')
    a('s_mul_i32 s40, s21, 28672')
    a(f's_add_u32 s40, s40, {WS_G:#x}')
    a('s_sub_u32 s41, s21, 1')
    a('s_cmp_lt_u32 s41, 2')
    a(f's_cselect_b32 s41, 0, {OOB:#x}')
    a('v_add3_u32 v96, v96, v97, s41')
    a('v_lshl_add_u32 v13, v14, 4, v13')
    a('s_cmp_lt_u32 s21, 3')
    a('s_cselect_b64 vcc, -1, 0')
    a('v_cndmask_b32 v12, v12, v13, vcc')
    a('v_add_u32 v12, s24, v12')
    a('v_lshlrev_b32 v12, 2, v12')
    a(f'v_mov_b32 v13, {OOB:#x}')
    a('v_cmp_gt_u32 vcc, 16, v0')
    a('v_cndmask_b32 v12, v13, v12, vcc')
    a('s_mov_b32 s26, 0')
    a('s_mov_b32 s27, 1.0')
    a('s_cmp_eq_u32 s21, 1')
    a('s_cselect_b32 s26, 1.0, s26')
    a('s_cmp_eq_u32 s21, 4')
    a('s_cselect_b32 s26, 1.0, s26')
    a('s_cmp_eq_u32 s21, 0')
    a('s_cselect_b32 s27, 0x45000000, s27')
    a('s_cmp_eq_u32 s21, 2')
    sc = struct.unpack('<I', struct.pack('<f', 2.0 / (S * D)))[0]
    a(f's_cselect_b32 s27, {sc:#x}, s27')
    a(f's_waitcnt vmcnt({7+nst})')
    a('v_lshlrev_b32 v9, 16, v8')
    a('v_and_b32 v8, 0xffff0000, v8')
    for r in (8, 9):
        a(f'v_mul_f32 v{r+6}, 0xbfb8aa3b, v{r}')
        a(f'v_exp_f32 v{r+6}, v{r+6}')
        a(f'v_add_f32 v{r+6}, 1.0, v{r+6}')
        a(f'v_rcp_f32 v{r+6}, v{r+6}')
        a(f'v_mul_f32 v{r}, v{r}, v{r+6}')
    a('v_cvt_pk_bf16_f32 v9, v9, v8')
    a(f'ds_write_b32 v7, v9 offset:{SO}')
    a('s_waitcnt vmcnt(0) lgkmcnt(0)')
    a('s_barrier')
    a('s_cmp_ge_u32 s3, 4')
    a('s_cbranch_scc1 K0_END')
    stamp(a, 0, 1, 12, stamps, tmp_v=TV)
    def rd(ks, base):
        a(f'ds_read_b64 v[{base}:{base+1}], v11 offset:{SO + 64*ks}')
        a(f'ds_read_b64 v[{base+2}:{base+3}], v11 offset:{SO + 64*ks + 32}')
        a(f'ds_read_b64_tr_b16 v[{base+4}:{base+5}], v10 offset:{4096*ks}')
        a(f'ds_read_b64_tr_b16 v[{base+6}:{base+7}], v10 offset:{4096*ks + 2048}')
    base = lambda ks: 20 + 8 * (ks % 8)
    for ks in range(3): rd(ks, base(ks))
    for ks in range(14):
        if ks + 3 < 14:
            rd(ks + 3, base(ks + 3))
            a('s_waitcnt lgkmcnt(12)')
        else:
            a(f's_waitcnt lgkmcnt({4*(13-ks)})')
        b = base(ks)
        c = '0' if ks == 0 else 'v[16:19]'
        a(f'v_mfma_f32_16x16x32_bf16 v[16:19], v[{b}:{b+3}], v[{b+4}:{b+7}], {c}')
    rb16(a, 16, 16)
    a('v_add_f32 v16, s26, v16')
    rb16(a, 16, 16)
    a('v_mul_f32 v16, s27, v16')
    for p in range(4): a(f'v_pk_mul_f32 v[{88+2*p}:{89+2*p}], v[{88+2*p}:{89+2*p}], v[16:17] op_sel_hi:[1,0]')
    a('buffer_store_dword v16, v12, s[12:15], 0 offen')
    for p in range(4): a(f'v_cvt_pk_bf16_f32 v{84+p}, v{88+2*p}, v{89+2*p}')
    a('buffer_store_dwordx4 v[84:87], v96, s[12:15], s40 offen')
    if stamps:
        a('s_waitcnt vmcnt(0)')
        stamp(a, 0, 2, 12, stamps, tmp_v=TV)
    a('s_endpgm')
    a.label('K0_C')
    a(f's_cmp_lt_u32 s2, {K0_C0}')
    a('s_cbranch_scc1 K0_Z')
    a(f's_sub_u32 s20, s2, {K0_C0}')
    a('s_lshr_b32 s21, s20, 3')
    a('s_lshl_b32 s21, s21, 13')
    a('s_lshl_b32 s22, s3, 10')
    a('s_add_u32 s21, s21, s22')
    a('s_add_u32 s21, s21, k1_kernel-k0_kernel')
    a('s_mov_b32 s38, CODE_END-k0_kernel')
    a('buffer_load_dwordx4 v[116:119], v1, s[36:39], s21 offen')
    w_rows(a, 's20', 's3', 4, 6, 7, 24)
    a('s_lshl_b32 s28, s3, 12')
    a('s_mov_b32 m0, s28')
    a('s_waitcnt lgkmcnt(0)')
    if 'KA' in exp: a('s_memrealtime s[94:95]')
    srd(a, 40, 32, NB_W)
    srd(a, 44, 34, NB_W)
    for kk in range(2):
        for arr in range(2):
            a(f'buffer_load_dwordx4 v{4+kk}, s[{40+4*arr}:{43+4*arr}], 0 offen nt lds')
            if not (kk and arr): a('s_add_u32 m0, m0, 1024')
    srd(a, 12, 6, WS_SIZE)
    stamp(a, 0, 0, 12, stamps, tmp_v=TV)
    if 'KA' in exp:
        a('v_mov_b32 v120, s92'); a('v_mov_b32 v121, s94')
        a('buffer_store_dword v120, v122, s[12:15], 0 offen offset:24')
        a('buffer_store_dword v121, v122, s[12:15], 0 offen offset:32')
    WA, WW, PK = 24, 40, 80
    a('v_lshlrev_b32 v8, 7, v3')
    a('v_lshl_add_u32 v8, v2, 1, v8')
    a('v_sub_u32 v9, 288, v8')
    a('v_max_i32 v9, 0, v9')
    a('v_cmp_eq_u32 vcc, 3, v3')
    a('v_add_u32 v11, 64, v8')
    a('v_sub_u32 v12, 832, v8')
    a('v_cndmask_b32 v11, v11, v12, vcc')
    a('v_add_u32 v12, 96, v8')
    a('v_sub_u32 v13, 800, v8')
    a('v_cndmask_b32 v12, v12, v13, vcc')
    a('v_mov_b32 v13, 0')
    a('v_bfrev_b32 v14, 1')
    a('v_cndmask_b32 v20, v13, v14, vcc')
    a('v_cmp_eq_u32 s[48:49], 0, v0')
    a('v_cmp_eq_u32 s[50:51], 48, v0')
    a('v_cndmask_b32 v21, v13, v14, s[48:49]')
    for kk in range(2):
        w = WA + 5 * kk
        a(f's_and_b32 s29, s{24+2*kk}, 15')
        a('s_add_u32 s29, s29, s28')
        a(f's_and_b32 s30, s{25+2*kk}, 15')
        a('s_add_u32 s30, s30, s28')
        a('s_add_u32 s30, s30, 512')
        a('v_mov_b32 v15, s29')
        a('v_mov_b32 v16, s30')
        a('v_cndmask_b32 v17, v15, v16, vcc')
        a(f'v_add_u32 v{w+1}, v17, v11')
        a(f'v_add_u32 v{w+2}, v17, v12')
        a('v_add_u32 v15, 448, v15')
        a(f'v_cndmask_b32 v{w+4}, v15, v16, s[48:49]')
        a(f'v_add_u32 v{w}, s29, v8')
        a(f'v_add_u32 v{w+3}, s30, v9')
    a('s_lshl_b32 s29, s20, 15')
    a('s_add_u32 s29, s29, s28')
    a(f's_add_u32 s29, s29, {WS_WEFF:#x}')
    a(f's_waitcnt vmcnt({nst})')
    for kk in range(2):
        w = WA + 5 * kk
        for arr in range(2):
            b = WW + 18 * kk + 9 * arr; of = 2048 * kk + 1024 * arr
            a(f'ds_read_u16 v{b+0}, v{w} offset:{of}')
            a(f'ds_read_u16 v{b+1}, v{w} offset:{of+32}')
            a(f'ds_read_u16 v{b+2}, v{w+1} offset:{of}')
            a(f'ds_read_u16 v{b+3}, v{w+2} offset:{of}')
            for i in range(4):
                a(f'ds_read_u16 v{b+4+i}, v{w+3} offset:{of+32*(3-i)}')
            a(f'ds_read_u16 v{b+8}, v{w+4} offset:{of}')
    for kk in range(2):
        a(f's_waitcnt lgkmcnt({15 if kk == 0 else 0})')
        b = WW + 18 * kk; o = PK + 8 * kk
        for i in range(8): a(f'v_lshl_or_b32 v{o+i}, v{b+9+i}, 16, v{b+i}')
        a(f'v_lshl_or_b32 v15, v{b+17}, 16, v{b+8}')
        for i in range(4, 8): a(f'v_xor_b32 v{o+i}, v14, v{o+i}')
        a(f'buffer_store_dwordx4 v[{o+4}:{o+7}], v1, s[12:15], s29 offen offset:{2048*kk+1024} sc1')
        for i in (2, 3): a(f'v_xor_b32 v{o+i}, v20, v{o+i}')
        a('v_xor_b32 v15, v21, v15')
        a('v_lshlrev_b32 v16, 16, v15')
        a('v_and_b32 v17, 0xffff0000, v15')
        for i, m in ((0, 's[48:49]'), (2, 's[50:51]')):
            a(f'v_lshlrev_b32 v18, 16, v{o+i}')
            a(f'v_and_b32 v19, 0xffff0000, v{o+i}')
            a('v_pk_add_f32 v[18:19], v[18:19], v[16:17]')
            a('v_pk_mul_f32 v[18:19], v[18:19], 0.5 op_sel_hi:[1,0]')
            a('v_cvt_pk_bf16_f32 v18, v18, v19')
            a(f'v_cndmask_b32 v{o+i}, v{o+i}, v18, {m}')
        a(f'buffer_store_dwordx4 v[{o}:{o+3}], v1, s[12:15], s29 offen offset:{2048*kk} sc1')
    if stamps:
        a('s_waitcnt vmcnt(0)')
        stamp(a, 0, 2, 12, stamps, tmp_v=TV)
    a('s_endpgm')
    a.label('K0_Z')
    a(f's_cmp_lg_u32 s2, {K0_B0 + K0_NB}')
    a('s_cbranch_scc1 K0_END')
    a('s_waitcnt lgkmcnt(0)')
    srd(a, 12, 6, WS_SIZE)
    for q in range(4): a(f'v_mov_b32 v{4+q}, 0')
    a('s_mul_i32 s20, s3, 3072')
    a(f's_add_u32 s20, s20, {WS_FLAGS:#x}')
    for q in range(3): a(f'buffer_store_dwordx4 v[4:7], v1, s[12:15], s20 offen offset:{1024*q} sc1')
    if 'RG' in exp:
        a('s_cmp_lg_u32 s3, 0')
        a('s_cbranch_scc1 K0_END')
        a('s_memrealtime s[20:21]')
        a('s_waitcnt lgkmcnt(0)')
        a('s_bfe_u32 s20, s20, 0x40002')
        a('s_add_u32 s20, s20, 4')
        a('s_lshl_b32 s20, s20, 23')
        a('v_mov_b32 v8, s20')
        a(f'v_mov_b32 v9, {WS_REG:#x}')
        a('buffer_store_dword v8, v9, s[12:15], 0 offen sc1')
    a.label('K0_END')
    a('s_endpgm')
    return a
```

```python
from asmlib import *
from layout import *
from k0 import srd, rb16, stamp, w_rows

X1 = 6144
M2L = X1 + 256 * 144
UL = M2L + 4096
X2 = UL
GL = UL + 57344
XSA = GL + 28672
K1_LDS = XSA + 4096

def inter(a, mf, va):
    n, k = len(mf), len(va)
    for i, m in enumerate(mf):
        a(m)
        for x in va[i * k // n:(i + 1) * k // n]: a(x)

def gen_k1(stamps=False, exp=''):
    if 'K1=' not in exp: exp += ',HU,HW,H2'
    a = Asm()
    TV = (250, 251, 252)
    nst = 1 if stamps else 0
    a.label('k1_kernel')
    a(f's_cmp_ge_u32 s2, {K1_GRID}')
    a('s_cbranch_scc1 K1_END')
    a('s_load_dwordx2 s[16:17], s[0:1], 88')
    a('s_load_dwordx4 s[36:39], s[0:1], 32')
    a('s_load_dwordx2 s[40:41], s[0:1], 48')
    a('s_load_dwordx2 s[4:5], s[0:1], 0')
    a('v_lshrrev_b32 v1, 6, v0')
    a('v_and_b32 v0, 63, v0')
    a('v_readfirstlane_b32 s3, v1')
    a('v_lshlrev_b32 v1, 4, v0')
    a('v_and_b32 v2, 15, v0')
    a('v_lshrrev_b32 v3, 4, v0')
    a(f's_cmp_ge_u32 s2, {K1_NF}')
    a('s_cbranch_scc1 K1_PREP')
    if 'noF' in exp: a('s_endpgm')
    a('s_getpc_b64 s[42:43]')
    a.label('K1_PC')
    a('s_add_u32 s42, s42, k1_tbl-K1_PC')
    a('s_addc_u32 s43, s43, 0')
    srd(a, 44, 42, 6144)
    a('s_min_u32 s18, s3, 5')
    a('s_lshl_b32 s18, s18, 10')
    a('s_mov_b32 m0, s18')
    a('s_and_b32 s19, s2, 7')
    a('s_lshr_b32 s21, s2, 4')
    a('buffer_load_dwordx4 v1, s[44:47], s18 offen lds')
    a('s_lshl_b32 s21, s21, 3')
    a('s_add_u32 s19, s19, s21')
    a('s_bfe_u32 s48, s2, 0x10003')
    a('s_bfe_u32 s56, s2, 0x30003')
    a('s_sub_u32 s21, 64, s19')
    a('s_cmp_eq_u32 s19, 0')
    a('s_cselect_b32 s21, 32, s21')
    a('s_cmp_eq_u32 s48, 0')
    a('s_cselect_b32 s21, s19, s21')
    a('s_cmp_eq_u32 s2, 64')
    a('s_cselect_b32 s2, 64, s21')
    a('s_and_b32 s19, s19, 31')
    a('s_and_b32 s25, s2, 63')
    a('s_cmp_gt_u32 s25, 32')
    a('s_cselect_b32 s20, -1.0, 1.0')
    a('s_cmp_eq_u32 s19, 0')
    a('s_cselect_b32 s20, 0, s20')
    a('s_mul_i32 s19, s19, 57344')
    a('s_lshl_b32 s21, s3, 13')
    a('s_add_u32 s19, s19, s21')
    a(f's_add_u32 s19, s19, {WS_U:#x}')
    a(f's_add_u32 s23, s21, {UL}')
    a('s_lshl_b32 s48, s48, 12')
    a('s_xor_b32 s49, s48, 4096')
    a('s_add_u32 s22, s19, s49')
    a('s_add_u32 s19, s19, s48')
    a('s_add_u32 m0, s23, s48')
    a('s_lshl_b32 s54, s3, 12')
    a(f's_add_u32 s51, s54, {GL}')
    a(f's_add_u32 s54, s54, {WS_G + 28672:#x}')
    UA, M2, CA, SA, GA, M2I, G, FB, GI, DD, WP = 32, 64, 80, 96, 112, 116, 124, 148, 172, 200, 8
    WW = lambda kk, t: (124, 132, 140, 232)[2 * kk + t]
    a('v_lshlrev_b32 v13, 7, v2')
    a('v_add_u32 v13, s2, v13')
    a('s_lshr_b32 s27, s3, 1')
    a('s_lshl_b32 s27, s27, 3')
    a('s_and_b32 s21, s3, 1')
    a('s_add_u32 s27, s27, s21')
    a('v_lshl_add_u32 v14, v3, 1, s27')
    a('v_mul_u32_u24 v13, v13, v14')
    a('v_cvt_f32_u32 v13, v13')
    a('v_mul_f32 v13, 0x3a000000, v13')
    a('v_sin_f32 v17, v13')
    a('v_cos_f32 v18, v13')
    a('s_lshr_b32 s27, s3, 2')
    a('s_lshl_b32 s27, s27, 10')
    a('s_and_b32 s21, s3, 3')
    a('s_lshl_b32 s21, s21, 2')
    a('s_add_u32 s27, s27, s21')
    a('v_add_u32 v14, s27, v1')
    a('v_mul_f32 v19, s20, v17')
    a('v_mul_f32 v21, s20, v18')
    a('v_cvt_pk_bf16_f32 v15, v18, v19')
    a('v_cvt_pk_bf16_f32 v16, -v17, v21')
    a(f'ds_write_b32 v14, v15 offset:{M2L}')
    a(f'ds_write_b32 v14, v16 offset:{M2L+2048}')
    a('s_lshl_b32 s27, s2, 15')
    a('s_lshl_b32 s21, s3, 12')
    a('s_add_u32 s27, s27, s21')
    a(f's_add_u32 s50, s27, {WS_WEFF:#x}')
    late = [f'buffer_load_dwordx4 v[{WP+4*q}:{WP+4*q+3}], v1, s[28:31], s50 offen offset:{1024*q}' for q in range(4)]
    a('v_lshl_add_u32 v24, v3, 6, v2')
    a('v_mul_u32_u24 v24, 144, v24')
    a('s_lshl_b32 s27, s3, 4')
    a(f's_add_u32 s27, s27, {X1}')
    a('v_add_u32 v24, s27, v24')
    a('v_mul_u32_u24 v25, 144, v2')
    a('v_lshl_add_u32 v25, v3, 4, v25')
    a(f's_mul_i32 s27, s3, {32*144}')
    a(f's_add_u32 s27, s27, {X1}')
    a('v_add_u32 v25, s27, v25')
    a('v_mul_u32_u24 v26, 1040, v2')
    a('v_lshl_add_u32 v26, v3, 4, v26')
    a('s_lshl_b32 s27, s3, 7')
    a(f's_add_u32 s27, s27, {X2}')
    a('v_add_u32 v26, s27, v26')
    a('s_mov_b32 s21, 0xffff0000')
    a('s_waitcnt lgkmcnt(0)')
    srd(a, 28, 16, WS_SIZE)
    stamp(a, 1, 0, 28, stamps, tmp_v=TV)
    a('s_cmp_eq_u32 s3, 7')
    a('s_cbranch_scc1 K1_W7')
    ks1 = 1 if stamps and 'k1s' in exp else 0
    fbread = [f'ds_read_b128 v[{FB+4*q}:{FB+4*q+3}], v1 offset:{1024*q}' for q in range(6)]
    def ncs(dst, src):
        return [f'v_cvt_pk_bf16_f32 v{dst}, -v{src+4}, -v{src+5}', f'v_cvt_pk_bf16_f32 v{dst+1}, -v{src+6}, -v{src+7}',
                f'v_cvt_pk_bf16_f32 v{dst+2}, v{src}, v{src+1}', f'v_cvt_pk_bf16_f32 v{dst+3}, v{src+2}, v{src+3}',
                f'v_cvt_pk_bf16_f32 v{dst+4}, v{src+4}, v{src+5}', f'v_cvt_pk_bf16_f32 v{dst+5}, v{src+6}, v{src+7}']
    def dft16(src, d, m):
        return [f'v_mfma_f32_16x16x32_bf16 v[{d}:{d+3}], v[{src}:{src+3}], v[{m+2}:{m+5}], 0',
                f'v_mfma_f32_16x16x32_bf16 v[{d+4}:{d+7}], v[{src}:{src+3}], v[{m}:{m+3}], 0']
    su = ['v_lshrrev_b32 v8, 3, v0', 'v_lshlrev_b32 v9, 8, v8', 'v_and_b32 v10, 3, v0', 'v_lshl_add_u32 v9, v10, 6, v9', 'v_bfe_u32 v10, v0, 2, 1',
          's_lshr_b32 s27, s25, 5', 's_cmp_eq_u32 s25, 32\ns_cselect_b32 s27, 1, 0', 'v_xor_b32 v10, s27, v10', 'v_lshl_add_u32 v9, v10, 3, v9', 'v_add_u32 v9, s23, v9',
          'v_and_b32 v8, 3, v8', 'v_lshl_add_u32 v4, v8, 4, v9'] + [f'v_xor_b32 v{4+e}, {16*e}, v4' for e in range(1, 4)]
    su += ['v_add_u32 v28, s51, v1', 's_mov_b32 s52, 0x80008000', 's_add_u32 s53, s54, 28672']
    su += ['v_lshlrev_b32 v30, 9, v3', 'v_add_u32 v30, s2, v30', 'v_mul_u32_u24 v30, v30, v2', 'v_cvt_f32_u32 v30, v30',
           'v_mul_f32 v30, 0x3a000000, v30', 'v_cvt_f32_u32 v31, v2', 'v_mul_f32 v31, 0x3d800000, v31']
    for j in range(4):
        su += [f'v_sin_f32 v{84+j}, v30', f'v_cos_f32 v{80+j}, v30']
        if j < 3: su.append('v_add_f32 v30, v30, v31')
    su += ['v_lshrrev_b32 v27, 2, v2', 'v_mul_u32_u24 v27, 28672, v27', 'v_and_b32 v31, 3, v2', 'v_lshl_add_u32 v27, v31, 4, v27',
           f'v_mul_u32_u24 v31, {4*114688}, v3', 'v_add_u32 v27, v27, v31',
           'v_lshlrev_b32 v29, 6, v2', 'v_lshl_add_u32 v29, v3, 4, v29', 's_mul_i32 s27, s3, 4160', f's_add_u32 s27, s27, {X2}', 'v_add_u32 v29, s27, v29',
           's_lshr_b32 s24, s2, 1', 's_and_b32 s24, s24, 31', 's_and_b32 s27, s2, 1', 's_lshl_b32 s27, s27, 5', 's_add_u32 s24, s24, s27',
           's_lshl_b32 s24, s24, 6', 's_lshl_b32 s27, s3, 12', 's_add_u32 s24, s24, s27'] + [f's_add_u32 s{60+i}, s24, {WS_TP + i*114688:#x}' for i in range(4)]
    su += ncs(M2I, 80) + [f'v_mov_b32 v{96+q}, 0' for q in range(16)] + [f'v_add_u32 v30, {XSA}, v1', 's_or_b32 s55, s2, s3']
    ld = [f'buffer_load_dwordx4 v1, s[28:31], s19 offen offset:{1024*q} lds' for q in range(4)]
    ld[3] += '\ns_add_u32 m0, s23, s49'
    ld += [f'buffer_load_dwordx4 v1, s[28:31], s22 offen offset:{1024*q} lds' for q in range(4)]
    ld[7] += '\ns_mov_b32 m0, s51'
    NI = 3
    for x in ld[:NI]: a(x)
    inter(a, ld[NI:], su)
    a('s_waitcnt vmcnt(8) lgkmcnt(0)')
    a('s_barrier')
    stamp(a, 1, 5, 28, stamps and 'k1s' in exp, tmp_v=TV)
    for q in range(4): a(f'ds_read_b128 v[{M2+4*q}:{M2+4*q+3}], v1 offset:{M2L+1024*q}')
    for x in fbread: a(x)
    for q in range(4): a(f'buffer_load_dwordx4 v1, s[28:31], s54 offen offset:{1024*q} lds')
    grd = lambda dst, off: [f'ds_read_b64_tr_b16 v[{dst+6*l+2+2*z}:{dst+6*l+3+2*z}], v28 offset:{off+1024*l+8*z}' for l in range(4) for z in range(2)]
    neg = lambda dst: [f'v_xor_b32 v{dst+6*l+z}, s52, v{dst+6*l+4+z}' for l in range(4) for z in range(2)]
    a(f's_waitcnt vmcnt({4+ks1})')
    stamp(a, 1, 1, 28, stamps, tmp_v=TV)
    for d2l in range(4):
        for ks in range(2):
            for h in range(2):
                b = UA + 8 * d2l + 4 * ks + 2 * h
                a(f'ds_read_b64_tr_b16 v[{b}:{b+1}], v{4+d2l} offset:{4096*ks+2048*h}')
    late2 = [f'buffer_load_dwordx4 v[{GI+6*l+2}:{GI+6*l+5}], v1, s[28:31], s53 offen offset:{1024*l}' for l in range(4)]
    def phase1(d2l):
        o = []
        for ks in range(2):
            for c in range(2):
                d = DD + 8 * d2l + 4 * c
                cc = '0' if ks == 0 else f'v[{d}:{d+3}]'
                o.append(f'v_mfma_f32_16x16x32_bf16 v[{d}:{d+3}], v[{UA+8*d2l+4*ks}:{UA+8*d2l+4*ks+3}], v[{M2+8*c+4*ks}:{M2+8*c+4*ks+3}], {cc}')
        return o
    VA = UA
    def cvt4(dst, src):
        return [f'v_cvt_pk_bf16_f32 v{dst+p}, v{src+2*p}, v{src+2*p+1}' for p in range(4)]
    E = 64
    P = 80
    a('s_waitcnt lgkmcnt(12)')
    inter(a, phase1(0), late)
    a('s_waitcnt lgkmcnt(8)')
    for x in phase1(1): a(x)
    a(f's_waitcnt vmcnt({4+nst}) lgkmcnt(4)')
    inter(a, phase1(2), grd(G, 0))
    a('s_waitcnt lgkmcnt(8)')
    inter(a, phase1(3), cvt4(VA, DD) + cvt4(VA + 8, DD + 8))
    a('s_waitcnt lgkmcnt(0)')
    for x in neg(G)[:4]: a(x)
    inter(a, dft16(VA, DD, G), cvt4(VA + 16, DD + 16))
    inter(a, dft16(VA + 8, DD + 8, G + 6), neg(G)[4:])
    inter(a, dft16(VA + 16, DD + 16, G + 12), cvt4(VA + 24, DD + 24))
    for x in late2[:2]: a(x)
    inter(a, dft16(VA + 24, DD + 24, G + 18), late2[2:])
    for i in range(4):
        a(f'v_cvt_pk_bf16_f32 v{P+4*i}, v{DD+i}, v{DD+8+i}')
        a(f'v_cvt_pk_bf16_f32 v{P+4*i+2}, v{DD+4+i}, v{DD+12+i}')
    for i in range(4):
        a(f'v_cvt_pk_bf16_f32 v{P+4*i+1}, v{DD+16+i}, v{DD+24+i}')
        a(f'v_cvt_pk_bf16_f32 v{P+4*i+3}, v{DD+20+i}, v{DD+28+i}')
        a(f'ds_write_b128 v24, v[{P+4*i}:{P+4*i+3}] offset:{2304*i}')
    a('s_waitcnt vmcnt(4)')
    a('s_branch K1_J1')
    def dft28(kk, data, data_is_a, c0=None, dd=DD):
        o = []
        for ks in range(2):
            for t in range(2):
                for c in range(2):
                    d = dd + 16 * kk + 8 * t + 4 * c
                    f = FB + 6 * (2 * t + ks) + (2 if c == 0 else 0)
                    b = data + 8 * kk + 4 * ks
                    cc = f'v[{d}:{d+3}]' if ks else '0' if c0 is None else f'v[{c0+8*t+4*c}:{c0+8*t+4*c+3}]'
                    A, B = (b, f) if data_is_a else (f, b)
                    o.append(f'v_mfma_f32_16x16x32_bf16 v[{d}:{d+3}], v[{A}:{A+3}], v[{B}:{B+3}], {cc}')
        return o
    a.label('K1_W7')
    NG = 7 if 'doG' in exp else 0
    if NG:
        a('s_mul_i32 s56, s56, 3584')
        a(f's_add_u32 s56, s56, {WS_G + 28672:#x}')
        a('s_add_u32 s57, s56, 28672')
        for q in range(8): a(f'buffer_load_dwordx4 v[{112+4*q}:{115+4*q}], v1, s[28:31], s{56+q//4} offen offset:{min(1024*(q%4), 2560)}')
    a(f'v_mov_b32 v27, {OOB:#x}')
    for i in range(4): a(f's_mov_b32 s{60+i}, 0')
    a('s_mov_b32 s52, 0')
    a('s_mov_b32 s55, 1')
    a(f'v_add_u32 v30, {XSA}, v1')
    for q in range(16): a(f'v_mov_b32 v{96+q}, 0')
    for i in range(4): a(f'ds_write_b128 v24, v[96:99] offset:{2304*i}')
    a('s_cmp_lg_u32 s2, 0')
    a('s_cbranch_scc1 K1_W7A')
    a('v_lshlrev_b32 v4, 6, v2')
    a('v_lshl_add_u32 v4, v3, 4, v4')
    a('v_cmp_gt_u32 vcc, 12, v2')
    a('v_add_u32 v5, 1024, v4')
    a('buffer_load_dwordx4 v[32:35], v4, s[28:31], 0 offen')
    a('v_cndmask_b32 v5, v27, v5, vcc')
    a('buffer_load_dwordx4 v[36:39], v5, s[28:31], 0 offen')
    a('v_cvt_f32_u32 v6, v2')
    a('v_lshlrev_b32 v7, 2, v3')
    a('v_cvt_f32_u32 v7, v7')
    a('v_mul_f32 v4, 0x3d800000, v6')
    a('v_mul_f32 v5, v4, v7')
    for j in range(4):
        a(f'v_cos_f32 v{64+j}, v5')
        a(f'v_sin_f32 v{68+j}, v5')
        if j < 3: a('v_add_f32 v5, v5, v4')
    a('v_mul_f32 v4, 0x3b124925, v6')
    a('v_mul_f32 v5, v4, v7')
    a('v_mul_f32 v6, 0x41500000, v4')
    for ks in range(2):
        for j in range(4):
            a(f'v_cos_f32 v{72+8*ks+j}, v5')
            a(f'v_sin_f32 v{76+8*ks+j}, v5')
            a(f'v_add_f32 v5, v5, v{4 if j < 3 else 6}')
    for z in range(2):
        a(f'v_cvt_pk_bf16_f32 v{48+z}, v{64+2*z}, v{65+2*z}')
        a(f'v_cvt_pk_bf16_f32 v{52+z}, -v{68+2*z}, -v{69+2*z}')
        for r in (42, 46, 50, 54): a(f'v_mov_b32 v{r+z}, 0')
    a.label('K1_W7A')
    a(f's_waitcnt vmcnt({8 if NG else 0}) lgkmcnt(0)')
    a('s_barrier')
    for x in fbread + late: a(x)
    a('s_cbranch_scc1 K1_W7C')
    a('s_waitcnt vmcnt(4)')
    for ks in range(2):
        for z in range(2): a(f'v_cvt_pk_bf16_f32 v{40+4*ks+z}, v{32+4*ks+2*z}, v{33+4*ks+2*z}')
    for ks in range(2):
        for c in range(2): a(f'v_mfma_f32_16x16x32_bf16 v[{DD+8*ks+4*c}:{DD+8*ks+4*c+3}], v[{40+4*ks}:{43+4*ks}], v[{48+4*c}:{51+4*c}], 0')
    for ks in range(2):
        for j in range(4):
            re, im, c_, s_ = DD + 8 * ks + j, DD + 8 * ks + 4 + j, 72 + 8 * ks + j, 76 + 8 * ks + j
            a(f'v_mul_f32 v{DD+16+8*ks+j}, v{im}, v{s_}')
            a(f'v_mul_f32 v{DD+20+8*ks+j}, v{re}, v{s_}')
            a(f'v_fma_f32 v{DD+16+8*ks+j}, v{re}, v{c_}, v{DD+16+8*ks+j}')
            a(f'v_fma_f32 v{DD+20+8*ks+j}, v{im}, v{c_}, -v{DD+20+8*ks+j}')
        for x in cvt4(32 + 4 * ks, DD + 16 + 8 * ks): a(x)
    a('s_waitcnt lgkmcnt(0)')
    for x in dft28(0, 32, False): a(x)
    for q in range(4): a(f'ds_write_b128 v30, v[{DD+4*q}:{DD+4*q+3}] offset:{1024*q}')
    a.label('K1_W7C')
    a('s_waitcnt vmcnt(0)')
    a.label('K1_J1')
    a('s_waitcnt lgkmcnt(0)')
    a('s_barrier')
    stamp(a, 1, 2, 28, stamps, tmp_v=TV)
    BX = 32
    a('s_cmp_lg_u32 s55, 0')
    a('s_cbranch_scc1 K1_B0')
    for q in range(4): a(f'ds_read_b128 v[{96+4*q}:{99+4*q}], v30 offset:{1024*q}')
    a.label('K1_B0')
    for kk in range(2):
        for ks in range(2):
            b = BX + 8 * kk + 4 * ks
            a(f'ds_read_b128 v[{b}:{b+3}], v25 offset:{2304*kk+64*ks}')
    def wunp(kk):
        o = []
        for t in range(2):
            for i in range(4):
                src = WP + 8 * kk + 4 * t + i; w = WW(kk, t)
                o.append(f'v_lshlrev_b32 v{w+i}, 16, v{src}')
                o.append(f'v_and_b32 v{w+4+i}, s21, v{src}')
        return o
    YA = 48
    def wmul(kk):
        o = []
        for t in range(2):
            d = DD + 16 * kk + 8 * t; e = E + 16 * kk + 8 * t; wr = WW(kk, t); wi = wr + 4
            for p in range(2):
                xr = f'v[{d+2*p}:{d+2*p+1}]'; xi = f'v[{d+4+2*p}:{d+5+2*p}]'
                Wr = f'v[{wr+2*p}:{wr+2*p+1}]'; Wi = f'v[{wi+2*p}:{wi+2*p+1}]'
                ore = f'v[{e+2*p}:{e+2*p+1}]'; oim = f'v[{e+4+2*p}:{e+5+2*p}]'
                o.append(f'v_pk_mul_f32 {ore}, {xi}, {Wi}')
                o.append(f'v_pk_mul_f32 {oim}, {xr}, {Wi}')
                o.append(f'v_pk_fma_f32 {ore}, {xr}, {Wr}, {ore} neg_lo:[0,0,1] neg_hi:[0,0,1]')
                o.append(f'v_pk_fma_f32 {oim}, {xi}, {Wr}, {oim} neg_lo:[1,0,1] neg_hi:[1,0,1]')
        return o
    for x in wunp(0): a(x)
    a('s_waitcnt lgkmcnt(2)')
    inter(a, dft28(0, BX, False, 96), wunp(1))
    a('s_waitcnt lgkmcnt(0)')
    a(f's_waitcnt vmcnt({nst})')
    inter(a, dft28(1, BX, False), neg(GI))
    for x in wmul(0): a(x)
    for x in cvt4(YA, E) + cvt4(YA + 4, E + 8): a(x)
    for x in wmul(1): a(x)
    inter(a, dft28(0, YA, True), cvt4(YA + 8, E + 16) + cvt4(YA + 12, E + 24))
    P2 = 32
    def outb(kk):
        o = []
        for t in range(2):
            q = P2 + 8 * kk + 4 * t
            o += cvt4(q, DD + 16 * kk + 8 * t) + [f'ds_write_b128 v26, v[{q}:{q+3}] offset:{16640*t+64*kk}']
        return o
    m = dft28(1, YA, True)
    for x in m[:3]: a(x)
    inter(a, m[3:], outb(0))
    for x in outb(1): a(x)
    a('s_waitcnt lgkmcnt(0)')
    a('s_barrier')
    a('s_cmp_eq_u32 s3, 7')
    a('s_cbranch_scc1 K1_END')
    stamp(a, 1, 3, 28, stamps, tmp_v=TV)
    ZA = 48
    for d2l in range(4):
        a(f'ds_read_b128 v[{ZA+4*d2l}:{ZA+4*d2l+3}], v29 offset:{1040*d2l}')
    ZB = 32
    def ph3(d2l):
        e = E + 8 * d2l
        return [f'v_mfma_f32_16x16x32_bf16 v[{e}:{e+3}], v[{M2I+2}:{M2I+5}], v[{ZB+4*d2l}:{ZB+4*d2l+3}], 0',
                f'v_mfma_f32_16x16x32_bf16 v[{e+4}:{e+7}], v[{M2I}:{M2I+3}], v[{ZB+4*d2l}:{ZB+4*d2l+3}], 0']
    O = 48
    for d2l in range(4):
        a(f's_waitcnt lgkmcnt({3-d2l})')
        for x in dft16(ZA + 4 * d2l, DD + 8 * d2l, GI + 6 * d2l): a(x)
    for x in cvt4(ZB, DD): a(x)
    for d2l in range(4):
        inter(a, ph3(d2l), cvt4(ZB + 4 * d2l + 4, DD + 8 * d2l + 8) if d2l < 3 else [])
    if 'SP' in exp:
        a('s_memrealtime s[70:71]')
        a('s_waitcnt lgkmcnt(0)')
        a.label('K1_SPIN')
        a('s_memrealtime s[72:73]')
        a('s_waitcnt lgkmcnt(0)')
        a('s_sub_u32 s72, s72, s70')
        a(f"s_cmp_lt_u32 s72, {100 * exp.count('SP')}")
        a('s_cbranch_scc1 K1_SPIN')
    a('s_nop 5')
    a('s_cmp_eq_u32 s25, 0')
    a('s_cbranch_scc1 K1_SHORT')
    for i in range(4):
        a(f'v_cvt_pk_bf16_f32 v{O+4*i+0}, v{E+i}, v{E+8+i}')
        a(f'v_cvt_pk_bf16_f32 v{O+4*i+1}, v{E+16+i}, v{E+24+i}')
        a(f'v_cvt_pk_bf16_f32 v{O+4*i+2}, v{E+4+i}, v{E+12+i}')
        a(f'v_cvt_pk_bf16_f32 v{O+4*i+3}, v{E+20+i}, v{E+28+i}')
        a(f'buffer_store_dwordx4 v[{O+4*i}:{O+4*i+3}], v27, s[28:31], s{60+i} offen')
    if stamps:
        a('s_waitcnt vmcnt(0)')
        stamp(a, 1, 4, 28, stamps, tmp_v=TV)
    a('s_endpgm')
    a.label('K1_SHORT')
    a('s_lshr_b32 s24, s2, 3')
    a('v_add_u32 v27, s24, v27')
    for i in range(4):
        a(f'v_cvt_pk_bf16_f32 v{O+4*i+0}, v{E+i}, v{E+8+i}')
        a(f'v_cvt_pk_bf16_f32 v{O+4*i+1}, v{E+16+i}, v{E+24+i}')
        a(f'buffer_store_dwordx2 v[{O+4*i}:{O+4*i+1}], v27, s[28:31], s{60+i} offen')
    if stamps:
        a('s_waitcnt vmcnt(0)')
        stamp(a, 1, 4, 28, stamps, tmp_v=TV)
    a('s_endpgm')
    a.label('K1_PREP')
    if 'noP' in exp: a('s_endpgm')
    a(f's_cmp_lt_u32 s2, {K1_W0}')
    a('s_cbranch_scc1 K1_END')
    a('s_lshl_b32 s18, s3, 12')
    a('s_mov_b32 m0, s18')
    a('v_and_b32 v4, 3, v0')
    a('v_lshrrev_b32 v5, 2, v2')
    a('v_and_b32 v6, 1, v3')
    a('v_lshrrev_b32 v7, 5, v0')
    a('s_waitcnt lgkmcnt(0)')
    srd(a, 28, 16, WS_SIZE)
    if 'SQ' in exp:
        a('s_memrealtime s[70:71]')
        a('s_waitcnt lgkmcnt(0)')
        a.label('K1_SPIN2')
        a('s_memrealtime s[72:73]')
        a('s_waitcnt lgkmcnt(0)')
        a('s_sub_u32 s72, s72, s70')
        a(f"s_cmp_lt_u32 s72, {60 * exp.count('SQ')}")
        a('s_cbranch_scc1 K1_SPIN2')
    if 'RG' in exp: a(f's_load_dword s55, s[16:17], {WS_REG:#x}')
    a(f's_cmp_ge_u32 s2, {K1_D0}')
    a('s_cbranch_scc1 K1_WD')
    a(f's_sub_u32 s19, s2, {K1_W0}')
    if 'HU' in exp:
        a('s_and_b32 s20, s19, -8')
        a('s_add_u32 s20, s20, s3')
        a('s_mul_i32 s21, s20, 147')
        a('s_lshr_b32 s21, s21, 12')
        a(f's_mul_i32 s21, s21, {8*57344 - 28*2048}')
        a('s_lshl_b32 s20, s20, 11')
        a('s_add_u32 s21, s21, s20')
        a('s_and_b32 s20, s19, 7')
        a('s_mul_i32 s20, s20, 57344')
        a('s_add_u32 s21, s21, s20')
        a(f's_add_u32 s21, s21, {WS_U:#x}')
        a('buffer_load_dwordx4 v[200:203], v1, s[28:31], s21 offen offset:1024')
        a('buffer_load_dwordx4 v[204:207], v1, s[28:31], s21 offen')
    XS, XB = 912, 40960
    srd(a, 12, 4, NB_X)
    a('s_lshr_b32 s50, s19, 2')
    a('s_and_b32 s51, s19, 3')
    a('s_lshr_b32 s20, s51, 1')
    a('s_lshl_b32 s20, s20, 5')
    a('s_and_b32 s21, s51, 1')
    a('s_add_u32 s20, s20, s21')
    a('s_lshr_b32 s21, s3, 2')
    a('s_lshl_b32 s21, s21, 6')
    a('s_add_u32 s20, s20, s21')
    a('s_and_b32 s21, s3, 3')
    a('s_lshl_b32 s21, s21, 3')
    a('s_add_u32 s20, s20, s21')
    a('s_lshl_b32 s20, s20, 4')
    a('s_add_u32 s20, s20, s50')
    a('s_mul_i32 s52, s20, 896')
    a('s_cmp_lt_u32 s19, 64')
    a('s_cselect_b32 s52, s52, 0')
    a('s_cselect_b32 s14, s14, 0')
    a('s_cselect_b32 s54, 1, 0')
    a(f's_mul_i32 s53, s3, {4*XS}')
    def xload():
        a(f's_add_u32 m0, s53, {XB}')
        a('s_mov_b32 exec_hi, 0x00ffffff')
        for r in range(4):
            a('buffer_load_dwordx4 v1, s[12:15], s52 offen nt lds')
            if r < 3:
                a(f's_add_u32 m0, m0, {XS}')
                a('s_add_u32 s52, s52, 28672')
        a('s_mov_b32 exec_hi, -1')
    a('s_cmp_ge_u32 s19, 56')
    a('s_cselect_b32 s20, 1, 0')
    a('s_cselect_b32 s8, s38, s36')
    a('s_cselect_b32 s9, s39, s37')
    a(f's_mov_b32 s10, {NB_WG:#x}')
    a('s_mov_b32 s11, 0x00020000')
    a('s_mul_i32 s21, s20, 56')
    a('s_sub_u32 s19, s19, s21')
    a('s_and_b32 s21, s19, 1')
    a('s_lshr_b32 s19, s19, 1')
    a('s_mul_i32 s22, s19, 116')
    a('s_add_u32 s22, s22, s20')
    a('s_lshl_b32 s22, s22, 10')
    a(f's_add_u32 s22, s22, {WS_WF:#x}')
    if 'RG' in exp:
        a('s_waitcnt lgkmcnt(0)')
        a('s_and_b32 s55, s55, 0x0f800000')
        a('s_add_u32 s22, s22, s55')
    a('s_cmp_eq_u32 s3, 7')
    a('s_cbranch_scc1 K1_WF_FIN')
    a('v_lshrrev_b32 v8, 3, v0')
    a('v_mul_u32_u24 v8, 3584, v8')
    a('v_and_b32 v9, 7, v0')
    a('v_lshl_add_u32 v8, v9, 4, v8')
    a('s_mul_i32 s23, s21, 7')
    a('s_add_u32 s23, s23, s3')
    a(f's_mul_i32 s23, s23, {32*3584}')
    a('s_lshl_b32 s24, s19, 7')
    a('s_add_u32 s23, s23, s24')
    if 'HU' in exp: a('s_waitcnt vmcnt(0)')
    if 'HB' in exp: a('s_barrier')
    for i in range(4):
        a('buffer_load_dwordx4 v8, s[8:11], s23 offen nt lds')
        if i < 3:
            a('s_add_u32 m0, m0, 1024')
            a(f's_add_u32 s23, s23, {8*3584}')
    stamp(a, 1, 0, 28, stamps, tmp_v=TV)
    a('s_and_b32 s23, s3, 1')
    a('s_mul_i32 s23, s23, 56')
    a('s_lshr_b32 s24, s3, 1')
    a('s_lshl_b32 s24, s24, 3')
    a('s_add_u32 s23, s23, s24')
    a('s_cmp_eq_u32 s3, 6')
    a('s_cselect_b32 s24, 56, 28')
    a('s_cselect_b32 s25, 28, 4')
    a('v_mul_u32_u24 v9, s24, v7')
    a('v_add_u32 v9, s23, v9')
    a('v_add_u32 v10, v9, v5')
    a('v_lshlrev_b32 v10, 7, v10')
    a('v_lshl_add_u32 v10, v6, 5, v10')
    a('v_lshl_add_u32 v10, v4, 3, v10')
    a('s_lshl_b32 s26, s25, 7')
    a('v_add_u32 v11, s26, v10')
    a('s_mul_i32 s26, s21, 896')
    a('v_lshl_add_u32 v9, v9, 2, s26')
    a('s_lshl_b32 s26, s25, 2')
    a('v_add_u32 v8, s26, v9')
    for q in range(4): a(f'v_mov_b32 v{12+q}, 0x3f803f80')
    a('s_mul_i32 s24, s21, 14')
    a('s_add_u32 s24, s24, s3')
    a('s_lshl_b32 s24, s24, 11')
    a('s_add_u32 s24, s24, s22')
    for z in range(1, 4): a(f's_add_u32 s{31+z}, s24, {7*2048*(z>>1) + 58*1024*(z&1)}')
    a('v_cmp_gt_u32 vcc, 32, v0')
    a('s_waitcnt vmcnt(0)')
    if 'XE' in exp: xload()
    a('s_barrier')
    stamp(a, 1, 1, 28, stamps, tmp_v=TV)
    ML = 28672
    CB, SBF, RW, SBP, AB, AC, SC = 32, 48, 64, 16, 96, 128, 80
    for wq in range(2):
        a(f'ds_read_b128 v[{CB+8*wq}:{CB+8*wq+3}], v9 offset:{ML+1792+448*wq}')
        a(f'ds_read_b128 v[{CB+8*wq+4}:{CB+8*wq+7}], v8 offset:{ML+1792+448*wq}')
        for j in range(2):
            z = 2 * wq + j
            a(f'ds_read_b64_tr_b16 v[{RW+4*z}:{RW+4*z+1}], v10 offset:{14336*wq+64*j}')
            a(f'ds_read_b64_tr_b16 v[{RW+4*z+2}:{RW+4*z+3}], v11 offset:{14336*wq+64*j}')
    for wq in range(2):
        a(f'ds_read_b128 v[{SBF+8*wq}:{SBF+8*wq+3}], v9 offset:{ML+448*wq}')
        a(f'ds_read_b128 v[{SBF+8*wq+4}:{SBF+8*wq+7}], v8 offset:{ML+448*wq}')
    UP = 160
    if 'XE' not in exp: xload()
    for z in range(4):
        wq, j = z >> 1, z & 1
        a(f's_waitcnt lgkmcnt({(12, 10, 6, 4)[z]})')
        for p in range(4):
            u = UP + 2 * p
            a(f'v_lshlrev_b32 v{u}, 16, v{RW+4*z+p}')
            a(f'v_and_b32 v{u+1}, 0xffff0000, v{RW+4*z+p}')
            a(f'v_pk_mul_f32 v[{u}:{u+1}], v[{u}:{u+1}], v[{CB+8*wq+2*p}:{CB+8*wq+2*p+1}]')
            a(f'v_cvt_pk_bf16_f32 v{SC+4*z+p}, v{u}, v{u+1}')
        a(f'buffer_store_dwordx4 v[{SC+4*z}:{SC+4*z+3}], v1, s[28:31], s{31+z if z else 24} offen sc1' if 'noWF' not in exp else 'buffer_load_dword v210, v1, s[28:31], 0 offen')
        d = AC + 16 * j
        a(f'v_mfma_f32_32x32x16_bf16 v[{d}:{d+15}], v[12:15], v[{SC+4*z}:{SC+4*z+3}], {"0" if wq == 0 else f"v[{d}:{d+15}]"}')
    a('s_waitcnt lgkmcnt(0)')
    for p in range(8): a(f'v_cvt_pk_bf16_f32 v{SBP+p}, v{SBF+2*p}, v{SBF+2*p+1}')
    for z in range(4):
        wq, j = z >> 1, z & 1; d = AB + 16 * j
        a(f'v_mfma_f32_32x32x16_bf16 v[{d}:{d+15}], v[{SBP+4*wq}:{SBP+4*wq+3}], v[{RW+4*z}:{RW+4*z+3}], {"0" if wq == 0 else f"v[{d}:{d+15}]"}')
    RED = 32768
    a('s_lshl_b32 s24, s3, 9')
    a('v_lshl_add_u32 v11, v0, 3, s24')
    a(f'v_cndmask_b32 v12, v{AC+16}, v{AC}, vcc')
    a(f'v_cndmask_b32 v13, v{AB+16}, v{AB}, vcc')
    a(f'ds_write_b64 v11, v[12:13] offset:{RED}')
    a(f'v_mul_u32_u24 v11, {XS}, v2')
    a('v_mul_u32_u24 v14, 56, v3')
    a('s_lshl_b32 s25, s3, 3')
    a('v_add3_u32 v11, v11, v14, s25')
    a(f's_mul_i32 s26, s50, {4*28672}')
    a('s_lshl_b32 s25, s3, 12')
    a('s_add_u32 s26, s26, s25')
    a('s_lshl_b32 s25, s51, 10')
    a('s_add_u32 s26, s26, s25')
    a(f's_add_u32 s26, s26, {WS_XF:#x}')
    if 'B3' in exp:
        a('s_waitcnt lgkmcnt(0)')
        a('s_barrier')
        a('s_waitcnt vmcnt(4)')
    else: a('s_waitcnt vmcnt(4) lgkmcnt(0)')
    a('s_barrier')
    a('s_cmp_eq_u32 s54, 0')
    a('s_cbranch_scc1 K1_END')
    for w in range(4):
        for hi in range(2):
            a(f'ds_read_b64 v[{32+4*w+2*hi}:{33+4*w+2*hi}], v11 offset:{XB + 224*w + 16*XS*hi}')
    for w in range(4):
        a(f's_waitcnt lgkmcnt({2*(3-w)})')
        a(f'buffer_store_dwordx4 v[{32+4*w}:{35+4*w}], v1, s[28:31], s26 offen sc1')
        if w < 3: a('s_add_u32 s26, s26, 28672')
    if stamps:
        a('s_waitcnt vmcnt(0)')
        stamp(a, 1, 5, 28, stamps, tmp_v=TV)
    a('s_endpgm')
    a.label('K1_WF_FIN')
    a(f's_mov_b32 s23, {WS_MOD + 3*1792}')
    for q in range(4): a(f'buffer_load_dwordx4 v1, s[28:31], s23 offen offset:{1024*q} lds')
    a('v_lshlrev_b32 v11, 3, v0')
    a('v_and_b32 v12, 31, v0')
    a('v_lshlrev_b32 v12, 4, v12')
    a(f'v_mul_u32_u24 v13, {58*1024}, v7')
    a('v_add_u32 v12, v12, v13')
    a('s_lshl_b32 s21, s21, 9')
    a('s_add_u32 s22, s22, s21')
    a(f's_add_u32 s22, s22, {28*2048}')
    a('v_mov_b32 v31, 0')
    a('s_waitcnt vmcnt(0)')
    if 'HB' in exp: a('s_barrier')
    if 'XE' in exp: xload()
    a('s_barrier')
    if 'XE' not in exp: xload()
    if 'B3' not in exp: a('s_waitcnt vmcnt(0)')
    a('s_barrier')
    for w in range(7):
        a(f'ds_read_b64 v[{16+2*w}:{17+2*w}], v11 offset:{RED+512*w}')
    a('s_waitcnt lgkmcnt(0)')
    for d_, s_ in ((16, 18), (20, 22), (24, 26), (16, 20), (24, 28), (16, 24)):
        a(f'v_pk_add_f32 v[{d_}:{d_+1}], v[{d_}:{d_+1}], v[{s_}:{s_+1}]')
    a('v_cvt_pk_bf16_f32 v20, v16, v17')
    a('v_lshlrev_b32 v22, 16, v20')
    a('v_and_b32 v23, 0xffff0000, v20')
    a('v_pk_add_f32 v[16:17], v[16:17], v[22:23] neg_lo:[0,1] neg_hi:[0,1]')
    a('v_cvt_pk_bf16_f32 v21, v16, v17')
    a('v_lshlrev_b32 v24, 16, v21')
    a('v_and_b32 v25, 0xffff0000, v21')
    a('v_pk_add_f32 v[16:17], v[16:17], v[24:25] neg_lo:[0,1] neg_hi:[0,1]')
    a('v_cvt_pk_bf16_f32 v28, v22, v24')
    a('v_cvt_pk_bf16_f32 v29, v16, v23')
    a('v_cvt_pk_bf16_f32 v30, v25, v17')
    a('buffer_store_dwordx4 v[28:31], v12, s[28:31], s22 offen sc1')
    if 'B3' in exp:
        a('s_waitcnt vmcnt(1)')
        a('s_barrier')
    if stamps:
        a('s_waitcnt vmcnt(0)')
        stamp(a, 1, 4, 28, stamps, tmp_v=TV)
    a('s_endpgm')
    a.label('K1_WD')
    a(f's_sub_u32 s19, s2, {K1_D0}')
    if 'HW' in exp:
        a('s_and_b32 s20, s19, 7')
        a('s_lshr_b32 s21, s3, 1')
        a('s_lshl_b32 s21, s21, 3')
        a('s_add_u32 s20, s20, s21')
        a('s_sub_u32 s21, 64, s20')
        a('s_cmp_eq_u32 s20, 0')
        a('s_cselect_b32 s21, 32, s21')
        a('s_bitcmp0_b32 s3, 0')
        a('s_cselect_b32 s21, s20, s21')
        a('s_lshl_b32 s21, s21, 15')
        a('s_lshr_b32 s22, s19, 3')
        a('s_lshl_b32 s22, s22, 12')
        a('s_add_u32 s21, s21, s22')
        a(f's_add_u32 s21, s21, {WS_WEFF:#x}')
        for q in range(4): a(f'buffer_load_dwordx4 v[{64+4*q}:{67+4*q}], v1, s[28:31], s21 offen offset:{1024*q}')
    srd(a, 8, 40, NB_WG)
    a('s_mul_i32 s20, s19, 37')
    a('s_lshr_b32 s20, s20, 8')
    a('s_mul_i32 s21, s20, 7')
    a('s_add_u32 s22, s21, s3')
    a('s_sub_u32 s21, s19, s21')
    a(f's_mul_i32 s23, s22, {32*896}')
    a('s_lshl_b32 s24, s21, 7')
    a('s_add_u32 s23, s23, s24')
    a('v_lshrrev_b32 v8, 3, v0')
    a('v_mul_u32_u24 v8, 896, v8')
    a('v_and_b32 v9, 7, v0')
    a('v_lshl_add_u32 v8, v9, 4, v8')
    a('v_lshl_add_u32 v10, v7, 2, v5')
    a('v_lshlrev_b32 v10, 7, v10')
    a('v_lshl_add_u32 v10, v6, 5, v10')
    a('v_lshl_add_u32 v10, v4, 3, v10')
    a('v_add_u32 v10, s18, v10')
    a('s_mul_i32 s24, s21, 112')
    a('s_lshl_b32 s25, s22, 1')
    a('s_add_u32 s24, s24, s25')
    a('s_lshl_b32 s24, s24, 11')
    a(f's_add_u32 s24, s24, {WS_WDF:#x}')
    if 'RG' in exp:
        a('s_waitcnt lgkmcnt(0)')
        a('s_and_b32 s55, s55, 0x0f800000')
        a('s_add_u32 s24, s24, s55')
    a('s_waitcnt vmcnt(0)')
    if 'H2' in exp: a('s_barrier')
    a('s_cmp_eq_u32 s3, 7')
    a('s_cbranch_scc1 K1_END')
    a(f's_cmp_ge_u32 s19, {K1_ND}')
    a('s_cbranch_scc1 K1_END')
    for i in range(4):
        a('buffer_load_dwordx4 v8, s[8:11], s23 offen nt lds')
        if i < 3:
            a('s_add_u32 m0, m0, 1024')
            a(f's_add_u32 s23, s23, {8*896}')
    stamp(a, 1, 0, 28, stamps, tmp_v=TV)
    a('s_waitcnt vmcnt(0)')
    for ks2 in range(2):
        for ct in range(2):
            for q in range(2):
                b = 16 + 8 * ks2 + 4 * ct + 2 * q
                a(f'ds_read_b64_tr_b16 v[{b}:{b+1}], v10 offset:{2048*ks2+1024*q+64*ct}')
    for z in range(4 if 'noWD' not in exp else 0):
        a(f's_waitcnt lgkmcnt({2*(3-z)})')
        a(f'buffer_store_dwordx4 v[{16+4*z}:{19+4*z}], v1, s[28:31], s24 offen offset:{1024*z} sc1')
    if stamps:
        a('s_waitcnt vmcnt(0)')
        stamp(a, 1, 4, 28, stamps, tmp_v=TV)
    a.label('K1_END')
    a('s_endpgm')
    return a
```

```python
from asmlib import *
from layout import *
from k0 import srd, rb16, stamp

K2_N = 224
AT_BYTES = 57 * 2048
R2O = AT_BYTES
RT = R2O + 512
RA = RT + 16384
K2_LDS = RA + 24576
JT = 8192

class Trk:
    def __init__(self, a, name, mx): self.a = a; self.tags = []; self.name = name; self.mx = mx; self.done = -1; self.waited = set()
    def op(self, text, tag=None):
        assert tag not in self.waited, tag
        self.a(text); self.tags.append(tag)
    def wait(self, *tags):
        idx = [i for i, t in enumerate(self.tags) if t in tags]
        assert idx, tags
        self.waited.update(tags)
        last = max(idx)
        if last <= self.done: return
        n = min(len(self.tags) - 1 - last, self.mx)
        self.done = len(self.tags) - 1 - n
        self.a(f's_waitcnt {self.name}({n})')
    def all(self):
        self.done = len(self.tags) - 1

def ids(a):
    a('s_and_b32 s18, s2, 7')
    a('s_lshr_b32 s19, s2, 3')
    a('s_mul_i32 s20, s19, 37')
    a('s_lshr_b32 s20, s20, 8')
    a('s_mul_i32 s21, s20, 7')
    a('s_sub_u32 s21, s19, s21')
    a('s_lshr_b32 s22, s18, 1')
    a('s_lshl_b32 s22, s22, 2')
    a('s_add_u32 s20, s20, s22')
    a('s_and_b32 s22, s18, 1')
    a('s_mul_i32 s23, s22, 7')
    a('s_add_u32 s23, s23, s21')

DEF = dict(R=4, nB1=4, nK=4, n0=3, n1=5, f1=-1, g1=0, g2=3, b0=12, rate=4.0, fa=3, win=14, pb=6, w0=8, fb=0, cb=0, ca=0, qa=8, qd=4, sc=2.0, st='0123456789abcdef', p1=26, c1=24, gw=8, pa=8, ba=3, r0=3.5, sx='', sen=0, ps=60, ord=0, oe=2, ma=-1, mb=0, mn=1, ms=3, mc=0, xn=0, xa=0, fs=30, cs=24, cl=16, sk=14, sa=8)

def gen_k2(stamps=False, exp=''):
    P = dict(DEF)
    for kv in exp.split(','):
        if '=' in kv and not kv.startswith('K1='):
            k_, v_ = kv.split('='); P[k_] = v_ if k_ in ('st', 'sx') else float(v_) if '.' in v_ else int(v_, 0)
    a = Asm(); vm = Trk(a, 'vmcnt', 63); lg = Trk(a, 'lgkmcnt', 15)
    TV = (60, 61, 62)
    tail = []
    def st(slot, force=False):
        if stamps and (force or f'{slot:x}' in P['st']):
            stamp(a, 2, slot, 8, True, tmp_v=TV); vm.tags.append('stamp'); lg.all()
    def check(tag, voff, soff, name, pre=()):
        vm.wait(tag)
        a('v_cmp_ne_u32 vcc, 1, v37')
        a('s_nop 1')
        a(f's_cbranch_vccnz {name}_S')
        a.label(f'{name}_OK')
        tail.extend([f'{name}_S:'] + list(pre) + ['s_mov_b32 s36, 0', f'{name}_L:',
            f'buffer_load_dword v37, {voff}, s[8:11], {soff} offen sc1', 's_add_u32 s36, s36, 1', 's_waitcnt vmcnt(0)',
            'v_cmp_ne_u32 vcc, 1, v37', 's_cmp_gt_u32 s36, 400000', f's_cbranch_scc1 {name}_OK', 's_nop 1',
            f's_cbranch_vccnz {name}_L', f's_branch {name}_OK'])
    def emit(lst):
        for kind, text, tag in lst:
            if kind == 'x': a(text)
            elif kind == 'v': vm.op(text, tag)
            elif kind == 'l': lg.op(text, tag)
            elif kind == 'wv': vm.wait(tag)
            elif kind == 'wl': lg.wait(tag)
            elif kind == 'st': st(tag)
            elif kind == 'f': text()
    X_ = lambda lst: [('x', t, None) for t in lst]
    a.label('k2_kernel')
    if 'KA' in exp: a('s_memrealtime s[92:93]')
    a(f's_cmp_ge_u32 s2, {K2_N}')
    a('s_cbranch_scc1 K2_END')
    a('s_load_dwordx2 s[4:5], s[0:1], 88')
    a('s_load_dwordx2 s[50:51], s[0:1], 72')
    a('v_lshrrev_b32 v1, 6, v0')
    a('v_and_b32 v0, 63, v0')
    a('v_readfirstlane_b32 s3, v1')
    a('v_lshlrev_b32 v1, 4, v0')
    a('s_getpc_b64 s[6:7]')
    a.label('K2_PC')
    a('s_add_u32 s6, s6, k2_tbl-K2_PC')
    a('s_addc_u32 s7, s7, 0')
    srd(a, 12, 6, 16384)
    a('s_lshl_b32 s16, s3, 12')
    a(f's_add_u32 s17, s16, {RT}')
    a('s_mov_b32 m0, s17')
    ids(a)
    for q in range(4):
        vm.op(f'buffer_load_dwordx4 v1, s[12:15], s16 offen offset:{1024*q} lds', 'R')
    a('s_and_b32 s40, s23, 3')
    a('s_lshr_b32 s41, s23, 2')
    a('s_cmp_eq_u32 s41, 3')
    a('s_cselect_b32 s42, 1, 0')
    a('s_lshl_b32 s40, s40, s42')
    a('s_mul_i32 s40, s40, 28672')
    a('s_lshl_b32 s41, s41, 13')
    a('s_add_u32 s40, s40, s41')
    a('s_cmp_ge_u32 s23, 12')
    a('s_cselect_b32 s41, 7, 1')
    a('s_lshl_b32 s41, s41, 12')
    a(f's_mul_i32 s26, s20, {4*28672}')
    a('s_add_u32 s40, s40, s26')
    a('s_lshr_b32 s42, s3, 1')
    a('s_mul_i32 s42, s42, s41')
    a('s_and_b32 s43, s3, 1')
    a('s_lshl_b32 s43, s43, 11')
    a('s_add_u32 s42, s42, s43')
    a('s_add_u32 s42, s42, s40')
    a(f's_add_u32 s42, s42, {WS_TP:#x}')
    a('s_lshl_b32 s43, s3, 11')
    a(f's_add_u32 m0, s43, {JT}')
    a('s_lshl_b32 s43, s3, 10')
    a('s_add_u32 s43, s43, s40')
    a(f's_add_u32 s43, s43, {WS_XF:#x}')
    a('s_add_u32 s44, s43, s41')
    a('s_mul_i32 s25, s3, 28672')
    a('s_add_u32 s26, s26, s25')
    a(f's_add_u32 s24, s26, {WS_TP:#x}')
    a(f's_add_u32 s26, s26, {WS_XF:#x}')
    a('s_waitcnt lgkmcnt(0)')
    if 'RG' in exp: a(f's_load_dword s64, s[4:5], {WS_REG:#x}')
    srd(a, 8, 4, WS_SIZE)
    XA = 200
    st(0)
    if stamps: a('s_mov_b32 s95, 0')
    if 'KA' in exp:
        a('v_mov_b32 v60, s92'); a('v_add_u32 v62, 8, v62')
        vm.op('buffer_store_dwordx2 v[60:61], v62, s[8:11], 0 offen', 'ka')
    for q in range(2): vm.op(f'buffer_load_dwordx4 v1, s[8:11], s42 offen offset:{1024*q} lds', 'J')
    vm.op('buffer_load_dwordx4 a[248:251], v1, s[8:11], s43 offen', 'JX')
    vm.op('buffer_load_dwordx4 a[252:255], v1, s[8:11], s44 offen', 'JX')
    TL = (0, 1, 6) if P['R'] == 12 else (6,)
    def load_tile(ti):
        t = TL[ti]
        out = X_([f's_add_u32 m0, s25, {4096*t}', f's_add_u32 s46, s24, {4096*t}', f's_add_u32 s47, s26, {4096*t}'])
        for q in range(4):
            out.append(('v', f'buffer_load_dwordx4 v1, s[8:11], s46 offen offset:{1024*q} lds', f't{ti}'))
        for n in range(4):
            out.append(('v', f'buffer_load_dwordx4 a[{XA+16*ti+4*n}:{XA+16*ti+4*n+3}], v1, s[8:11], s47 offen offset:{1024*n}', f'x{ti}'))
        return out
    a('v_and_b32 v2, 15, v0')
    a('v_lshrrev_b32 v3, 4, v0')
    a('s_lshl_b32 s28, s23, 2')
    a('s_add_u32 s28, s28, s3')
    a(f's_mul_i32 s27, s28, {58*1024}')
    a(f's_add_u32 s27, s27, {WS_WF:#x}')
    RED = [7 * q + z for z in TL for q in range(4)]
    CH = [[2, 3], [4, 5]] if P['R'] == 12 else [[0], [1], [2, 3], [4, 5]]
    SPL = [7 * q + z for ch in CH for z in ch for q in range(4)]
    KORD = RED + SPL + [28]
    wreg = lambda k: 8 * KORD.index(k)
    def load_w(k):
        out = X_([f's_add_u32 s37, s27, {2048*k}'])
        for m in range(2):
            r = wreg(k) + 4 * m
            out.append(('v', f'buffer_load_dwordx4 a[{r}:{r+3}], v1, s[8:11], s37 offen offset:{1024*m}', f'w{k}'))
        return out
    LW = lambda i0, i1: sum([load_w(k) for k in KORD[i0:i1]], [])
    SEL = 8
    a('v_lshrrev_b32 v5, 2, v2')
    a('v_cmp_eq_u32 vcc, v5, v3')
    a('v_and_b32 v5, 1, v0')
    a('v_lshlrev_b32 v5, 4, v5')
    a('v_mov_b32 v6, 0x3f00')
    a('v_lshlrev_b32 v6, v5, v6')
    a('v_mov_b32 v7, 0')
    a('v_cndmask_b32 v6, v7, v6, vcc')
    a(f'v_mov_b32 v26, {OOB:#x}')
    a('v_lshlrev_b32 v5, 3, v2')
    a('v_cndmask_b32 v26, v26, v5, vcc')
    a('v_and_b32 v5, 2, v0')
    a('v_cmp_eq_u32 vcc, 0, v5')
    a(f'v_cndmask_b32 v{SEL}, v7, v6, vcc')
    a(f'v_cndmask_b32 v{SEL+1}, v6, v7, vcc')
    a(f'v_mov_b32 v{SEL+2}, v{SEL}')
    a(f'v_mov_b32 v{SEL+3}, v{SEL+1}')
    for q in range(2):
        a(f'v_lshlrev_b32 v5, 2, v{SEL+q}')
        a('v_and_b32 v5, 0x80008000, v5')
        a(f'v_or_b32 v{SEL+4+q}, v5, v{SEL+q}')
    a('v_lshrrev_b32 v33, 3, v0')
    a('v_lshlrev_b32 v33, 6, v33')
    a('v_and_b32 v5, 3, v0')
    a('v_lshl_add_u32 v33, v5, 4, v33')
    a('v_bfe_u32 v5, v0, 2, 1')
    a('v_lshl_add_u32 v33, v5, 3, v33')
    a('v_add_u32 v4, s25, v33')
    a(f'v_add_u32 v23, {RT}, v1')
    a('v_add_u32 v24, s17, v1')
    a('v_lshlrev_b32 v5, 4, v2')
    a('v_lshl_add_u32 v25, v3, 11, v5')
    a('v_add_u32 v14, s25, v25')
    a('v_lshrrev_b32 v6, 1, v3')
    a('v_lshl_add_u32 v15, v6, 11, v5')
    a('v_and_b32 v6, 1, v3')
    a('v_lshl_add_u32 v15, v6, 3, v15')
    a('v_add_u32 v15, s25, v15')
    for q in range(4): a(f'v_mov_b32 v{28+q}, 0x3f803f80')
    a('s_lshl_b32 s45, s20, 4')
    a('s_add_u32 s45, s45, s23')
    a('s_lshl_b32 s48, s45, 10')
    a('s_lshl_b32 s45, s45, 13')
    a('s_lshl_b32 s29, s3, 8')
    a('s_add_u32 s45, s45, s29')
    a(f's_add_u32 s45, s45, {WS_X1:#x}')
    a('s_lshl_b32 s29, s3, 7')
    a('s_add_u32 s48, s48, s29')
    a(f's_add_u32 s48, s48, {WS_ST:#x}')
    a('s_mov_b32 s52, 0xaaaaaaaa')
    a('s_mov_b32 s53, 0xaaaaaaaa')
    a('s_mov_b32 s54, 0xcccccccc')
    a('s_mov_b32 s55, 0xcccccccc')
    for ti in range(len(TL)): emit(load_tile(ti))
    if 'RG' in exp:
        a('s_waitcnt lgkmcnt(0)')
        a('s_and_b32 s64, s64, 0x0f800000')
        a('s_add_u32 s27, s27, s64')
    vm.wait('J')
    a('s_barrier')
    if 'FF' not in exp and 'GG' not in exp: st(1)
    R1 = 64
    ACC, PK, TT, TAB = 128, 160, 176, 192
    RJ = ACC + 16
    def rdT(buf, addr, off, tag):
        b = TAB + 16 * buf
        return [('l', f'ds_read_b64_tr_b16 v[{b+4*ks+2*h}:{b+4*ks+2*h+1}], {addr} offset:{off+1024*ks+512*h}', tag) for ks in range(4) for h in range(2)]
    def unit(e, X, tb, rr):
        E = f'v[{e}:{e+3}]'; O = f'v[{e+4}:{e+7}]'
        TA = lambda ks: f'v[{tb+4*ks}:{tb+4*ks+3}]'
        RR = lambda ks: f'v[{rr+4*ks}:{rr+4*ks+3}]'
        return [f'v_mfma_f32_16x16x32_bf16 {E}, v[{SEL}:{SEL+3}], {X}, 0',
                f'v_mfma_f32_16x16x32_bf16 {O}, v[{SEL+2}:{SEL+5}], {X}, 0',
                f'v_mfma_f32_16x16x32_bf16 {E}, {TA(0)}, {RR(0)}, {E}',
                f'v_mfma_f32_16x16x32_bf16 {O}, {TA(2)}, {RR(2)}, {O}',
                f'v_mfma_f32_16x16x32_bf16 {E}, {TA(1)}, {RR(1)}, {E}',
                f'v_mfma_f32_16x16x32_bf16 {O}, {TA(3)}, {RR(3)}, {O}']
    def bfly(e, T, pk):
        ops = []
        for q in range(4):
            ops += [f'v_add_f32 v{T+q}, v{e+q}, v{e+4+q}', f'v_sub_f32 v{T+4+q}, v{e+q}, v{e+4+q}']
        for q in range(2):
            ops += [f'v_cvt_pk_bf16_f32 v{pk+q}, v{T+2*q}, v{T+2*q+1}', f'v_cvt_pk_bf16_f32 v{pk+4+q}, v{T+4+2*q}, v{T+5+2*q}']
        return X_(ops)
    for q in range(4): lg.op(f'ds_read_b128 v[{RJ+4*q}:{RJ+4*q+3}], v24 offset:{1024*q}', 'RJ')
    emit(rdT(2, 'v33', JT, 'JA') + rdT(3, 'v33', JT + 4096, 'JB'))
    a('v_and_b32 v5, 31, v0')
    a('v_lshlrev_b32 v20, 4, v5')
    a('v_lshrrev_b32 v6, 5, v0')
    a('v_lshl_add_u32 v16, v6, 11, v20')
    a('v_add_u32 v17, 57344, v16')
    a(f'v_add_u32 v20, {56*2048}, v20')
    a('s_lshl_b32 s29, s3, 9')
    a('v_add_u32 v21, s29, v20')
    a('s_lshl_b32 s29, s3, 7')
    a(f's_add_u32 s29, s29, {R2O}')
    a('v_lshl_add_u32 v22, v5, 2, s29')
    a('v_mul_u32_u24 v27, 7168, v6')
    a('v_lshl_add_u32 v27, v5, 3, v27')
    uA = unit(ACC, 'a[248:251]', TAB + 32, RJ); uB = unit(ACC + 8, 'a[252:255]', TAB + 48, RJ)
    job = [('wv', None, 'JX')] + X_(uA[:2] + uB[:2]) + [('wl', None, 'JA')] + X_(uA[2:]) + [('wl', None, 'JB')]
    r1 = [('l', f'ds_read_b128 v[{R1+4*q}:{R1+4*q+3}], v23 offset:{1024*q}', 'R') for q in range(16)]
    for i, m in enumerate(uB[2:]): job += X_([m]) + r1[2*i:2*i+2]
    job += bfly(ACC, TT, PK) + bfly(ACC + 8, TT + 8, PK + 2)
    w0 = LW(0, P['n0'])
    for i, x in enumerate(job): emit([x] + w0[i * len(w0) // len(job):(i + 1) * len(w0) // len(job)])
    SJ = TAB + 48
    for hi in range(2):
        P_ = f'v[{PK+4*hi}:{PK+4*hi+3}]'
        vm.op(f'buffer_store_dwordx4 {P_}, v25, s[8:11], s45 offen offset:{1024*hi} sc1', 'js')
        a(f'v_mfma_f32_16x16x32_bf16 v[{SJ+8*hi}:{SJ+8*hi+3}], {P_}, {P_}, 0')
        a(f'v_mfma_f32_16x16x32_bf16 v[{SJ+8*hi+4}:{SJ+8*hi+7}], v[28:31], {P_}, 0')
    emit(r1[8:])
    for hi in range(2):
        q = SJ + 8 * hi
        a(f'v_cndmask_b32 v{q}, v{q}, v{q+1}, s[52:53]')
        a(f'v_cndmask_b32 v{q+2}, v{q+2}, v{q+3}, s[52:53]')
        a(f'v_cndmask_b32 v{q+5}, v{q}, v{q+2}, s[54:55]')
        vm.op(f'buffer_store_dwordx2 v[{q+4}:{q+5}], v26, s[8:11], s48 offen offset:{512*hi} sc1', 'js')
    st(2)
    flg = X_(['s_mul_i32 s29, s28, 37', 's_lshr_b32 s29, s29, 9', 's_mul_i32 s29, s29, 72', 's_lshl_b32 s30, s28, 2', 's_add_u32 s29, s29, s30',
              'v_mov_b32 v35, 1', f'v_mov_b32 v36, {OOB:#x}', 'v_writelane_b32 v36, s29, 0',
              'v_min_u32 v32, 55, v0', 'v_mul_u32_u24 v34, 37, v32', 'v_lshrrev_b32 v34, 9, v34', 'v_mul_u32_u24 v34, 72, v34', 'v_lshl_add_u32 v32, v32, 2, v34',
              'v_min_u32 v34, 13, v0', 's_lshl_b32 s29, s3, 7', 'v_lshl_add_u32 v34, v34, 2, s29',
              's_lshl_b32 s35, s20, 9', f's_add_u32 s35, s35, {WS_FLAGS:#x}', 's_add_u32 s56, s35, 8192', 's_add_u32 s57, s35, 16384'])
    setflag = lambda so, tag: [('wv', None, tag), ('v', f'buffer_store_dword v35, v36, s[8:11], {so} offen sc1', 'fl')]
    tb = {0: 0, 1: 1, 6: 2}
    units = ([(tt, n) for n in range(4) for tt in range(2)] if P['R'] == 12 else []) + [(len(TL) - 1, n) for n in range(4)]
    side = {}
    def spread(lst, u0, u1):
        k = len(lst); m = u1 - u0
        for i, x in enumerate(lst): side.setdefault(u0 + i * m // k, []).append(x)
    NPRE = P['n0'] + P['n1']
    spread(flg, 0, 2)
    spread(LW(P['n0'], NPRE), 0, len(units))
    rdO = lambda ti: rdT(tb[TL[ti]], 'v4', 4096 * TL[ti], f'T{ti}')
    if P['R'] == 12: spread([('wv', None, 'x2')] + rdO(2), 5, 8)
    if P['f1'] < 0: spread(setflag('s35', 'js'), len(units) + P['f1'], len(units) + P['f1'] + 1)
    def post(ui):
        ti, n = units[ui]; t = TL[ti]
        e = ACC + 8 * (ui % 4)
        grp = (ui // 2) % 2 if t < 6 else ui % 2
        b = PK + 8 * grp
        ops = bfly(e, TT + 8 * (ui % 2), b + (2 * t if t < 6 else 0))
        if t == 1:
            ops.append(('l', f'ds_write_b128 v14, v[{b}:{b+3}] offset:{256*n}', 'aw'))
            ops.append(('l', f'ds_write_b128 v14, v[{b+4}:{b+7}] offset:{256*n+1024}', 'aw'))
        elif t == 6:
            ops.append(('l', f'ds_write_b64 v15, v[{b}:{b+1}] offset:{24576+256*n}', 'aw'))
            ops.append(('l', f'ds_write_b64 v15, v[{b+4}:{b+5}] offset:{24576+256*n+1024}', 'aw'))
        return ops
    LAG = 2
    l0 = min(1, len(TL) - 1)
    vm.wait(f't{l0}')
    for ti in range(l0 + 1): emit(rdO(ti))
    vm.wait(f'x{l0}')
    for ui, (ti, n) in enumerate(units):
        if n == 0: lg.wait(f'T{ti}')
        mf = unit(ACC + 8 * (ui % 4), f'a[{XA+16*ti+4*n}:{XA+16*ti+4*n+3}]', TAB + 16 * tb[TL[ti]], R1 + 16 * n)
        fill = (post(ui - LAG) if ui >= LAG else []) + side.get(ui, [])
        k = len(fill)
        for i, m in enumerate(mf):
            a(m)
            emit(fill[i * k // 6:(i + 1) * k // 6])
    for ui in range(len(units) - LAG, len(units)): emit(post(ui))
    a('s_waitcnt lgkmcnt(0)'); lg.all()
    a('s_barrier')
    st(3)
    GT = {0: 128, 2: 160, 1: 192, 3: 224}
    BF = 64
    SA = 112
    nB1 = P['nB1']
    def two(ks, r0, r1, skew):
        o = [(k, r) for k in ks[:len(ks) - skew] for r in (r0, r1)]
        return o + [(k, r0) for k in ks[len(ks) - skew:]] + [(k, r1) for k in ks[len(ks) - skew:]]
    nK = P['nK']
    seq = two(RED, 0, 2, 0) + two(RED[:nB1], 1, 3, 0) + [(k, r) for k in SPL[:nK] for r in (0, 2, 1, 3)]
    seq += two(SPL[nK:] + [28], 0, 2, P['sa']) + two(RED[nB1:] + [28] + SPL[nK:], 1, 3, P['sk'])
    assert len(seq) == 116
    last_use = {k: max(i for i, f in enumerate(seq) if f[0] == k) for k in KORD}
    first_use = {k: min(i for i, f in enumerate(seq) if f[0] == k) for k in KORD}
    done = {r: max(i for i, f in enumerate(seq) if f[1] == r) for r in range(4)}
    def baddr(k, rt):
        if k < 28: return f'v{16 + k // 14} offset:{4096*(k%14)+512*rt}'
        return f'v20 offset:{512*rt}'
    breg = lambda i: BF + 4 * (i % 12)
    rdB = lambda i: ('l', f'ds_read_b128 v[{breg(i)}:{breg(i)+3}], {baddr(*seq[i])}', f'b{i}')
    NS = 232
    fill = [[] for _ in range(NS + 1)]
    def put(lst, s0, s1):
        k = len(lst); m = s1 - s0
        for i, x in enumerate(lst): fill[min(s0 + i * m // k, NS)].append(x)
    AHEAD = 8
    released = set(RED)
    rel = lambda ks: ('f', lambda: released.update(ks), None)
    fx = first_use[SPL[0]]; fa = first_use[28]
    SX = P['xn']
    GAP = P['R'] == 4 and not SX
    if P['f1'] >= 0: put(setflag('s35', 'js') + ([('st', None, 1)] if 'FF' in exp else []), P['f1'], P['f1'] + 1)
    poll1 = [('v', 'buffer_load_dword v37, v32, s[8:11], s35 offen sc1', 'p1')]
    chk1 = [('f', lambda: check('p1', 'v32', 's35', 'K2_P1'), None), ('st', None, 4)]
    x1s = X_(['s_lshl_b32 s29, s20, 14', 's_lshl_b32 s30, s3, 8', 's_add_u32 s30, s30, s29', f's_add_u32 s30, s30, {WS_ST:#x}', 's_add_u32 s31, s30, 4096',
              's_lshl_b32 s29, s20, 17', 's_lshl_b32 s49, s3, 13', 's_add_u32 s49, s49, s29', f's_add_u32 s49, s49, {WS_X1:#x}'])
    def load_x1(z, c):
        return X_([f's_add_u32 m0, s25, {4096*z}', f's_add_u32 s46, s49, {32768*(z>>1)+4096*(z&1)}']) + \
               [('v', f'buffer_load_dwordx4 v1, s[8:11], s46 offen offset:{1024*q} sc1 lds', f'c{c}') for q in range(4)]
    load_sd = [('v', f'buffer_load_dwordx2 v[{SA+2*j}:{SA+2*j+1}], v27, s[8:11], s{30+j//4} offen offset:{1024*(j%4)} sc1', 'sd') for j in range(7)]
    bar = {}
    for c, ch in enumerate(CH):
        bar[c] = 2 * (first_use[ch[0]] - P['ba']) - 1 if (c or P['R'] != 4) else 2 * fx - 1
    bx = bar[len(CH) - 1] + 1
    inv = 0x3b124925
    fin = [('wv', None, 'sd')]
    for (d, s_) in ((0, 2), (4, 6), (8, 10), (0, 4), (8, 12), (0, 8)):
        fin += X_([f'v_add_f32 v{SA+d}, v{SA+d}, v{SA+s_}', f'v_add_f32 v{SA+d+1}, v{SA+d+1}, v{SA+s_+1}'])
    fin += X_([f'v_mov_b32 v{SA+2}, v{SA}', f'v_mov_b32 v{SA+3}, v{SA+1}', 'v_mov_b32 v31, 0',
               f'v_permlane32_swap_b32 v{SA}, v{SA+2}', f'v_permlane32_swap_b32 v{SA+1}, v{SA+3}',
               f'v_add_f32 v{SA}, v{SA}, v{SA+2}', f'v_add_f32 v{SA+2}, v{SA+1}, v{SA+3}',
               f'v_mul_f32 v{SA}, {inv:#x}, v{SA}', f'v_mul_f32 v{SA+2}, {inv:#x}, v{SA+2}',
               f'v_fma_f32 v{SA+2}, -v{SA}, v{SA}, v{SA+2}', f'v_max_f32 v{SA+2}, 0, v{SA+2}',
               f'v_cvt_pk_bf16_f32 v28, -v{SA}, -v{SA}', f'v_cvt_pk_bf16_f32 v{SA+2}, v{SA+2}, v{SA+2}',
               f'v_lshlrev_b32 v{SA+2}, 16, v{SA+2}', f'v_add_f32 v{SA+2}, 0x3727c5ac, v{SA+2}',
               f'v_cvt_pk_bf16_f32 v{SA+2}, v{SA+2}, v{SA+2}', f'v_lshlrev_b32 v{SA+2}, 16, v{SA+2}',
               f'v_sqrt_f32 v{SA+2}, v{SA+2}', 's_nop 0',
               f'v_cvt_pk_bf16_f32 v30, v{SA+2}, v{SA+2}', f'v_cvt_pk_bf16_f32 v29, -v{SA}, v{SA+2}',
               f'v_lshlrev_b32 v{SA+2}, 16, v30', f'v_rcp_f32 v{SA+2}, v{SA+2}'])
    fin += [('l', 'ds_write_b128 v21, v[28:31]', 'st')] + X_([f'v_mul_f32 v{SA+2}, v{SA+2}, v{SA+2}']) + [('l', f'ds_write_b32 v22, v{SA+2}', 'st')]
    fs = bx - P['fs']
    wd_setup = X_(['s_mul_i32 s38, s21, 112', 's_mul_i32 s31, s3, 28', 's_add_u32 s38, s38, s31', 's_lshl_b32 s38, s38, 11',
                   f's_add_u32 s38, s38, {WS_WDF:#x}', 's_and_b32 s32, s3, 1', 's_lshl_b32 s32, s32, 10', 's_lshr_b32 s31, s3, 1', 's_lshl_b32 s31, s31, 8',
                   's_or_b32 s32, s32, s31', 'v_xor_b32 v2, s32, v1', 'v_xor_b32 v3, 0x400, v2',
                   's_mul_i32 s29, s20, 448', 's_lshl_b32 s31, s28, 1', 's_add_u32 s29, s29, s31', 's_lshl_b32 s29, s29, 10', f's_add_u32 s58, s29, {WS_HF:#x}'])
    if 'RG' in exp: wd_setup += X_(['s_add_u32 s38, s38, s64'])
    free = [(0, 232), (0, 240), (0, 248)] + sorted((2 * last_use[k] + 2, wreg(k)) for k in KORD)
    dreg = lambda j: free[j][1]
    def load_wd(j):
        r = dreg(j); out = []
        if j % 2 == 0: out += X_([f's_add_u32 s39, s38, {2048*j}'])
        out += [('v', f'buffer_load_dwordx4 a[{r}:{r+3}], v2, s[8:11], s39 offen offset:{2048*(j%2)}', f'd{j}'),
                ('v', f'buffer_load_dwordx4 a[{r+4}:{r+7}], v3, s[8:11], s39 offen offset:{2048*(j%2)}', f'd{j}')]
        return out
    res = X_(['s_lshl_b32 s33, s22, 1',
              's_lshl_b32 s34, s21, 4', 's_and_b32 s59, s3, 1', 's_lshl_b32 s59, s59, 3', 's_add_u32 s34, s34, s59',
              's_and_b32 s59, s3, 2', 's_lshl_b32 s59, s59, 1', 's_add_u32 s34, s34, s59',
              'v_lshrrev_b32 v10, 5, v0', 'v_and_b32 v11, 31, v0', 's_lshl_b32 s59, s33, 9', 'v_lshl_add_u32 v12, v11, 4, s59',
              's_lshl_b32 s59, s33, 7', f's_add_u32 s59, s59, {R2O}', 'v_lshl_add_u32 v18, v11, 2, s59',
              'v_add_u32 v11, s34, v10'])
    for q in range(2):
        res += X_(['v_mul_u32_u24 v13, 147, v11', 'v_lshrrev_b32 v13, 10, v13',
                   'v_mul_u32_u24 v14, 7, v13', 'v_sub_u32 v14, v11, v14',
                   'v_and_b32 v15, 3, v13', 'v_lshrrev_b32 v13, 2, v13',
                   'v_cmp_eq_u32 vcc, 6, v14',
                   'v_lshl_add_u32 v8, v15, 1, v14', 'v_and_b32 v14, 6, v14', 'v_lshl_add_u32 v8, v14, 2, v8', 'v_sub_u32 v8, v8, v14',
                   'v_add_u32 v15, 24, v15', 'v_cndmask_b32 v8, v8, v15, vcc',
                   'v_mul_u32_u24 v13, 28672, v13', 'v_lshrrev_b32 v14, 1, v8', 'v_lshl_add_u32 v13, v14, 11, v13',
                   'v_and_b32 v8, 1, v8', 'v_lshl_add_u32 v13, v8, 3, v13', f'v_add_u32 v{38+q}, v13, v12', 'v_add_u32 v11, 2, v11'])
    res += X_(['v_lshlrev_b32 v4, 4, v10', 's_lshl_b32 s59, s34, 4', f's_add_u32 s59, s59, {WS_MOD + 5*1792}'])
    for q in range(2):
        res.append(('v', f'buffer_load_dwordx4 v[{40+4*q}:{43+4*q}], v4, s[8:11], s59 offen offset:{32*q}', 'gb'))
    for q in range(2):
        res.append(('l', f'ds_read_b64 v[{56+2*q}:{57+2*q}], v{38+q}', 'res'))
        res.append(('l', f'ds_read_b64 v[{8+2*q}:{9+2*q}], v{38+q} offset:512', 'res'))
    res += [('l', 'ds_read_b32 v12, v18', 'res'), ('l', 'ds_read_b32 v13, v18 offset:128', 'res')]
    res += X_(['v_and_b32 v19, 15, v0', 'v_lshlrev_b32 v19, 1, v19', 'v_bfe_u32 v14, v0, 4, 1', 'v_add_u32 v19, v19, v14',
               f'v_mul_u32_u24 v19, {16*896}, v19', 'v_add_u32 v19, v19, v4',
               f's_mul_i32 s60, s33, {32*16*896}', 's_mul_i32 s59, s20, 896', 's_add_u32 s60, s60, s59', 's_lshl_b32 s59, s34, 3', 's_add_u32 s60, s60, s59',
               f's_add_u32 s61, s60, {32*16*896}',
               's_lshl_b32 s62, s20, 2', 's_add_u32 s62, s62, s33', 's_mul_i32 s62, s62, 112', 's_mul_i32 s59, s3, 28', 's_add_u32 s62, s62, s59',
               's_lshl_b32 s62, s62, 10', f's_add_u32 s62, s62, {WS_HF:#x}', f's_add_u32 s63, s62, {112*1024}',
               's_mov_b32 s12, s50', 's_mov_b32 s13, s51', f's_mov_b32 s14, {NB_X:#x}', 's_mov_b32 s15, 0x00020000'])
    for lam in range(1, 4):
        res += X_([f's_xor_b32 s59, s3, {lam}', 's_mul_i32 s59, s59, 6144', f'v_add_u32 v{4+lam}, s59, v1'])
    res += X_(['s_mul_i32 s59, s3, 6144', 'v_add_u32 v14, s59, v1'])
    res2 = [('wl', None, 'res'), ('wv', None, 'gb')]
    res2 += X_([f'v_mul_f32 v{48+i}, v13, v{40+i}' for i in range(8)] + [f'v_mul_f32 v{40+i}, v12, v{40+i}' for i in range(8)])
    resl = [x for x in res if x[0] == 'l']
    res = [x for x in res if x[0] != 'l']
    def epi(rt, packed, tag):
        g = GT[rt]; u = g + 16; o = X_([f's_add_u32 s29, s58, {rt*112*1024}'])
        for hh in range(2):
            o += X_([f'v_max_f32 v{g+i}, 0, v{g+i}' for i in range(8 * hh, 8 * hh + 8)])
            if packed: o += X_([f'v_pk_mul_f32 v[{g+2*i}:{g+2*i+1}], v[{g+2*i}:{g+2*i+1}], v[{u+2*i}:{u+2*i+1}]' for i in range(4 * hh, 4 * hh + 4)])
            else: o += X_([f'v_mul_f32 v{g+i}, v{g+i}, v{u+i}' for i in range(8 * hh, 8 * hh + 8)])
            o += X_([f'v_cvt_pk_bf16_f32 v{u+i}, v{g+2*i}, v{g+2*i+1}' for i in range(4 * hh, 4 * hh + 4)])
            o.append(('v', f'buffer_store_dwordx4 v[{u+4*hh}:{u+4*hh+3}], v1, s[8:11], s29 offen offset:{1024*hh} sc1', tag))
        return o
    e0 = 2 * done[0] + 2
    SEN = P['sen']
    if SEN:
        pf = X_([f'v_mov_b32 v{44+q}, -1' for q in range(4)])
        for rt in (1, 3):
            pf += X_([f's_add_u32 s59, s58, {rt*112*1024}'])
            pf += [('v', f'buffer_store_dwordx4 v[44:47], v1, s[8:11], s59 offen offset:{1024*hh} sc1', 'hA') for hh in range(2)]
        put(pf, P['ps'], P['ps'] + 30)
        assert P['ps'] + 30 <= bx
    put([('v', 'buffer_load_dword v37, v34, s[8:11], s56 offen sc1', 'pA')], NS - P['pa'], NS - P['pa'] + 1)
    hreg = lambda s: 128 + 4 * (s % 32) if s % 32 < 16 else 64 + 4 * (s % 32 - 16)
    def loadh(s):
        ph, k = divmod(s, 28); b = hreg(s); o = []
        if k % 4 == 0: o += X_([f's_add_u32 s47, s{62+ph}, {1024*k}'])
        return o + [('v', f'buffer_load_dwordx4 v[{b}:{b+3}], v1, s[8:11], s47 offen offset:{1024*(k%4)} sc1', f'h{s}')]
    dt = 8 / P['rate']
    nld = lambda item: sum(0.5 if 'x2' in x[1] else 1 for x in item if x[0] == 'v')
    wq = list(KORD[NPRE:]); t = 0.0
    c1 = 2 * fx if GAP else P['c1']
    d0 = 8 / P['r0']
    early = [load_x1(z, c) for c, ch in enumerate(CH[:SX]) for z in ch]
    extra = P['g2'] if SX else 0
    while wq and t + d0 < c1:
        if early and t >= P['xa']:
            put(early.pop(0), int(t), int(t + 3 * d0) + 1); t += 4 * d0
        elif extra and t + d0 >= bar[0]:
            put(load_w(wq.pop(0)), bar[0], bar[0] + 1); extra -= 1
        else:
            it = load_w(wq.pop(0)); fill[int(t)] += it[:2]; fill[int(t + d0)] += it[2:]; t += 2 * d0
    gap = []; tailb = {}
    if GAP:
        def paced(n):
            o = []
            for _ in range(n):
                if wq: o += [('f', lambda: a(f"s_waitcnt vmcnt({P['gw']})"), None)] + load_w(wq.pop(0))
            return o
        pl = ([('st', None, 6)] if 'FF' in exp else []) + poll1
        if P['p1'] >= 0: put(pl, P['p1'], P['p1'] + 1); pl = []
        gap = paced(P['g1']) + pl + paced(P['g2']) + chk1
    else:
        put(poll1, P['p1'], P['p1'] + 1); put(chk1, c1 - 1, c1)
    q_ = [(bar[c] - 24, 0, load_x1(z, c)) for c, ch in enumerate(CH) for z in ch if c >= SX] + [(fs - 16, 0, load_sd)]
    q_ += [(2 * first_use[k] - 8, 0, load_w(k)) for k in wq]
    q_.sort(key=lambda x: x[0])
    q_ += [(1000 + j, free[j][0], load_wd(j)) for j in range(28)]
    burst = P['b0']
    while GAP and burst > 0:
        item = q_.pop(0)[2]; gap += item; burst -= nld(item)
    for c, ch in enumerate(CH):
        b_ = [('wv', None, f'c{c}')] + ([('wl', None, 'st')] if c == len(CH) - 1 else []) + [('x', 's_barrier', None), rel([k for k in SPL if k % 7 in ch] + ([28] if c == len(CH) - 1 else []))] + ([('st', None, 5)] if c == 0 else [])
        tailb[bar[c]] = (gap + res if c == 0 else []) + b_
    def cost(x):
        if x[0] == 'v': return P['cs'] if 'store_dwordx4' in x[1] else P['cl']
        if x[0] in ('st', 'f'): return 0
        if x[0] == 'x' and x[1].startswith(('v_sqrt', 'v_rcp')): return 8
        return 4
    flagA = setflag('s56', 'hA') + ([('st', None, 1)] if 'GG' in exp else [])
    lists = [[2 * done[1] + 3, epi(1, False, 'hB')], [e0 + 1, epi(0, False, 'hA')], [2 * done[2] + 3, epi(2, False, 'hA') + [('st', None, 6)]],
             [fs, list(fin)], [bx, resl], [bx + 12, res2]]
    credit = 1.0; cur = []; nh = 0; late = []; ca = NS - P['ca']
    if P['ca']: put([('f', lambda: check('pA', 'v34', 's56', 'K2_PA'), None), ('st', None, 8)], ca - 1, ca)
    for sl in range(c1, NS):
        credit = min(credit + P['rate'] / 8, 1.5)
        room = 24 - sum(cost(x) for x in fill[sl] + (tailb.get(sl, []) if sl > bar[0] else [])) - (4 if sl % 2 == 0 else 4 if sl % 4 == 3 else 0)
        if sl >= NS - 12: credit = 1.5
        if not cur and sl < NS - P['qd']:
            if P['ca'] and ca <= sl < NS - P['qa'] and nh < 16: cur = loadh(nh); nh += 1
            elif q_ and q_[0][1] <= sl:
                dl, _, cur = q_.pop(0); cur = list(cur)
                if 'dbg' in exp and dl < 1000: print(cur[-1][2], 'issue', sl, 'need', dl)
        order = [l for l in lists if l[0] <= sl and l[1]]
        if order and order[0] is lists[1] and lists[2] in order: order.remove(lists[2])
        urgent = [l[1] for l in order if l[1][0][0] == 'v']
        for lst in urgent + [cur] + [l[1] for l in order]:
            while lst:
                x = lst[0]; c_ = cost(x)
                if x[0] == 'v':
                    need_ = P['sc'] if 'store' in x[1] else 0.5 if 'x2' in x[1] else 1
                    if credit < min(need_, 1) or room < min(c_, 20): break
                    credit -= need_
                elif c_ > room: break
                fill[sl].append(lst.pop(0)); room -= c_
            if lst and lst in urgent: room = min(room, 0) if False else room
        if flagA and not lists[2][1]:
            put(flagA, sl + 8 * P['fa'], sl + 8 * P['fa'] + 1); flagA = None
            if 'dbg' in exp: print('hA stores done at', sl)
        if sl == bx - 1: assert not lists[3][1], 'fin late'
    fill[NS] += cur + lists[0][1]
    assert not any(l[1] for l in lists[1:])
    late = [dl - 1000 for dl, _, _ in q_]
    for sl, b_ in tailb.items(): fill[sl] += b_
    if 'dbg' in exp: print('late Wd', late, 'nh', nh, 'bar', bar, 'e0', e0, 'max fill', sorted(len(f) for f in fill)[-3:])
    for z, sl in enumerate(P['sx'].split(':') if P['sx'] else []): fill[int(sl)].append(('f', lambda z=z: st(8 + z, True), None))
    if 'noW!' in exp: fill = [[f for f in fl if not (f[0] == 'v' and f[2][0] in 'wd')] for fl in fill]; late = []
    if 'noD!' in exp: fill = [[f for f in fl if not (f[0] == 'v' and f[2][0] in 'd')] for fl in fill]; late = []
    if 'noX!' in exp: fill = [[f for f in fl if not (f[0] in ('v', 'wv') and f[2] in ('x1d', 'sd'))] for fl in fill]
    if 'noA!' in exp: fill = [[f for f in fl if not (f[0] == 'x' and f[1].startswith(('v_max', 'v_mul_f32', 'v_cvt', 'v_add_f32')))] for fl in fill]
    if 'noB!' in exp: fill = [[f for f in fl if not (f[0] == 'x' and f[1].startswith('s_barrier'))] for fl in fill]
    if 'noS!' in exp: fill = [[f for f in fl if not (f[0] in ('v', 'wv') and f[2] in ('hA',))] for fl in fill]
    emit([rdB(i) for i in range(AHEAD)] + wd_setup + x1s)
    started = set(); nb = AHEAD
    for i, (k, rt) in enumerate(seq):
        while nb <= i + 2 and nb < 116 and seq[nb][0] in released: emit([rdB(nb)]); nb += 1
        if 'noW!' not in exp: vm.wait(f'w{k}')
        lg.wait(f'b{i+1}' if (i % 2 == 0 and nb >= i + 6) else f'b{i}')
        for m in range(2):
            d = GT[rt] + 16 * m; w = wreg(k) + 4 * m; b = breg(i)
            c = f'v[{d}:{d+15}]' if rt in started else '0'
            a(f'v_mfma_f32_32x32x16_bf16 v[{d}:{d+15}], a[{w}:{w+3}], v[{b}:{b+3}], {c}')
            if nb <= i + AHEAD and nb < 116 and seq[nb][0] in released: emit([rdB(nb)]); nb += 1
            emit(fill[2 * i + m])
        started.add(rt)
    st(7)
    flB = 'buffer_store_dword v35, v36, s[8:11], s57 offen sc1'
    e3 = epi(3, True, 'hB')
    if P['ord']:
        lw = sum([load_wd(k) for k in late[:P['oe']]], [])
        emit(fill[NS] + lw + e3)
        for k in late[P['oe']:]: emit(load_wd(k))
        late = []
        if P['ord'] == 1 and not SEN:
            emit(setflag('s57', 'hB')); st(9)
    else: emit(fill[NS] + e3)
    if not P['ca']:
        check('pA', 'v34', 's56', 'K2_PA', ['s_waitcnt vmcnt(0)', flB] if not SEN else [])
        st(8)
    stream = []
    for k in range(28):
        if k in late: stream.append((0, load_wd(k)))
        if k >= nh: stream.append((0, loadh(k)))
    if not SEN:
        stream.insert(max(len(stream) - P['pb'], P['w0']), (0, [('v', 'buffer_load_dword v37, v34, s[8:11], s57 offen sc1', 'pB')]))
        stream.append((P['cb'], [('f', lambda: check('pB', 'v34', 's57', 'K2_PB'), None), ('st', None, 11)]))
    stream += [(max(k - 3, P['cb']), loadh(28 + k)) for k in range(28)]
    def topup(win, s):
        while stream and stream[0][0] <= s and len(vm.tags) - 1 - vm.done < win: emit(stream.pop(0)[1])
    for _ in range(P['w0']): emit(stream.pop(0)[1])
    def reduce(ph):
        G2 = 192 + 32 * ph; gb = 40 + 8 * ph; xs = 56 if ph == 0 else 8; T = 20; ad = (5, 6, 7, 14) if ph else (32, 33, 38, 39)
        blk = lambda lam: G2 + 16 * (lam & 1) + 8 * (lam >> 1)
        def fma(r):
            if ph: return X_([f'v_pk_fma_f32 v[{T+2*i}:{T+1+2*i}], v[{r+2*i}:{r+2*i+1}], v[{gb+2*i}:{gb+2*i+1}], v[{T+2*i}:{T+1+2*i}]' for i in range(4)])
            return X_([f'v_fma_f32 v{T+i}, v{r+i}, v{gb+i}, v{T+i}' for i in range(8)])
        o1 = [('l', f'ds_write_b128 v{ad[lam-1]}, v[{blk(lam)+4*q}:{blk(lam)+4*q+3}] offset:{2048*(lam-1)+1024*q}', f'rw{ph}') for lam in (2, 1, 3) for q in range(2)]
        o0 = []
        for i in range(4): o0 += X_([f'v_lshlrev_b32 v{T+2*i}, 16, v{xs+i}', f'v_and_b32 v{T+1+2*i}, 0xffff0000, v{xs+i}'])
        o1 += fma(G2)
        o2 = [('wl', None, f'rw{ph}'), ('x', 's_barrier', None)]
        o2 += [('l', f'ds_read_b128 v[{G2+8+4*z}:{G2+11+4*z}], v{ad[3]} offset:{1024*z}', f'rr{ph}{z//2}') for z in range(6)]
        o3 = []
        for lam in range(3): o3 += [('wl', None, f'rr{ph}{lam}')] + fma(G2 + 8 + 8 * lam)
        o3 += X_([f'v_cvt_pk_bf16_f32 v{28+i}, v{T+2*i}, v{T+1+2*i}' for i in range(4)] + ['v_permlane32_swap_b32 v28, v30', 'v_permlane32_swap_b32 v29, v31'])
        o3 += [('v', f'buffer_store_dwordx4 v[28:31], v19, s[12:15], s{60+ph} offen{"" if ph else " sc1"}', 'out')]
        return o0, o1, o2, o3
    f2 = [[] for _ in range(113)]
    def put2(lst, s0, s1):
        k = len(lst); m = s1 - s0
        for i, x in enumerate(lst): f2[s0 + i * m // k].append(x)
    rA = reduce(0); rB = reduce(1)
    if not SEN and P['ord'] != 1: put2(setflag('s57', 'hB') + [('st', None, 9)], P['fb'], P['fb'] + 1)
    put2(X_([f'v_add_u32 v{d}, {RA}, v{r}' for d, r in zip((32, 33, 38, 39), (5, 6, 7, 14))]) + rA[0], 40, 50)
    put2(rA[1], 58, 64); put2(rA[2], 68, 72); put2(rA[3], 76, 88); put2(rB[0], 90, 96)
    emit(f2[0])
    grp = {0: 4, 4: 4, 8: 4, 12: 4, 16: 4, 20: 4, 24: 2, 26: 2}
    for s in range(56):
        ph, k = divmod(s, 28)
        if SEN and ph and k in grp:
            n = grp[k]
            while f'h{s+n-1}' not in vm.tags: emit(stream.pop(0)[1])
            vm.wait(f'h{s+n-1}')
            mx = [f'v_max_u32 v37, v{hreg(s)}, v{hreg(s)+2}'] + [f'v_max3_u32 v37, v37, v{hreg(s+z)}, v{hreg(s+z)+2}' for z in range(1, n)] + ['v_cmp_eq_u32 vcc, -1, v37']
            for x in mx: a(x)
            a('s_nop 1')
            a(f's_cbranch_vccnz K2_B{k}_S')
            a.label(f'K2_B{k}_OK')
            tail.extend([f'K2_B{k}_S:', 's_mov_b32 s36, 0', f's_add_u32 s49, s63, {1024*k}', f'K2_B{k}_L:'] +
                [f'buffer_load_dwordx4 v[{hreg(s+z)}:{hreg(s+z)+3}], v1, s[8:11], s49 offen offset:{1024*z} sc1' for z in range(n)] +
                (['s_add_u32 s95, s95, 1'] if stamps else []) +
                ['s_add_u32 s36, s36, 1', 's_waitcnt vmcnt(0)'] + mx + ['s_cmp_gt_u32 s36, 200000', f's_cbranch_scc1 K2_B{k}_OK', 's_nop 1',
                 f's_cbranch_vccnz K2_B{k}_L', f's_branch K2_B{k}_OK'])
        while f'h{s}' not in vm.tags: emit(stream.pop(0)[1])
        vm.wait(f'h{s}')
        if ph == 0 and '!' not in exp: vm.wait(f'd{k}')
        if k == 0: st(10 + 3 * ph)
        b = hreg(s); dr = dreg(k)
        for c in (1, 0):
            d = 192 + 32 * ph + 16 * c
            cc = '0' if k == 0 else f'v[{d}:{d+15}]'
            a(f'v_mfma_f32_32x32x16_bf16 v[{d}:{d+15}], a[{dr+4*c}:{dr+4*c+3}], v[{b}:{b+3}], {cc}')
            if c == 1 and 2 * s + 1 >= P['fb']: topup(P['win'], s)
            emit(f2[2 * s + 2 - c])
        if k == 27: st(12 + 2 * ph)
    emit(rB[1] + rB[2] + rB[3])
    if stamps:
        a('s_waitcnt vmcnt(0)')
        st(15)
        a('s_lshl_b32 s98, s2, 4')
        a('s_lshl_b32 s99, s3, 2')
        a('s_add_u32 s98, s98, s99')
        a(f's_add_u32 s98, s98, {WS_STAMP + 0x30000:#x}')
        a('v_mov_b32 v60, s95')
        a('v_mov_b32 v61, 0')
        a('buffer_store_dword v60, v61, s[8:11], s98 offen')
    if P['ma'] >= 0:
        a('s_cmp_lg_u32 s2, 0')
        a('s_cbranch_scc1 K2_END')
        a('s_waitcnt vmcnt(0)')
        adr = lambda o: WS_STAMP + (o >> 16) * 0x10000 + ((o >> 4) & 0xfff) * 128 + (o & 15) * 8
        a(f'v_mov_b32 v2, {adr(P["ma"]):#x}')
        a('buffer_load_dword v64, v2, s[8:11], 0 offen sc1')
        for i in range(4):
            a(f'v_add_u32 v2, {64*i}, v0')
            a(f'v_min_u32 v2, {P["mn"]-1}, v2')
            a('v_lshlrev_b32 v2, 7, v2')
            a(f'v_add_u32 v2, {adr(P["mb"]):#x}, v2')
            a(f'buffer_load_dword v{65+i}, v2, s[8:11], 0 offen sc1')
        a('s_waitcnt vmcnt(0)')
        for i in range(4): a(f'v_sub_u32 v{65+i}, v{65+i}, v64')
        a('v_max_i32 v65, v65, v66'); a('v_max_i32 v67, v67, v68'); a('v_max_i32 v64, v65, v67')
        a('s_mov_b32 s20, 0')
        for i in range(64):
            a(f'v_readlane_b32 s21, v64, {i}')
            a('s_max_i32 s20, s20, s21')
        a('s_memrealtime s[22:23]')
        a('s_min_u32 s20, s20, 5000')
        a(f's_lshl_b32 s20, s20, {P["ms"]}')
        a(f's_add_u32 s20, s20, {P["mc"]}')
        a('s_waitcnt lgkmcnt(0)')
        a.label('K2_SPIN')
        a('s_memrealtime s[24:25]')
        a('s_waitcnt lgkmcnt(0)')
        a('s_sub_u32 s24, s24, s22')
        a('s_cmp_lt_u32 s24, s20')
        a('s_cbranch_scc1 K2_SPIN')
    if 'DBG' in exp:
        a('s_cmp_lg_u32 s2, 0')
        a('s_cbranch_scc1 K2_END')
        a('s_load_dwordx2 s[12:13], s[0:1], 80')
        a('s_waitcnt vmcnt(0)')
        offs = [180*128, 0, 8, 16, 130*128+16, 0x10000, 0x10008, 0x10020, 0x10000+100*128+32, 0x20000, 0x20000+5*8, 0x20000+7*8, 0x20000+15*8]
        for i, o in enumerate(offs):
            a(f'v_mov_b32 v2, {WS_STAMP + o:#x}')
            a(f'buffer_load_dword v{64+i}, v2, s[8:11], 0 offen sc1')
        a('s_mov_b32 s14, 256')
        a('s_mov_b32 s15, 0x00020000')
        a('v_mov_b32 v2, 0')
        a('s_waitcnt vmcnt(0) lgkmcnt(0)')
        for i in range(1, len(offs)):
            a(f'v_sub_u32 v{64+i}, v{64+i}, v64')
            a(f'buffer_store_dword v{64+i}, v2, s[12:15], 0 offen offset:{4*i}')
    a.label('K2_END')
    a('s_endpgm')
    for t_ in tail:
        if t_.endswith(':'): a.label(t_[:-1])
        else: a(t_)
    return a
```
